```python
import torch

def _softmax(x, axis=-1):
    return torch.softmax(x, dim=axis)
def _gelu(x):
    return torch.nn.functional.gelu(x, approximate="tanh")
def _silu(x):
    return torch.nn.functional.silu(x)
def _sigmoid(x):
    return torch.sigmoid(x)
def _layernorm(x, axis=-1, eps=1e-5):
    m = x.mean(dim=axis, keepdim=True)
    v = x.var(dim=axis, keepdim=True, unbiased=False)
    return (x - m) / torch.sqrt(v + eps)
def _scatter_add(tgt, idx, src, axis=0):
    return tgt.clone().index_add_(axis, idx, src)
def _segment_sum(src, seg, n):
    out = torch.zeros((n,) + src.shape[1:], dtype=src.dtype)
    return out.index_add_(0, seg, src)
def _pad(x, pw):
    flat = tuple(v for pair in reversed(pw) for v in pair)
    return torch.nn.functional.pad(x, flat)

kernel_name = 'gated_mix__sliding_local_dilated__dense_activation_relu__prompt'

def setup_inputs():

    _w = (lambda a: (lambda t: t.to(torch.bfloat16) if t.is_floating_point() else t)(torch.as_tensor(a)))
    def _A_setup():
        B, S, D = 1, 2048, 640
        return {
            "x": _w((lambda *s: torch.randn(*s, dtype=torch.bfloat16) * 0.05)(B, S, D)),
            "wqkv": _w((lambda *s: torch.randn(*s, dtype=torch.bfloat16) * 0.8)(D, 3 * D)),
            "wo": _w((lambda *s: torch.randn(*s, dtype=torch.bfloat16) * 0.05)(D, D)),
        }
    _A_in = _A_setup()

    def _B_setup():
        B, S, D, Dff = 1, 2048, 640, 1536
        return {
            "x": _w((lambda *s: torch.randn(*s, dtype=torch.bfloat16) * 0.05)(B, S, D)),
            "w1": _w((lambda *s: torch.randn(*s, dtype=torch.bfloat16) * 0.2)(D, Dff)),
            "w2": _w((lambda *s: torch.randn(*s, dtype=torch.bfloat16) * 0.2)(Dff, D)),
        }
    _B_in = _B_setup()

    return {
        "A_x": _A_in["x"],
        "A_wqkv": _A_in["wqkv"],
        "A_wo": _A_in["wo"],
        "B_x": _B_in["x"],
        "B_w1": _B_in["w1"],
        "B_w2": _B_in["w2"],
        "gate_w": _w((lambda *s: torch.randn(*s, dtype=torch.bfloat16) * 0.05)(640) * 16.0),
    }

def reference(A_x, A_wqkv, A_wo, B_x, B_w1, B_w2, gate_w):
    def _A_ref(x, wqkv, wo):
        B, S, D = x.shape
        H = 32; Dh = D // H
        W, dil = 8, 2
        qkv = (lambda x, *d: x.permute(*d))((x @ wqkv).reshape(B, S, 3, H, Dh), 2, 0, 3, 1, 4)
        q, k, v = qkv[0], qkv[1], qkv[2]
        scale = Dh ** -0.5
        pos = torch.arange(S)
        off = torch.arange(W) * dil
        idx = pos[:, None] - off[None, :]
        mask = idx >= 0
        idx_c = torch.where(mask, idx, 0).reshape(-1)
        kg = k[:, :, idx_c, :].reshape(B, H, S, W, Dh)
        vg = v[:, :, idx_c, :].reshape(B, H, S, W, Dh)
        logits = torch.einsum("bhsd,bhswd->bhsw", q, kg) * scale
        logits = torch.where(mask[None, None, :, :], logits, -1e9)
        attn = _softmax(logits, axis=-1)
        o = torch.einsum("bhsw,bhswd->bhsd", attn, vg)
        return (lambda x, *d: x.permute(*d))(o, 0, 2, 1, 3).reshape(B, S, D) @ wo

    def _B_ref(x, w1, w2):
        h = torch.einsum("bsd,df->bsf", x, w1)
        zero = torch.zeros_like(h)
        h = torch.maximum(h, zero)
        return torch.einsum("bsf,fd->bsd", h, w2)

    x = A_x
    g = _sigmoid((x * gate_w).sum(-1, keepdims=True))
    a = _A_ref(x, A_wqkv, A_wo)
    b = _B_ref(x, B_w1, B_w2)
    return g * a + (1 - g) * b
```

```python
import struct
from gen import *
from sched import schedule

K1_LDS = 163840
QST = 16384
FST = 17408
GT_OFF = 6 * FST + 3 * 16384
NEG = 0xEF800000
MF = "v_mfma_f32_16x16x32_bf16"

def f2u(x):
    return struct.unpack("<I", struct.pack("<f", x))[0]

SWAVE, SX, SY = 20, 21, 22
SW, SXS, SO, SG = 24, 28, 32, 36
VL = 254


def loader(e, tag, wst, wimm, wstep, pre=None):
    pair = 2 * wst + 16384
    xstep = 128
    if OPT.get("exp", 0) in (1, 2): wstep = 0
    if OPT.get("exp", 0) in (1, 3): xstep = 0
    e("s_mov_b32 s42, 0")
    e("s_mul_i32 s43, s48, %d" % (2 * wstep))
    e("s_mul_i32 s44, s48, %d" % xstep)
    e("s_mov_b32 s45, 0")
    if pre: pre()
    e.label(tag + "_LOOP")
    e("s_cmp_lt_u32 s45, 2")
    e("s_cbranch_scc1 %s_ISSUE" % tag)
    sp = OPT.get("sp", 0)
    e("s_waitcnt vmcnt(%d)" % (16 if sp else 12))
    e("s_barrier")
    e.label(tag + "_ISSUE")
    def W(so):
        for i in range(4):
            e("buffer_load_dwordx4 v%d, s[%d:%d], %s offen offset:%d lds" % (10 + i, SW, SW + 3, so, wimm * i))
    def X(j):
        for i in range(2):
            e("buffer_load_dwordx4 v%d, s[%d:%d], s44 offen offset:%d lds" % (14 + 2 * j + i, SXS, SXS + 3, 1024 * i))
    e("s_add_u32 m0, s42, s41")
    e("s_add_u32 s46, s43, %d" % wstep)
    X(0)
    e("s_add_u32 m0, m0, 2048")
    e("s_add_u32 s48, s48, 1")
    X(1)
    e("s_add_u32 m0, s42, s40")
    e("s_add_u32 s44, s44, %d" % xstep)
    W("s43")
    e("s_add_u32 m0, m0, %d" % wst)
    e("s_add_u32 s43, s43, %d" % (2 * wstep))
    W("s46")
    if sp:
        e("buffer_load_dword v30, v20, s[%d:%d], 0 offen" % (SW, SW + 3))
        e("buffer_load_dword v31, v21, s[%d:%d], 0 offen" % (SXS, SXS + 3))
        e("v_add_u32 v20, %d, v20" % (2 * wstep))
        e("v_add_u32 v21, 128, v21")
    e("s_cmp_eq_u32 s48, 10")
    e("s_cselect_b32 s43, 0, s43")
    e("s_cselect_b32 s44, 0, s44")
    e("s_add_u32 s42, s42, %d" % pair)
    e("s_cmp_eq_u32 s42, %d" % (3 * pair))
    e("s_cselect_b32 s42, 0, s42")
    e("s_add_u32 s45, s45, 1")
    e("s_cmp_lt_u32 s45, 10")
    e("s_cbranch_scc1 %s_LOOP" % tag)
    e("s_waitcnt vmcnt(%d)" % (16 if sp else 12))
    e("s_barrier")
    e("s_waitcnt vmcnt(0)")
    e("s_barrier")
    e("s_barrier")
    e("s_endpgm")


def touch(e, kind):
    pf = OPT.get("pf", 0)
    if not pf: return
    e("s_waitcnt lgkmcnt(0)")
    srd(e, SXS, 4, 0, 2048 * 640 * 2)
    if kind == "q":
        srd(e, SW, 6, 0, 640 * 1920 * 2)
        e("s_lshl_b32 s46, s22, 8")
        e("v_add_u32 v1, s46, v0")
        e("v_mul_u32_u24 v2, 10923, v1")
        e("v_lshrrev_b32 v2, 16, v2")
        e("v_mul_u32_u24 v3, 6, v2")
        e("v_sub_u32 v3, v1, v3")
        e("v_lshrrev_b32 v4, 1, v3")
        e("v_mul_u32_u24 v4, 1024, v4")
        e("v_lshl_add_u32 v4, v3, 7, v4")
        e("v_mul_u32_u24 v2, 3840, v2")
        e("s_mul_i32 s46, s21, 160")
        e("s_and_b32 s46, s46, 0xffffff80")
        e("v_add3_u32 v2, v2, v4, s46")
        e("buffer_load_dword v255, v2, s[%d:%d], 0 offen" % (SW, SW + 3))
    else:
        srd(e, SW, 12, 0, 640 * 1536 * 2)
        e("s_and_b32 s46, s22, 3")
        e("s_lshl_b32 s46, s46, 8")
        e("v_add_u32 v1, s46, v0")
        e("v_lshrrev_b32 v2, 2, v1")
        e("v_mul_u32_u24 v2, 3072, v2")
        e("v_and_b32 v3, 3, v1")
        e("v_lshl_add_u32 v2, v3, 7, v2")
        e("s_lshl_b32 s46, s21, 9")
        e("v_add_u32 v2, s46, v2")
        for n in range(3):
            e("buffer_load_dword v255, v2, s[%d:%d], 0 offen" % (SW, SW + 3))
            if n < 2: e("v_add_u32 v2, %d, v2" % (256 * 3072))
    if pf == 1:
        e("s_mul_i32 s46, s2, 86")
        e("v_add_u32 v1, s46, v0")
        e("v_lshlrev_b32 v1, 7, v1")
        e("v_cmp_gt_u32 vcc, 86, v0")
        e("s_nop 1")
        e("v_cndmask_b32 v1, -1, v1, vcc")
        e("buffer_load_dword v255, v1, s[%d:%d], 0 offen" % (SXS, SXS + 3))
    elif pf == 2:
        e("s_lshr_b32 s46, s2, 3")
        e("s_mul_i32 s46, s46, 768")
        e("v_add_u32 v1, s46, v0")
        e("v_lshlrev_b32 v1, 7, v1")
        for n in range(3):
            e("buffer_load_dword v255, v1, s[%d:%d], 0 offen" % (SXS, SXS + 3))
            if n < 2: e("v_add_u32 v1, %d, v1" % (256 * 128))


def sp_setup(e, kind):
    sp = OPT.get("sp", 0); d = OPT.get("spd", 2)
    if not sp: return
    if kind == "q":
        e("s_lshl_b32 s46, s22, 2")
        e("s_add_u32 s46, s46, s20")
        e("s_cmp_ge_u32 s46, 64")
        e("s_cselect_b32 s47, 0x40000000, 0")
        e("s_mul_i32 s46, s46, 3840")
        e("s_or_b32 s46, s46, s47")
        e("s_mul_i32 s47, s21, 160")
        e("s_and_b32 s47, s47, 0xffffff80")
        e("s_add_u32 s46, s46, s47")
        e("s_add_u32 s46, s46, %d" % (d * 64 * 3840))
        e("v_lshrrev_b32 v4, 1, v%d" % VL)
        e("v_lshlrev_b32 v4, 10, v4")
        e("v_lshl_add_u32 v4, v%d, 7, v4" % VL)
        e("v_add_u32 v20, s46, v4")
        nl = 6
    else:
        e("s_and_b32 s46, s22, 3")
        e("s_lshl_b32 s46, s46, 2")
        e("s_add_u32 s46, s46, s20")
        e("s_mul_i32 s46, s46, %d" % (4 * 3072))
        e("s_lshl_b32 s47, s21, 9")
        e("s_add_u32 s46, s46, s47")
        e("s_add_u32 s46, s46, %d" % (d * 64 * 3072))
        e("v_lshrrev_b32 v4, 2, v%d" % VL)
        e("v_mul_u32_u24 v4, 3072, v4")
        e("v_and_b32 v5, 3, v%d" % VL)
        e("v_lshl_add_u32 v4, v5, 7, v4")
        e("v_add_u32 v20, s46, v4")
        nl = 16
    e("v_cmp_gt_u32 vcc, %d, v%d" % (nl, VL))
    e("v_mov_b32 v5, 0x40000000")
    e("s_nop 0")
    e("v_cndmask_b32 v20, v5, v20, vcc")
    if sp == 1:
        e("s_lshl_b32 s46, s2, 2"); nl = 3
    else:
        e("s_lshr_b32 s46, s2, 3"); e("s_lshl_b32 s46, s46, 2"); nl = 18
    e("s_add_u32 s46, s46, s20")
    e("s_mul_i32 s46, s46, %d" % nl)
    e("v_add_u32 v4, s46, v%d" % VL)
    e("v_mul_u32_u24 v4, 1280, v4")
    e("v_add_u32 v4, %d, v4" % (128 * d))
    e("v_cmp_gt_u32 vcc, %d, v%d" % (nl if sp < 3 else 0, VL))
    e("s_nop 1")
    e("v_cndmask_b32 v21, v5, v4, vcc")


def rot_calc(e, a, b):
    if not OPT.get("rot", 1):
        e("s_mov_b32 s48, 0"); return
    e("s_add_u32 s48, s%d, s%d" % (a, b))
    for _ in range(2):
        e("s_sub_u32 s49, s48, 10")
        e("s_cmp_ge_u32 s48, 10")
        e("s_cselect_b32 s48, s49, s48")


def x_lane(e):
    e("v_lshrrev_b32 v2, 3, v%d" % VL)
    e("v_mul_u32_u24 v2, 2560, v2")
    e("v_lshrrev_b32 v3, 4, v%d" % VL)
    e("v_xor_b32 v3, v3, v%d" % VL)
    e("v_and_b32 v3, 7, v3")
    e("v_lshl_add_u32 v2, v3, 4, v2")
    e("v_xor_b32 v3, 64, v2")
    e("v_add_u32 v3, %d, v3" % (8 * 2560 - 1024))


def x_read_addr(e, vd, vl, vg, sbase):
    e("v_bfe_u32 v5, v%d, 1, 3" % vl)
    e("v_xor_b32 v5, v5, v%d" % vg)
    e("v_and_b32 v6, 15, v%d" % vl)
    e("v_lshlrev_b32 v6, 7, v6")
    e("v_lshl_add_u32 v6, v5, 4, v6")
    e("v_add_u32 v%d, %s, v6" % (vd, sbase))
    e("v_xor_b32 v%d, 64, v%d" % (vd + 1, vd))


def mainloop(e, tag, stage, reads, mfmas, nbase, vbase, vcur, extra_upd=None, extra_s=None):
    if OPT.get("nomfma", 0):
        mf0 = mfmas; mfmas = lambda b: mf0(b)[:1]
    for i in range(nbase):
        e("v_mov_b32 v%d, v%d" % (vcur + i, vbase + i))
    e("s_mov_b32 s42, 0")
    e("s_mov_b32 s45, 0")
    e("s_barrier")
    stamp(e, 1, 18, 0)
    for r in reads(0, 0, 0):
        e(r)
    e.label(tag + "_LOOP")
    e("s_add_u32 s42, s42, %d" % (2 * stage + 16384))
    e("s_cmp_eq_u32 s42, %d" % (3 * (2 * stage + 16384)))
    e("s_cselect_b32 s42, 0, s42")
    e("s_add_u32 s45, s45, 1")
    for x in extra_s or []:
        e(x)
    e("s_waitcnt lgkmcnt(0)")
    upd = ["v_add_u32 v%d, s42, v%d" % (vcur + i, vbase + i) for i in range(nbase)] + (extra_upd or [])
    for x in interleave(mfmas(0), reads(1, stage, 1) + upd):
        e(x)
    e("s_waitcnt lgkmcnt(0)")
    e("s_barrier")
    for x in interleave(mfmas(1), reads(0, 0, 0)):
        e(x)
    e("s_cmp_lt_u32 s45, 10")
    e("s_cbranch_scc1 %s_LOOP" % tag)
    e("s_waitcnt lgkmcnt(0)")


def lane_pos0(e, vl, vg, vc, vp):
    e("v_lshrrev_b32 v%d, 4, v%d" % (vg, vl))
    e("v_and_b32 v%d, 3, v%d" % (vc, vl))
    e("v_bfe_u32 v%d, v%d, 2, 3" % (vp, vl))
    e("v_lshrrev_b32 v1, 5, v%d" % vl)
    e("v_lshl_add_u32 v%d, v1, 4, v%d" % (vp, vp))


def kperm(e, vk, vp, t):
    e("v_and_b32 v%d, 0x33, v%d" % (vk, vp))
    e("v_and_b32 v%d, 4, v%d" % (t, vp))
    e("v_lshl_or_b32 v%d, v%d, 1, v%d" % (vk, t, vk))
    e("v_and_b32 v%d, 8, v%d" % (t, vp))
    e("v_lshrrev_b32 v%d, 1, v%d" % (t, t))
    e("v_or_b32 v%d, v%d, v%d" % (vk, t, vk))


def gen_qkv(e):
    e("s_mul_i32 s23, s22, 114")
    e("s_sub_u32 s23, s23, 14")
    e("s_cmp_lt_u32 s20, 4")
    e("s_cbranch_scc1 QKV_C")
    e("s_sub_u32 s20, s20, 4")
    e("s_lshl_b32 s40, s20, 12")
    e("s_add_u32 s41, s40, %d" % (2 * QST))
    rot_calc(e, 21, 22)
    e("s_mul_i32 s46, s21, 160")
    e("s_lshl_b32 s47, s20, 8")
    for i in range(4):
        e("v_add_u32 v2, s47, v%d" % VL)
        if i: e("v_add_u32 v2, %d, v2" % (64 * i))
        e("v_mul_u32_u24 v3, 2185, v2")
        e("v_lshrrev_b32 v3, 16, v3")
        e("v_mul_u32_u24 v4, 30, v3")
        e("v_sub_u32 v4, v2, v4")
        e("v_mul_u32_u24 v5, 205, v4")
        e("v_lshrrev_b32 v5, 11, v5")
        kperm(e, 6, 3, 7)
        e("v_mul_u32_u24 v6, 3840, v6")
        e("v_mul_u32_u24 v5, 1120, v5")
        e("v_lshl_add_u32 v6, v4, 4, v6")
        e("v_add3_u32 v%d, v6, v5, s46" % (10 + i))
        e("s_sub_u32 s46, s46, 1024")
    e("s_cmp_eq_u32 s20, 3")
    e("s_cselect_b32 s47, 0x40000000, 0")
    e("v_or_b32 v13, s47, v13")
    e("s_lshr_b32 s46, s20, 1")
    e("s_add_u32 s46, s46, s23")
    e("s_and_b32 s47, s20, 1")
    e("s_lshl_b32 s47, s47, 6")
    e("s_add_u32 s46, s46, s47")
    e("s_mul_i32 s46, s46, 1280")
    x_lane(e)
    e("v_add_u32 v14, s46, v2")
    e("v_add_u32 v15, s46, v3")
    e("v_add_u32 v16, %d, v14" % (32 * 1280))
    e("v_add_u32 v17, %d, v15" % (32 * 1280))
    sp_setup(e, "q")
    e("s_waitcnt lgkmcnt(0)")
    srd(e, SW, 6, 0, 640 * 1920 * 2)
    srd(e, SXS, 4, 0, 2048 * 640 * 2)
    loader(e, "QL", QST, 1024, 32 * 3840)

    e.label("QKV_C")
    touch(e, "q")
    VB, VCUR = 224, 228
    CC, CP, CF, MP, MG0, MG1, MV0, MV1, ON0, ON1, OS0, OS1, ONES = 232, 236, 240, 244, 246, 247, 248, 249, 250, 251, 252, 253, 224
    e("s_lshr_b32 s40, s20, 1")
    e("s_and_b32 s41, s20, 1")
    e("v_mov_b32 v9, v%d" % VL)
    lane_pos0(e, 9, 2, 3, 4)
    e("s_mul_i32 s46, s41, 80")
    e("v_mul_u32_u24 v4, 480, v4")
    e("v_add_u32 v4, s46, v4")
    e("v_lshl_add_u32 v%d, v3, 3, v4" % VB)
    e("v_and_b32 v5, 1, v3")
    e("v_mul_u32_u24 v5, 40, v5")
    e("v_lshrrev_b32 v6, 1, v3")
    e("v_mul_u32_u24 v6, 160, v6")
    e("v_add3_u32 v4, v4, v5, v6")
    e("v_add_u32 v%d, 32, v4" % (VB + 1))
    e("s_lshl_b32 s46, s40, 13")
    e("s_add_u32 s46, s46, %d" % (2 * QST))
    x_read_addr(e, VB + 2, 9, 2, "s46")
    e("v_and_b32 v3, 15, v9")
    e("v_lshlrev_b32 v4, 2, v2")
    e("v_sub_u32 v5, v3, v4")
    e("s_cmp_eq_u32 s22, 0")
    e("s_cselect_b32 s46, 7, 0")
    e("v_subrev_u32 v4, s46, v4")
    e("s_mov_b32 s47, 0x%x" % NEG)
    for r in range(4):
        e("v_subrev_u32 v6, %d, v5" % r)
        e("v_ashrrev_i32 v%d, 31, v6" % (10 + r))
        e("v_sub_u32 v7, 7, v6")
        e("v_ashrrev_i32 v7, 31, v7")
        e("v_or_b32 v7, v7, v%d" % (10 + r))
        e("v_and_b32 v%d, s47, v7" % (CC + r))
        e("v_sub_u32 v8, -9, v6")
        e("v_ashrrev_i32 v8, 31, v8")
        e("v_and_b32 v%d, s47, v8" % (CP + r))
        e("v_add_u32 v8, %d, v4" % r)
        e("v_ashrrev_i32 v8, 31, v8")
        e("v_or_b32 v7, v7, v8")
        e("v_and_b32 v%d, s47, v7" % (CF + r))
    e("s_mov_b32 s47, 0xffff")
    e("v_bfi_b32 v%d, s47, v10, v11" % MP)
    e("v_bfi_b32 v%d, s47, v12, v13" % (MP + 1))
    e("v_add_u32 v6, -1, v2")
    e("v_ashrrev_i32 v%d, 31, v6" % MG0)
    e("v_xor_b32 v6, 1, v2")
    e("v_add_u32 v6, -1, v6")
    e("v_ashrrev_i32 v%d, 31, v6" % MG1)
    e("v_add_u32 v6, -4, v3")
    e("v_ashrrev_i32 v%d, 31, v6" % MV0)
    e("v_xor_b32 v6, 4, v3")
    e("v_add_u32 v6, -4, v6")
    e("v_ashrrev_i32 v%d, 31, v6" % MV1)
    e("s_mul_i32 s46, s22, 57")
    e("s_add_u32 s46, s46, 9")
    e("v_add_u32 v6, s46, v3")
    e("v_lshrrev_b32 v7, 4, v6")
    e("v_lshl_add_u32 v7, v7, 1, s40")
    e("s_mov_b32 s47, %d" % RB_STRIDE)
    e("v_mul_lo_u32 v7, v7, s47")
    e("v_and_b32 v6, 15, v6")
    e("s_lshl_b32 s46, s21, 1")
    e("s_add_u32 s46, s46, s41")
    e("s_lshl_b32 s46, s46, 10")
    e("v_lshl_add_u32 v8, v6, 4, v7")
    e("v_lshl_add_u32 v8, v2, 8, v8")
    e("v_add_u32 v%d, s46, v8" % ON1)
    e("s_lshr_b32 s46, s21, 1")
    e("s_add_u32 s46, s46, 16")
    e("s_lshl_b32 s46, s46, 3")
    e("s_and_b32 s47, s21, 1")
    e("s_lshl_b32 s47, s47, 2")
    e("s_add_u32 s46, s46, s47")
    e("s_lshl_b32 s47, s41, 1")
    e("s_add_u32 s46, s46, s47")
    e("s_lshl_b32 s46, s46, 7")
    e("v_lshl_add_u32 v8, v6, 3, v7")
    e("v_lshl_add_u32 v8, v2, 7, v8")
    e("v_add_u32 v8, s46, v8")
    e("v_lshlrev_b32 v6, 29, v2")
    e("v_and_b32 v6, 0x40000000, v6")
    e("v_or_b32 v%d, v6, v8" % OS1)
    e("v_add_u32 v6, -7, v3")
    e("v_ashrrev_i32 v6, 31, v6")
    e("v_and_b32 v6, 0x40000000, v6")
    e("s_mov_b32 s47, %d" % (2 * RB_STRIDE))
    e("v_subrev_u32 v7, s47, v%d" % ON1)
    e("v_and_b32 v7, 0x3fffffff, v7")
    e("v_or_b32 v%d, v6, v7" % ON0)
    e("v_subrev_u32 v7, s47, v8")
    e("v_and_b32 v7, 0x3fffffff, v7")
    e("v_or_b32 v7, v6, v7")
    e("v_and_b32 v6, 0x40000000, v%d" % OS1)
    e("v_or_b32 v%d, v6, v7" % OS0)
    for i in range(64):
        e("v_mov_b64 v[%d:%d], 0" % (2 * i, 2 * i + 1))
    e("s_waitcnt lgkmcnt(0)")
    srd(e, SO, 18, ACT_OFF, ACT_BYTES)
    c = f2u(20 ** -0.5 * 1.4426950408889634)
    e("s_mov_b32 s50, 0x%x" % c)
    e("s_mov_b32 s51, 0x%x" % c)
    e("s_mov_b32 s52, 0x%x" % (c ^ 0x80000000))
    e("s_mov_b64 s[54:55], 0xffff")
    e("s_mov_b32 s56, %d" % (2 * RB_STRIDE))
    e("s_mov_b32 s57, %d" % (4 * RB_STRIDE))

    TOFF = [(0, 0), (0, 40), (0, 160), (0, 200), (1, 0), (0, 320), (0, 360), (1, 320)]
    def reads(buf, imm, half):
        b = 128 + 48 * buf
        out = []
        for q in range(4):
            out.append("ds_read_b128 %s, v%d offset:%d" % (vr(b + 32 + 4 * q, 4), VCUR + 2 + half, 2048 * q))
        for t in range(8):
            for h in range(2):
                out.append("ds_read_b64_tr_b16 %s, v%d offset:%d" % (vr(b + 4 * t + 2 * h, 2), VCUR + TOFF[t][0], imm + TOFF[t][1] + 3840 * h))
        return out
    def mfmas(buf):
        b = 128 + 48 * buf
        out = []
        for t in range(8):
            for q in range(4):
                acc = vr((q * 8 + t) * 4, 4); w = vr(b + 4 * t, 4); x = vr(b + 32 + 4 * q, 4)
                out.append("%s %s, %s, %s, %s" % ((MF, acc, w, x, acc) if t < 5 else (MF, acc, x, w, acc)))
        return out
    mainloop(e, "QC", QST, reads, mfmas, 4, VB, VCUR)
    stamp(e, 2, 18, 0)
    e("s_nop 7")
    KB, QB, V0B, V1B, V7A, V7B = 128, 152, 184, 192, 200, 208
    L = ["v_mov_b32 v%d, 0x3f803f80" % (ONES + r) for r in range(4)]
    def cvt(d, s):
        L.append("v_cvt_pk_bf16_f32 v%d, v%d, v%d" % (d, s, s + 1))
        L.append("v_cvt_pk_bf16_f32 v%d, v%d, v%d" % (d + 1, s + 2, s + 3))
    def conv_kq(q):
        a = 32 * q; k = KB + 6 * q; qq = QB + 8 * q
        cvt(qq + 2, a + 16); cvt(k + 2, a + 16)
        cvt(k, a + 8); cvt(k + 4, a + 12); cvt(qq, a); cvt(qq + 6, a + 4)
        for i in range(2):
            L.append("v_permlane32_swap_b32 v%d, v%d" % (qq + 2 + i, k + 2 + i))
        for i in range(2):
            L.append("v_and_b32 v%d, v%d, v%d" % (qq + 4 + i, MG1, qq + 2 + i))
            L.append("v_and_b32 v%d, v%d, v%d" % (qq + 2 + i, MG0, qq + 2 + i))
    def conv_v(q):
        a = 32 * q
        cvt(V0B + 2 * q, a + 20); cvt(V1B + 2 * q, a + 24); cvt(V7A + 2 * q, a + 28)
        for i in range(2):
            L.append("v_and_b32 v%d, v%d, v%d" % (V7B + 2 * q + i, MV1, V7A + 2 * q + i))
            L.append("v_and_b32 v%d, v%d, v%d" % (V7A + 2 * q + i, MV0, V7A + 2 * q + i))
    def SC(q, h): return 32 * q + 12 * h
    def SP(q, h): return 32 * q + 12 * h + 4
    def PP(q, h): return 32 * q + 12 * h + 8
    def MM(q, h): return 32 * q + 28 + h
    def scores(q, h):
        qq = vr(QB + 8 * q + 4 * h, 4)
        L.append("%s %s, %s, %s, %s" % (MF, vr(SC(q, h), 4), vr(KB + 6 * q + 2 * h, 4), qq, vr(CF if q == 0 else CC, 4)))
        if q:
            L.append("%s %s, %s, %s, %s" % (MF, vr(SP(q, h), 4), vr(KB + 6 * (q - 1) + 2 * h, 4), qq, vr(CP, 4)))
    def lmax(q, h):
        s = SC(q, h)
        if q:
            for r in range(4):
                L.append("v_max_f32 v%d, v%d, v%d" % (s + r, s + r, SP(q, h) + r))
        L.append("v_max3_f32 v%d, v%d, v%d, v%d" % (MM(q, h), s, s + 1, s + 2))
        L.append("v_max_f32 v%d, v%d, v%d" % (MM(q, h), MM(q, h), s + 3))
    def gmax(q0):
        a, b, c_, d = MM(q0, 0), MM(q0, 1), MM(q0 + 1, 0), MM(q0 + 1, 1)
        L.extend(["v_permlane32_swap_b32 v%d, v%d" % (a, b), "v_permlane32_swap_b32 v%d, v%d" % (c_, d),
                  "v_max_f32 v%d, v%d, v%d" % (a, a, b), "v_max_f32 v%d, v%d, v%d" % (c_, c_, d),
                  "v_permlane16_swap_b32 v%d, v%d" % (a, c_), "v_max_f32 v%d, v%d, v%d" % (a, a, c_),
                  "v_mul_f32 v%d, s52, v%d" % (c_, a), "v_mul_f32 v%d, s52, v%d" % (a, a),
                  "v_permlane16_swap_b32 v%d, v%d" % (a, c_),
                  "v_mov_b32 v%d, v%d" % (b, a), "v_mov_b32 v%d, v%d" % (d, c_),
                  "v_permlane32_swap_b32 v%d, v%d" % (a, b), "v_permlane32_swap_b32 v%d, v%d" % (c_, d)])
    def probs(q, h):
        s = SC(q, h); p = PP(q, h); m = vr(32 * q + 28, 2)
        sel = "op_sel:[0,0,0] op_sel_hi:[1,1,0]" if h == 0 else "op_sel:[0,0,1] op_sel_hi:[1,1,1]"
        for k in range(2):
            L.append("v_pk_fma_f32 %s, %s, s[50:51], %s %s" % (vr(s + 2 * k, 2), vr(s + 2 * k, 2), m, sel))
        for r in range(4):
            L.append("v_exp_f32 v%d, v%d" % (s + r, s + r))
        if q == 0:
            cvt(p, s)
            L.append("v_mov_b64 %s, 0" % vr(p + 2, 2))
        else:
            cvt(p + 2, s)
            for k in range(2):
                L.append("v_and_b32 v%d, v%d, v%d" % (p + k, MP + k, p + 2 + k))
                L.append("v_xor_b32 v%d, v%d, v%d" % (p + 2 + k, p + k, p + 2 + k))
    def pv(q, h):
        p = vr(PP(q, h), 4); o = 2 * max(q - 1, 0)
        L.append("%s %s, %s, %s, 0" % (MF, vr(SP(q, h), 4), vr(ONES, 4), p))
        L.append("%s %s, %s, %s, 0" % (MF, vr(SC(q, h), 4), vr((V1B if h else V0B) + o, 4), p))
        o7 = vr(32 * q + 24, 4)
        L.append("%s %s, %s, %s, %s" % (MF, o7, vr((V7B if h else V7A) + o, 4), p, o7 if h else "0"))
    def fin(q):
        for h in range(2):
            L.append("v_rcp_f32 v%d, v%d" % (SP(q, h), SP(q, h)))
        for h in range(2):
            s = SC(q, h)
            for k in range(2):
                L.append("v_pk_mul_f32 %s, %s, %s op_sel:[0,0] op_sel_hi:[1,0]" % (vr(s + 2 * k, 2), vr(s + 2 * k, 2), vr(SP(q, h), 2)))
            cvt(PP(q, 0) + 2 * h, s)
        t = 32 * q + 30; o7 = 32 * q + 24
        L.append("v_cndmask_b32 v%d, v%d, v%d, s[54:55]" % (t, SP(q, 1), SP(q, 0)))
        for k in range(2):
            L.append("v_pk_mul_f32 %s, %s, %s op_sel:[0,0] op_sel_hi:[1,0]" % (vr(o7 + 2 * k, 2), vr(o7 + 2 * k, 2), vr(t, 2)))
        cvt(o7, o7)
        on, os_ = (ON0, OS0) if q == 0 else (ON1, OS1)
        if q >= 2:
            L.append("v_add_u32 v%d, s%d, v%d" % (216 + q, 54 + q, ON1)); on = 216 + q
            L.append("v_add_u32 v%d, s%d, v%d" % (220 + q, 54 + q, OS1)); os_ = 220 + q
        L.append("buffer_store_dwordx4 %s, v%d, s[%d:%d], 0 offen" % (vr(PP(q, 0), 4), on, SO, SO + 3))
        L.append("buffer_store_dwordx2 %s, v%d, s[%d:%d], 0 offen" % (vr(o7, 2), os_, SO, SO + 3))
    for q in range(4):
        conv_kq(q); conv_v(q)
        if q:
            scores(q - 1, 0); scores(q - 1, 1)
    scores(3, 0); scores(3, 1)
    for q in range(2):
        lmax(q, 0); lmax(q, 1)
    gmax(0)
    for q in range(2, 4):
        lmax(q, 0); lmax(q, 1)
    gmax(2)
    for q in range(4):
        probs(q, 0); probs(q, 1); pv(q, 0); pv(q, 1)
        if q: fin(q - 1)
    fin(3)
    for x in schedule(L, window=10000):
        e(x)
    stamp(e, 3, 18, 0)
    stamp_flush(e, 4, 18, 0, 20, 0)
    e("s_endpgm")


def gen_ffn(e):
    e("s_mul_i32 s23, s21, 12")
    e("s_add_u32 s23, s23, s22")
    e("s_sub_u32 s23, s23, 18")
    e("s_lshr_b32 s21, s23, 4")
    e("s_and_b32 s22, s23, 15")
    e("s_lshl_b32 s46, s21, 1")
    rot_calc(e, 46, 22)
    e("s_cmp_lt_u32 s20, 4")
    e("s_cbranch_scc1 FFN_C")
    e("s_sub_u32 s20, s20, 4")
    e("s_mul_i32 s40, s20, %d" % (4 * 1088))
    e("s_lshl_b32 s41, s20, 12")
    e("s_add_u32 s41, s41, %d" % (2 * FST))
    e("s_lshl_b32 s46, s21, 9")
    e("s_lshl_b32 s47, s20, 3")
    e("v_lshrrev_b32 v2, 5, v%d" % VL)
    e("v_and_b32 v3, 31, v%d" % VL)
    e("v_lshlrev_b32 v4, 1, v2")
    e("v_xor_b32 v3, v3, v4")
    e("v_add_u32 v2, s47, v2")
    for i in range(4):
        kperm(e, 6, 2, 7)
        e("v_mul_u32_u24 v6, 3072, v6")
        e("v_lshl_add_u32 v6, v3, 4, v6")
        e("v_add_u32 v%d, s46, v6" % (10 + i))
        e("s_sub_u32 s46, s46, 1088")
        e("v_add_u32 v2, 2, v2")
    x_lane(e)
    for j in range(2):
        e("s_lshl_b32 s46, s20, 1")
        e("s_add_u32 s46, s46, s21")
        if j: e("s_add_u32 s46, s46, 1")
        e("s_and_b32 s47, s46, 1")
        e("s_and_b32 s46, s46, 2")
        e("s_lshl_b32 s46, s46, 4")
        e("s_add_u32 s46, s46, s47")
        e("s_lshr_b32 s47, s20, 1")
        e("s_lshl_b32 s47, s47, 6")
        e("s_add_u32 s46, s46, s47")
        e("s_lshl_b32 s47, s22, 7")
        e("s_add_u32 s46, s46, s47")
        e("s_mul_i32 s46, s46, 1280")
        e("v_add_u32 v%d, s46, v2" % (14 + 2 * j))
        e("v_add_u32 v%d, s46, v3" % (15 + 2 * j))
    sp_setup(e, "f")
    e("s_waitcnt lgkmcnt(0)")
    srd(e, SW, 12, 0, 640 * 1536 * 2)
    srd(e, SXS, 4, 0, 2048 * 640 * 2)
    srd(e, SG, 16, 0, 1280)
    e("v_lshlrev_b32 v18, 4, v%d" % VL)
    def pre():
        e("s_mov_b32 m0, %d" % GT_OFF)
        e("s_nop 0")
        e("buffer_load_dwordx4 v18, s[%d:%d], 0 offen lds" % (SG, SG + 3))
        e("buffer_load_dwordx4 v18, s[%d:%d], 0 offen offset:1024 lds" % (SG, SG + 3))
    loader(e, "FL", FST, 1088, 32 * 3072, pre)

    e.label("FFN_C")
    touch(e, "f")
    VB, VCUR, RG, ZA = 236, 240, 246, 232
    e("s_lshr_b32 s40, s20, 1")
    e("s_and_b32 s41, s20, 1")
    e("v_mov_b32 v9, v%d" % VL)
    lane_pos0(e, 9, 2, 3, 4)
    e("v_lshrrev_b32 v5, 1, v4")
    e("v_mul_u32_u24 v5, 1088, v5")
    e("v_and_b32 v4, 1, v4")
    e("v_mul_u32_u24 v6, 544, v4")
    e("v_lshl_add_u32 v5, v3, 3, v5")
    e("s_lshl_b32 s46, s41, 8")
    e("v_add3_u32 v%d, v5, v6, s46" % VB)
    e("v_lshlrev_b32 v4, 6, v4")
    e("v_sub_u32 v%d, v%d, v4" % (VB + 1, VB))
    e("s_lshl_b32 s46, s40, 13")
    e("s_add_u32 s46, s46, %d" % (2 * FST))
    e("v_lshlrev_b32 v244, 4, v9")
    x_read_addr(e, VB + 2, 9, 2, "s46")
    e("v_lshlrev_b32 v5, 4, v2")
    e("v_add_u32 v%d, %d, v5" % (RG + 1, GT_OFF))
    e("s_lshl_b32 s48, s48, 7")
    e("v_add_u32 v%d, s48, v%d" % (RG, RG + 1))
    e("v_and_b32 v245, 15, v9")
    e("v_lshlrev_b32 v245, 2, v245")
    for i in range(64):
        e("v_mov_b64 v[%d:%d], 0" % (2 * i, 2 * i + 1))
    e("v_mov_b64 v[%d:%d], 0" % (ZA, ZA + 1))
    e("v_mov_b64 v[%d:%d], 0" % (ZA + 2, ZA + 3))
    e("s_waitcnt lgkmcnt(0)")
    srd(e, SO, 18, ACT_OFF, ACT_BYTES)
    srd(e, SG, 18, G_OFF, G_BYTES)
    for q in range(4):
        e("s_add_u32 s46, s21, %d" % q)
        e("s_and_b32 s46, s46, 3")
        e("s_lshl_b32 s47, s40, 2")
        e("s_add_u32 s46, s46, s47")
        e("s_lshl_b32 s47, s22, 3")
        e("s_add_u32 s46, s46, s47")
        if q == 0: e("s_lshl_b32 s54, s46, 6")
        e("s_mul_i32 s46, s46, 68")
        e("s_lshl_b32 s47, s21, 3")
        e("s_add_u32 s46, s46, s47")
        e("s_lshl_b32 s47, s41, 2")
        e("s_add_u32 s46, s46, s47")
        e("s_add_u32 s46, s46, 20")
        e("s_lshl_b32 s%d, s46, 10" % (50 + q))
    def reads(buf, imm, half):
        b = 128 + 52 * buf
        out = []
        for q in range(4):
            out.append("ds_read_b128 %s, v%d offset:%d" % (vr(b + 32 + 4 * q, 4), VCUR + 2 + half, 2048 * q))
        out.append("ds_read_b128 %s, v%d offset:%d" % (vr(b + 48, 4), RG, 64 * half))
        for t in range(8):
            for h in range(2):
                out.append("ds_read_b64_tr_b16 %s, v%d offset:%d" % (vr(b + 4 * t + 2 * h, 2), VCUR + (t & 1), imm + 32 * t + 4352 * h))
        return out
    def mfmas(buf):
        b = 128 + 52 * buf
        out = ["%s %s, %s, %s, %s" % (MF, vr(ZA, 4), vr(b + 48, 4), vr(b + 32, 4), vr(ZA, 4))]
        for t in range(8):
            for q in range(4):
                acc = vr((q * 8 + t) * 4, 4); w = vr(b + 4 * t, 4); x = vr(b + 32 + 4 * q, 4)
                out.append("%s %s, %s, %s, %s" % (MF, acc, w, x, acc))
        return out
    mainloop(e, "FC", FST, reads, mfmas, 4, VB, VCUR, ["v_add_u32 v%d, s48, v%d" % (RG, RG + 1)],
             ["s_add_u32 s48, s48, 128", "s_cmp_eq_u32 s48, 1280", "s_cselect_b32 s48, 0, s48"])
    stamp(e, 2, 18, 0)
    e("s_nop 7")
    L = []
    L.append("v_cvt_pk_bf16_f32 v%d, v%d, v%d" % (ZA, ZA, ZA))
    L.append("v_and_b32 v%d, 0xffff0000, v%d" % (ZA, ZA))
    L.append("v_mul_f32 v%d, 0xbfb8aa3b, v%d" % (ZA, ZA))
    L.append("v_exp_f32 v%d, v%d" % (ZA, ZA))
    L.append("v_add_f32 v%d, 1.0, v%d" % (ZA, ZA))
    L.append("v_rcp_f32 v%d, v%d" % (ZA, ZA))
    L.append("v_cvt_pk_bf16_f32 v%d, v%d, v%d" % (ZA, ZA, ZA))
    L.append("v_and_b32 v%d, 0xffff0000, v%d" % (ZA, ZA))
    L.append("buffer_store_dword v%d, v245, s[%d:%d], s54 offen" % (ZA, SG, SG + 3))
    for q in range(4):
        for p in range(4):
            a = (q * 8 + 2 * p) * 4
            for k in range(4):
                L.append("v_cvt_pk_bf16_f32 v%d, v%d, v%d" % (a + k, a + 2 * k, a + 2 * k + 1))
            for k in range(4):
                L.append("v_pk_max_i16 v%d, v%d, 0" % (a + k, a + k))
            L.append("buffer_store_dwordx4 %s, v244, s[%d:%d], s%d offen offset:%d" % (vr(a, 4), SO, SO + 3, 50 + q, 1024 * p))
    for x in schedule(L, window=10000):
        e(x)
    stamp(e, 3, 18, 0)
    stamp_flush(e, 4, 18, 0, 20, 0)
    e("s_endpgm")


def gen_repack(e):
    e("s_lshl_b32 s23, s21, 1")
    e("s_add_u32 s23, s23, s22")
    e("s_sub_u32 s23, s23, 30")
    e("s_lshr_b32 s40, s23, 1")
    e("s_lshl_b32 s41, s20, 3")
    e("s_add_u32 s40, s40, s41")
    e("s_and_b32 s41, s23, 1")
    e("s_lshl_b32 s41, s41, 2")
    e("s_sub_u32 s42, s40, 20")
    e("s_lshl_b32 s42, s42, 5")
    e("s_mov_b32 s43, 4")
    e("s_mov_b32 s44, 16")
    e("s_mul_i32 s46, s40, 160")
    e("s_sub_u32 s46, s46, %d" % (16 * 160 - 16))
    e("s_cmp_lt_u32 s40, 20")
    e("s_cselect_b32 s42, s46, s42")
    e("s_cselect_b32 s43, 20, s43")
    e("s_cselect_b32 s44, 80, s44")
    e("s_mul_i32 s46, s40, 40")
    e("s_cmp_lt_u32 s40, 16")
    e("s_cselect_b32 s42, s46, s42")
    e("s_cselect_b32 s43, 4, s43")
    e("s_cselect_b32 s44, 20, s44")
    e("s_mul_i32 s48, s20, 20480")
    e("v_lshlrev_b32 v10, 4, v%d" % VL)
    e("v_lshrrev_b32 v2, 4, v%d" % VL)
    e("v_bfe_u32 v3, v%d, 2, 2" % VL)
    e("v_lshl_add_u32 v2, v2, 3, v3")
    e("v_mul_u32_u24 v2, 640, v2")
    e("v_add_u32 v2, s48, v2")
    e("v_and_b32 v3, 3, v%d" % VL)
    e("v_lshl_add_u32 v11, v3, 4, v2")
    e("v_lshl_add_u32 v12, v3, 3, v2")
    e("s_waitcnt lgkmcnt(0)")
    e("s_cmp_lt_u32 s40, 20")
    e("s_cbranch_scc1 RP_WO")
    srd(e, SW, 14, 0, 1536 * 640 * 2)
    e("s_branch RP_GO")
    e.label("RP_WO")
    srd(e, SW, 8, 0, 640 * 640 * 2)
    e.label("RP_GO")
    srd(e, SO, 18, WP_OFF, WP_BYTES)
    e("s_mul_i32 s43, s43, 1280")
    e("s_mul_i32 s44, s44, 1280")
    e("s_sub_u32 s43, s43, s44")
    e("s_sub_u32 s43, s43, 3840")
    e("s_sub_u32 s44, s44, 3840")
    def load(tag, lanes_lo, lanes_hi):
        e("s_mul_i32 s46, s42, 1280")
        e("s_mul_i32 s47, s41, 160")
        e("s_add_u32 s46, s46, s47")
        e("s_mov_b32 m0, s48")
        e("s_mov_b32 exec_lo, 0x%x" % lanes_lo)
        e("s_mov_b32 exec_hi, 0x%x" % lanes_hi)
        e("s_mov_b32 s45, 0")
        e.label(tag)
        for h in range(2):
            for r in range(4):
                e("buffer_load_dwordx4 v10, s[%d:%d], s46 offen lds" % (SW, SW + 3))
                e("s_add_u32 m0, m0, 640")
                e("s_add_u32 s46, s46, %s" % ("1280" if r < 3 else ("s44" if h == 0 else "s43")))
        e("s_add_u32 s45, s45, 1")
        e("s_cmp_lt_u32 s45, 4")
        e("s_cbranch_scc1 %s" % tag)
        e("s_mov_b64 exec, -1")
    def trs(n):
        for j in range(n):
            for t in range(5):
                for h in range(2):
                    off = 160 * j + 2560 * h + ([0, 8, 64, 72, 128][t])
                    e("ds_read_b64_tr_b16 %s, v%d offset:%d" % (vr(20 + 20 * j + 4 * t + 2 * h, 2), 12 if t == 4 else 11, off))
    def sts(n):
        e("s_mul_i32 s46, s41, 68")
        e("s_add_u32 s46, s46, s40")
        e("s_mul_i32 s46, s46, 5120")
        for j in range(n):
            e("s_add_u32 s47, s46, 4096")
            for t in range(5):
                e("buffer_store_dwordx4 %s, v10, s[%d:%d], %s offen offset:%d" % (vr(20 + 20 * j + 4 * t, 4), SO, SO + 3, "s47" if t == 4 else "s46", 1024 * (t & 3)))
            e("s_add_u32 s46, s46, %d" % (68 * 5120))
    load("RP_L0", 0xffffffff, 0xff)
    e("s_waitcnt vmcnt(0)")
    trs(4)
    e("s_waitcnt lgkmcnt(0)")
    e("s_cmp_lt_u32 s20, 6")
    e("s_cbranch_scc1 RP_ST")
    e("s_mov_b32 s52, s40")
    e("s_mov_b32 s53, s41")
    e("s_sub_u32 s46, s20, 6")
    e("s_lshl_b32 s46, s46, 4")
    e("s_add_u32 s46, s46, s23")
    e("s_and_b32 s41, s46, 7")
    e("s_lshr_b32 s54, s46, 3")
    e("s_add_u32 s42, s54, 44")
    e("s_lshl_b32 s42, s42, 5")
    e("s_add_u32 s54, s54, 64")
    e("s_mov_b32 s55, s41")
    load("RP_L1", 0x3ff, 0)
    e("s_mov_b32 s41, s53")
    e.label("RP_ST")
    sts(4)
    e("s_cmp_lt_u32 s20, 6")
    e("s_cbranch_scc1 K1_END")
    e("s_mov_b32 s40, s54")
    e("s_mov_b32 s41, s55")
    e("s_waitcnt vmcnt(0)")
    trs(1)
    e("s_waitcnt lgkmcnt(0)")
    sts(1)
    e("s_endpgm")


def gen_k1(e):
    e.label("k1_kernel")
    e("s_cmp_ge_u32 s2, 256")
    e("s_cbranch_scc1 K1_END")
    e("s_load_dwordx8 s[4:11], s[0:1], 0")
    e("s_load_dwordx4 s[12:15], s[0:1], 32")
    e("s_load_dwordx2 s[16:17], s[0:1], 48")
    e("s_load_dwordx2 s[18:19], s[0:1], 72")
    stamp(e, 0, 18, 0)
    e("v_lshrrev_b32 v1, 6, v0")
    e("v_and_b32 v%d, 63, v0" % VL)
    e("v_readfirstlane_b32 s20, v1")
    e("s_and_b32 s21, s2, 7")
    e("s_lshr_b32 s22, s2, 3")
    e("s_cmp_ge_u32 s22, 30")
    e("s_cbranch_scc1 K1_RP")
    e("s_cmp_ge_u32 s22, 18")
    e("s_cbranch_scc1 K1_FFN")
    gen_qkv(e)
    e.label("K1_FFN")
    gen_ffn(e)
    e.label("K1_RP")
    gen_repack(e)
    e.label("K1_END")
    e("s_endpgm")
```

```python
import re
TRANS = ("v_exp_f32", "v_rcp_f32", "v_log_f32", "v_rsq_f32", "v_sqrt_f32")

def regs(op):
    op = op.strip()
    m = re.fullmatch(r"([va])(\d+)", op)
    if m: return [m.group(1) + m.group(2)]
    m = re.fullmatch(r"([va])\[(\d+):(\d+)\]", op)
    if m: return [m.group(1) + str(i) for i in range(int(m.group(2)), int(m.group(3)) + 1)]
    return []

class I:
    def __init__(self, t):
        self.t = t
        p = t.split(None, 1)
        self.op = p[0]
        rest = p[1] if len(p) > 1 else ""
        ops = [o.strip() for o in re.split(r",", rest)]
        ops = [o.split()[0] if o.split() else o for o in ops]
        ops = [re.sub(r"^[-|]+|\|$", "", o) for o in ops]
        R = [regs(o) for o in ops]
        op = self.op
        self.c = set()
        if op.startswith("v_mfma"):
            self.k = "mfma"; self.d = set(R[0]); self.u = set(R[1] + R[2] + R[3]); self.c = set(R[3]); self.ab = set(R[1] + R[2])
        elif op.startswith("v_permlane"):
            self.k = "perm"; self.d = set(R[0] + R[1]); self.u = set(R[0] + R[1])
        elif op.startswith("v_"):
            self.k = "trans" if op in TRANS else "valu"
            self.d = set(R[0]); self.u = set(sum(R[1:], []))
            if op.startswith("v_fmac") or op.startswith("v_pk_fmac") or op.startswith("v_dot2c"):
                self.u |= self.d
        elif op.startswith("ds_read") or (op.startswith("buffer_load")):
            self.k = "mem"; self.d = set(R[0]); self.u = set(sum(R[1:], []))
        elif op.startswith("ds_write") or op.startswith("buffer_store"):
            self.k = "mem"; self.d = set(); self.u = set(sum(R, []))
            self.wide = op.endswith("x4") or op.endswith("x3")
        else:
            raise Exception("sched: unsupported " + t)

def dist(a, b):
    raw = a.d & b.u; waw = a.d & b.d; war = a.u & b.d
    both_mem = a.k == "mem" and b.k == "mem"
    if not (raw or waw or war or both_mem):
        return None
    w = 0
    isv = lambda x: x.k in ("valu", "trans", "perm")
    if a.k == "mfma":
        if b.k == "mfma":
            if a.d & b.ab: w = max(w, 8)
            if a.d & b.c: w = max(w, 0 if a.d == b.c else 6)
            if waw and not (a.d == b.c): w = max(w, 8)
        else:
            if raw or waw: w = max(w, 8)
            if a.c & b.d: w = max(w, 3)
    elif isv(a):
        if raw and b.k == "mfma": w = max(w, 2)
        if raw and b.k == "perm": w = max(w, 2)
        if raw and a.k == "trans" and b.k != "trans": w = max(w, 1)
        if raw and a.k == "trans" and b.k == "trans": w = max(w, 1)
    elif a.k == "mem":
        if war and getattr(a, "wide", False): w = max(w, 2)
    return w

def schedule(lines, window=400, lat=None):
    ins = [I(l) for l in lines]
    n = len(ins)
    preds = [[] for _ in range(n)]
    for j in range(n):
        for i in range(max(0, j - window), j):
            d = dist(ins[i], ins[j])
            if d is not None:
                preds[j].append((i, d))
    pos = [None] * n
    out = []
    slot = 0
    remaining = list(range(n))
    while remaining:
        pick = None
        for j in remaining:
            ok = True
            for (i, d) in preds[j]:
                if pos[i] is None or slot - pos[i] - 1 < d:
                    ok = False; break
            if ok:
                pick = j; break
        if pick is None:
            out.append("s_nop 0"); slot += 1
            continue
        pos[pick] = slot; slot += 1
        out.append(ins[pick].t); remaining.remove(pick)
    res = []
    for l in out:
        if l == "s_nop 0" and res and res[-1].startswith("s_nop ") and int(res[-1].split()[1]) < 15:
            res[-1] = "s_nop %d" % (int(res[-1].split()[1]) + 1)
        else:
            res.append(l)
    return res
```

```python
import sys
NAME = "gated_mix__sliding_local_dilated__dense_activation_relu__prompt"

ACT_OFF = 0
RB_STRIDE = 68 * 1024
ACT_BYTES = 128 * RB_STRIDE
WP_OFF = 0x900000
WP_BYTES = 8 * 68 * 5120
G_OFF = 0xC00000
G_BYTES = 2048 * 4
STAMP_OFF = 0x1000000

OPT = dict(stamp=0)
for a in sys.argv[2:]:
    k, v = a.split("=")
    OPT[k] = int(v)


class Asm:
    def __init__(self):
        self.L = []
    def __call__(self, s):
        for l in s.strip("\n").split("\n"):
            self.L.append("    " + l.strip() if not l.strip().endswith(":") else l.strip())
    def label(self, s):
        self.L.append(s + ":")
    def text(self):
        return "\n".join(self.L) + "\n"


def vr(b, n=1):
    return "v%d" % b if n == 1 else "v[%d:%d]" % (b, b + n - 1)
def ar(b, n=1):
    return "a%d" % b if n == 1 else "a[%d:%d]" % (b, b + n - 1)
def sr(b, n=1):
    return "s%d" % b if n == 1 else "s[%d:%d]" % (b, b + n - 1)


def srd(e, d, base, off, size):
    if off:
        e("s_add_u32 s%d, s%d, 0x%x" % (d, base, off))
        e("s_addc_u32 s%d, s%d, 0" % (d + 1, base + 1))
    else:
        e("s_mov_b32 s%d, s%d" % (d, base))
        e("s_mov_b32 s%d, s%d" % (d + 1, base + 1))
    e("s_mov_b32 s%d, 0x%x" % (d + 2, size))
    e("s_mov_b32 s%d, 0x20000" % (d + 3))


def interleave(main, fill, start=0, per=1, every=1):
    out = []
    fi = 0
    for i, m in enumerate(main):
        out.append(m)
        if i >= start and (i - start) % every == 0:
            for _ in range(per):
                if fi < len(fill):
                    out.append(fill[fi]); fi += 1
    out.extend(fill[fi:])
    return out


def stamp(e, idx, sws, kern):
    if not OPT["stamp"]:
        return
    e("s_memtime s[%d:%d]" % (72 + 2 * idx, 73 + 2 * idx))
    if idx == 0:
        e("s_memrealtime s[80:81]")
    if idx == 3:
        e("s_memrealtime s[82:83]")


def stamp_flush(e, n, sws, kern, swave, vt):
    if not OPT["stamp"]:
        return
    n = 6
    e("s_waitcnt lgkmcnt(0)")
    srd(e, 92, sws, STAMP_OFF + kern * 0x40000, 0x40000)
    e("s_lshl_b32 s96, s2, 3")
    e("s_add_u32 s96, s96, s%d" % swave)
    e("s_lshl_b32 s96, s96, 6")
    e("v_mov_b32 v%d, 0" % (vt + 1))
    for i in range(n):
        e("v_mov_b32 v%d, s%d" % (vt, 72 + 2 * i))
        e("s_mov_b64 exec, 1")
        e("buffer_store_dword v%d, v%d, s[92:95], s96 offen offset:%d" % (vt, vt + 1, 4 * i))
        e("s_mov_b64 exec, -1")
        e("s_nop 1")


def gen_k2(e):
    DEPTH = OPT.get("k2depth", 6)
    e.label("k2_kernel")
    e("s_cmp_ge_u32 s2, 256")
    e("s_cbranch_scc1 K2_END")
    e("s_load_dwordx2 s[4:5], s[0:1], 72")
    e("s_load_dwordx2 s[6:7], s[0:1], 56")
    stamp(e, 0, 4, 1)
    VL, VA, VA8, VW, VG, VT = 90, 92, 96, 100, 101, 104
    e("v_lshrrev_b32 v91, 6, v0")
    e("v_and_b32 v%d, 63, v0" % VL)
    e("v_readfirstlane_b32 s8, v91")
    e("s_and_b32 s9, s2, 7")
    e("s_lshl_b32 s9, s9, 2")
    e("s_lshr_b32 s10, s2, 6")
    e("s_add_u32 s9, s9, s10")
    e("s_lshr_b32 s10, s2, 3")
    e("s_and_b32 s10, s10, 7")
    e("s_lshl_b32 s11, s8, 4")
    e("s_add_u32 s11, s11, 4")
    e("s_cmp_eq_u32 s8, 0")
    e("s_cselect_b32 s11, 0, s11")
    for i in range(1, 26):
        e("s_mov_b32 s%d, %d" % (32 + i, 4096 * i))
    e("v_lshlrev_b32 v%d, 4, v%d" % (VT, VL))
    e("v_lshlrev_b32 v%d, 3, v%d" % (VT + 1, VL))
    for q in range(4):
        e("s_add_u32 s12, s8, %d" % q)
        e("s_and_b32 s12, s12, 3")
        e("s_lshl_b32 s13, s9, 2")
        e("s_add_u32 s12, s12, s13")
        e("s_mul_i32 s12, s12, 68")
        e("s_add_u32 s12, s12, s11")
        e("s_lshl_b32 s12, s12, 10")
        e("v_add_u32 v%d, s12, v%d" % (VA + q, VT))
        e("v_add_u32 v%d, s12, v%d" % (VA8 + q, VT + 1))
    e("s_mul_i32 s12, s10, 68")
    e("s_add_u32 s12, s12, s11")
    e("s_mul_i32 s12, s12, 5120")
    e("v_add_u32 v%d, s12, v%d" % (VW, VT))
    e("s_waitcnt lgkmcnt(0)")
    srd(e, 16, 4, ACT_OFF, ACT_BYTES)
    srd(e, 20, 4, WP_OFF, WP_BYTES)
    srd(e, 24, 4, G_OFF, G_BYTES)
    srd(e, 28, 6, 0, 2048 * 640 * 2)
    e("s_lshl_b32 s12, s9, 2")
    e("s_add_u32 s12, s12, s8")
    e("s_lshl_b32 s13, s12, 6")
    e("v_and_b32 v%d, 15, v%d" % (VT + 2, VL))
    e("v_lshlrev_b32 v%d, 2, v%d" % (VT + 3, VT + 2))
    e("buffer_load_dword v%d, v%d, s[24:27], s13 offen" % (VG, VT + 3))
    e("s_cmp_eq_u32 s8, 0")
    e("s_cbranch_scc0 K2_H")

    def soff(kb):
        return ("0" if kb // 4 == 0 else "s%d" % (32 + kb // 4)), (kb % 4) * 1024

    def loads(s, special):
        slot = (s % DEPTH) * 36
        out = []
        def la(q):
            so, im = soff(s)
            if special:
                out.append("buffer_load_dwordx2 %s, v%d, s[16:19], %s offen offset:%d" % (ar(slot + 4 * q, 2), VA8 + q, so, im))
                out.append("buffer_load_dwordx2 %s, v%d, s[16:19], %s offen offset:%d" % (ar(slot + 4 * q + 2, 2), VA8 + q, so, im + 512))
            else:
                out.append("buffer_load_dwordx4 %s, v%d, s[16:19], %s offen offset:%d" % (ar(slot + 4 * q, 4), VA + q, so, im))
        def lw(t):
            so, im = soff(5 * s + t)
            out.append("buffer_load_dwordx4 %s, v%d, s[20:23], %s offen offset:%d" % (ar(slot + 16 + 4 * t, 4), VW, so, im))
        for q in range(4):
            la(q)
        for t in range(5):
            lw(t)
        return out

    def mainloop(nsteps, specials):
        cnt = [len(loads(s, s in specials)) for s in range(nsteps)]
        issued = 0
        nxt = 0
        while nxt < min(DEPTH, nsteps) and sum(cnt[:nxt + 1]) + 1 <= 63:
            for l in loads(nxt, nxt in specials):
                e(l)
            nxt += 1
        for s in range(nsteps):
            slot = (s % DEPTH) * 36
            e("s_waitcnt vmcnt(%d)" % sum(cnt[s + 1:nxt]))
            if s == 0:
                stamp(e, 1, 4, 1)
            m = []
            for t in range(5):
                for q in range(4):
                    acc = vr((q * 5 + t) * 4, 4)
                    m.append("v_mfma_f32_16x16x32_bf16 %s, %s, %s, %s" % (acc, ar(slot + 16 + 4 * t, 4), ar(slot + 4 * q, 4), "0" if s == 0 else acc))
            for x in m:
                e(x)
            while nxt < nsteps and nxt <= s + DEPTH and sum(cnt[s + 1:nxt + 1]) <= 63:
                for l in loads(nxt, nxt in specials):
                    e(l)
                nxt += 1

    mainloop(20, {16, 17, 18, 19})
    e("s_branch K2_RED")
    e.label("K2_H")
    mainloop(16, set())
    e.label("K2_RED")
    stamp(e, 2, 4, 1)
    VC = 108
    e("v_sub_f32 v%d, 1.0, v%d" % (VG + 1, VG))
    e("v_cvt_pk_bf16_f32 v%d, v%d, v%d" % (VG + 1, VG + 1, VG + 1))
    e("v_and_b32 v%d, 0xffff0000, v%d" % (VG + 1, VG + 1))
    for j in range(4):
        e("s_add_u32 s12, s8, %d" % j)
        e("s_and_b32 s12, s12, 3")
        e("s_cmp_eq_u32 s12, 0")
        e("s_cselect_b64 vcc, -1, 0")
        e("v_cndmask_b32 v%d, v%d, v%d, vcc" % (VC + j, VG + 1, VG))
    for q in range(1, 4):
        e("s_add_u32 s12, s8, %d" % q)
        e("s_and_b32 s12, s12, 3")
        e("s_lshl_b32 s12, s12, 2")
        e("s_add_u32 s12, s12, s8")
        e("s_mul_i32 s12, s12, 5120")
        e("v_add_u32 v%d, s12, v%d" % (VA + q, VT))
        e("s_add_u32 s12, s8, %d" % q)
        e("s_and_b32 s12, s12, 3")
        e("s_lshl_b32 s13, s8, 2")
        e("s_add_u32 s12, s12, s13")
        e("s_mul_i32 s12, s12, 5120")
        e("v_add_u32 v%d, s12, v%d" % (VA8 + q, VT))
    for q in range(1, 4):
        for t in range(5):
            e("ds_write_b128 v%d, %s offset:%d" % (VA + q, vr((q * 5 + t) * 4, 4), t * 1024))
    for i in range(20):
        e("v_mul_f32 v%d, v%d, v%d" % (i, VC, i))
    e("s_lshl_b32 s12, s9, 2")
    e("s_add_u32 s12, s12, s8")
    e("s_lshr_b32 s13, s12, 1")
    e("s_lshl_b32 s13, s13, 5")
    e("s_and_b32 s12, s12, 1")
    e("s_add_u32 s13, s13, s12")
    e("s_mul_i32 s13, s13, 1280")
    e("s_mul_i32 s12, s10, 160")
    e("s_add_u32 s13, s13, s12")
    e("v_mul_u32_u24 v%d, 2560, v%d" % (VT + 2, VT + 2))
    e("v_lshrrev_b32 v%d, 4, v%d" % (VT + 3, VL))
    e("v_lshl_add_u32 v%d, v%d, 4, v%d" % (VA, VT + 3, VT + 2))
    e("v_lshl_add_u32 v%d, v%d, 3, v%d" % (VA8, VT + 3, VT + 2))
    e("s_waitcnt lgkmcnt(0)")
    e("s_barrier")
    for q in range(1, 4):
        for t in range(5):
            e("ds_read_b128 %s, v%d offset:%d" % (vr((q * 5 + t) * 4, 4), VA8 + q, t * 1024))
    for q in range(1, 4):
        e("s_waitcnt lgkmcnt(%d)" % (5 * (3 - q)))
        for i in range(20):
            e("v_fmac_f32 v%d, v%d, v%d" % (i, VC + q, q * 20 + i))
    for i in range(10):
        e("v_cvt_pk_bf16_f32 v%d, v%d, v%d" % (20 + i, 2 * i, 2 * i + 1))
    e("buffer_store_dwordx4 v[20:23], v%d, s[28:31], s13 offen" % VA)
    e("buffer_store_dwordx4 v[24:27], v%d, s[28:31], s13 offen offset:64" % VA)
    e("buffer_store_dwordx2 v[28:29], v%d, s[28:31], s13 offen offset:128" % VA8)
    stamp(e, 3, 4, 1)
    stamp_flush(e, 4, 4, 1, 8, 110)
    e.label("K2_END")
    e("s_endpgm")


def kd(name, vgpr, accum, sgpr=102):
    return """.amdhsa_kernel %s
  .amdhsa_next_free_vgpr %d
  .amdhsa_next_free_sgpr %d
  .amdhsa_accum_offset %d
  .amdhsa_group_segment_fixed_size 0
  .amdhsa_kernarg_size 80
  .amdhsa_user_sgpr_count 2
  .amdhsa_user_sgpr_kernarg_segment_ptr 1
  .amdhsa_system_sgpr_workgroup_id_x 1
.end_amdhsa_kernel
""" % (name, vgpr, sgpr, accum)


def main():
    from gen_k1 import gen_k1, K1_LDS
    hdr = []
    if OPT.get("k1", 1):
        hdr.append("; @launch kernel=k1_kernel grid=(256,1,1) block=(512,1,1) lds=%d" % K1_LDS)
    if OPT.get("k2", 1):
        hdr.append("; @launch kernel=k2_kernel grid=(256,1,1) block=(256,1,1) lds=81920")
    out = "\n".join(hdr) + "\n"
    out += '.amdgcn_target "amdgcn-amd-amdhsa--gfx950"\n.text\n'
    e = Asm(); gen_k1(e)
    out += ".globl k1_kernel\n.p2align 8\n.type k1_kernel,@function\n" + e.text()
    e = Asm(); gen_k2(e)
    out += ".globl k2_kernel\n.p2align 8\n.type k2_kernel,@function\n" + e.text()
    out += '.section .rodata,"a"\n.p2align 6\n' + kd("k1_kernel", 256, 256)
    out += '.p2align 6\n' + kd("k2_kernel", 128 + 36 * OPT.get("k2depth", 6), 128)
    open(sys.argv[1], "w").write(out)


if __name__ == "__main__":
    main()
```

```python
import sys
NAME = "gated_mix__sliding_local_dilated__dense_activation_relu__prompt"

ACT_OFF = 0
RB_STRIDE = 68 * 1024
ACT_BYTES = 128 * RB_STRIDE
WP_OFF = 0x900000
WP_BYTES = 8 * 68 * 5120
G_OFF = 0xC00000
G_BYTES = 2048 * 4
STAMP_OFF = 0x1000000

OPT = dict(stamp=0)
for a in sys.argv[2:]:
    k, v = a.split("=")
    OPT[k] = int(v)


class Asm:
    def __init__(self):
        self.L = []
    def __call__(self, s):
        for l in s.strip("\n").split("\n"):
            self.L.append("    " + l.strip() if not l.strip().endswith(":") else l.strip())
    def label(self, s):
        self.L.append(s + ":")
    def text(self):
        return "\n".join(self.L) + "\n"


def vr(b, n=1):
    return "v%d" % b if n == 1 else "v[%d:%d]" % (b, b + n - 1)
def ar(b, n=1):
    return "a%d" % b if n == 1 else "a[%d:%d]" % (b, b + n - 1)
def sr(b, n=1):
    return "s%d" % b if n == 1 else "s[%d:%d]" % (b, b + n - 1)


def srd(e, d, base, off, size):
    if off:
        e("s_add_u32 s%d, s%d, 0x%x" % (d, base, off))
        e("s_addc_u32 s%d, s%d, 0" % (d + 1, base + 1))
    else:
        e("s_mov_b32 s%d, s%d" % (d, base))
        e("s_mov_b32 s%d, s%d" % (d + 1, base + 1))
    e("s_mov_b32 s%d, 0x%x" % (d + 2, size))
    e("s_mov_b32 s%d, 0x20000" % (d + 3))


def interleave(main, fill, start=0, per=1, every=1):
    out = []
    fi = 0
    for i, m in enumerate(main):
        out.append(m)
        if i >= start and (i - start) % every == 0:
            for _ in range(per):
                if fi < len(fill):
                    out.append(fill[fi]); fi += 1
    out.extend(fill[fi:])
    return out


def stamp(e, idx, sws, kern):
    if not OPT["stamp"]:
        return
    e("s_memtime s[%d:%d]" % (72 + 2 * idx, 73 + 2 * idx))
    if idx == 0:
        e("s_memrealtime s[80:81]")
    if idx == 3:
        e("s_memrealtime s[82:83]")


def stamp_flush(e, n, sws, kern, swave, vt):
    if not OPT["stamp"]:
        return
    n = 6
    e("s_waitcnt lgkmcnt(0)")
    srd(e, 92, sws, STAMP_OFF + kern * 0x40000, 0x40000)
    e("s_lshl_b32 s96, s2, 3")
    e("s_add_u32 s96, s96, s%d" % swave)
    e("s_lshl_b32 s96, s96, 6")
    e("v_mov_b32 v%d, 0" % (vt + 1))
    for i in range(n):
        e("v_mov_b32 v%d, s%d" % (vt, 72 + 2 * i))
        e("s_mov_b64 exec, 1")
        e("buffer_store_dword v%d, v%d, s[92:95], s96 offen offset:%d" % (vt, vt + 1, 4 * i))
        e("s_mov_b64 exec, -1")
        e("s_nop 1")
    if OPT["stamp"] == 2 and kern == 1:
        e("s_cmp_eq_u32 s96, %d" % (OPT.get("dbgwg", 0) * 512))
        e("s_cbranch_scc0 K2_END")
        e("s_load_dwordx2 s[90:91], s[0:1], 64")
        e("s_waitcnt vmcnt(0) lgkmcnt(0)")
        srd(e, 92, sws, STAMP_OFF, 0x80000)
        e("v_and_b32 v%d, 7, v90" % vt)
        e("v_lshlrev_b32 v%d, 2, v%d" % (vt, vt))
        e("v_and_b32 v%d, 8, v90" % (vt + 1))
        e("v_lshl_add_u32 v%d, v%d, 15, v%d" % (vt, vt + 1, vt))
        e("buffer_load_dword v%d, v%d, s[92:95], s96 offen sc0 sc1" % (vt + 1, vt))
        srd(e, 84, 90, 0, 64)
        e("v_lshlrev_b32 v%d, 2, v90" % vt)
        e("s_waitcnt vmcnt(0)")
        e("buffer_store_dword v%d, v%d, s[84:87], 0 offen" % (vt + 1, vt))


def gen_k2(e):
    DEPTH = OPT.get("k2depth", 6)
    e.label("k2_kernel")
    e("s_cmp_ge_u32 s2, 256")
    e("s_cbranch_scc1 K2_END")
    e("s_load_dwordx2 s[4:5], s[0:1], 72")
    e("s_load_dwordx2 s[6:7], s[0:1], 56")
    stamp(e, 0, 4, 1)
    VL, VA, VA8, VW, VG, VT = 90, 92, 96, 100, 101, 104
    e("v_lshrrev_b32 v91, 6, v0")
    e("v_and_b32 v%d, 63, v0" % VL)
    e("v_readfirstlane_b32 s8, v91")
    e("s_and_b32 s9, s2, 7")
    e("s_lshl_b32 s9, s9, 2")
    e("s_lshr_b32 s10, s2, 6")
    e("s_add_u32 s9, s9, s10")
    e("s_lshr_b32 s10, s2, 3")
    e("s_and_b32 s10, s10, 7")
    e("s_lshl_b32 s11, s8, 4")
    e("s_add_u32 s11, s11, 4")
    e("s_cmp_eq_u32 s8, 0")
    e("s_cselect_b32 s11, 0, s11")
    for i in range(1, 26):
        e("s_mov_b32 s%d, %d" % (32 + i, 4096 * i))
    e("v_lshlrev_b32 v%d, 4, v%d" % (VT, VL))
    e("v_lshlrev_b32 v%d, 3, v%d" % (VT + 1, VL))
    for q in range(4):
        e("s_add_u32 s12, s8, %d" % q)
        e("s_and_b32 s12, s12, 3")
        e("s_lshl_b32 s13, s9, 2")
        e("s_add_u32 s12, s12, s13")
        e("s_mul_i32 s12, s12, 68")
        e("s_add_u32 s12, s12, s11")
        e("s_lshl_b32 s12, s12, 10")
        e("v_add_u32 v%d, s12, v%d" % (VA + q, VT))
        e("v_add_u32 v%d, s12, v%d" % (VA8 + q, VT + 1))
    e("s_mul_i32 s12, s10, 68")
    e("s_add_u32 s12, s12, s11")
    e("s_mul_i32 s12, s12, 5120")
    e("v_add_u32 v%d, s12, v%d" % (VW, VT))
    e("s_waitcnt lgkmcnt(0)")
    srd(e, 16, 4, ACT_OFF, ACT_BYTES)
    srd(e, 20, 4, WP_OFF, WP_BYTES)
    srd(e, 24, 4, G_OFF, G_BYTES)
    srd(e, 28, 6, 0, 2048 * 640 * 2)
    e("s_lshl_b32 s12, s9, 2")
    e("s_add_u32 s12, s12, s8")
    e("s_lshl_b32 s13, s12, 6")
    e("v_and_b32 v%d, 15, v%d" % (VT + 2, VL))
    e("v_lshlrev_b32 v%d, 2, v%d" % (VT + 3, VT + 2))
    e("buffer_load_dword v%d, v%d, s[24:27], s13 offen" % (VG, VT + 3))
    e("s_cmp_eq_u32 s8, 0")
    e("s_cbranch_scc0 K2_H")

    def soff(kb):
        return ("0" if kb // 4 == 0 else "s%d" % (32 + kb // 4)), (kb % 4) * 1024

    def loads(s, special):
        slot = (s % DEPTH) * 36
        out = []
        def la(q):
            so, im = soff(s)
            if special:
                out.append("buffer_load_dwordx2 %s, v%d, s[16:19], %s offen offset:%d" % (ar(slot + 4 * q, 2), VA8 + q, so, im))
                out.append("buffer_load_dwordx2 %s, v%d, s[16:19], %s offen offset:%d" % (ar(slot + 4 * q + 2, 2), VA8 + q, so, im + 512))
            else:
                out.append("buffer_load_dwordx4 %s, v%d, s[16:19], %s offen offset:%d" % (ar(slot + 4 * q, 4), VA + q, so, im))
        def lw(t):
            so, im = soff(5 * s + t)
            out.append("buffer_load_dwordx4 %s, v%d, s[20:23], %s offen offset:%d" % (ar(slot + 16 + 4 * t, 4), VW, so, im))
        for q in range(4):
            la(q)
        for t in range(5):
            lw(t)
        return out

    def mainloop(nsteps, specials):
        cnt = [len(loads(s, s in specials)) for s in range(nsteps)]
        issued = 0
        nxt = 0
        while nxt < min(DEPTH, nsteps) and sum(cnt[:nxt + 1]) + 1 <= 63:
            for l in loads(nxt, nxt in specials):
                e(l)
            nxt += 1
        for s in range(nsteps):
            slot = (s % DEPTH) * 36
            e("s_waitcnt vmcnt(%d)" % sum(cnt[s + 1:nxt]))
            if s == 0:
                stamp(e, 1, 4, 1)
            m = []
            for t in range(5):
                for q in range(4):
                    acc = vr((q * 5 + t) * 4, 4)
                    m.append("v_mfma_f32_16x16x32_bf16 %s, %s, %s, %s" % (acc, ar(slot + 16 + 4 * t, 4), ar(slot + 4 * q, 4), "0" if s == 0 else acc))
            for x in m:
                e(x)
            while nxt < nsteps and nxt <= s + DEPTH and sum(cnt[s + 1:nxt + 1]) <= 63:
                for l in loads(nxt, nxt in specials):
                    e(l)
                nxt += 1

    mainloop(20, {16, 17, 18, 19})
    e("s_branch K2_RED")
    e.label("K2_H")
    mainloop(16, set())
    e.label("K2_RED")
    stamp(e, 2, 4, 1)
    VC = 108
    e("v_sub_f32 v%d, 1.0, v%d" % (VG + 1, VG))
    e("v_cvt_pk_bf16_f32 v%d, v%d, v%d" % (VG + 1, VG + 1, VG + 1))
    e("v_and_b32 v%d, 0xffff0000, v%d" % (VG + 1, VG + 1))
    for j in range(4):
        e("s_add_u32 s12, s8, %d" % j)
        e("s_and_b32 s12, s12, 3")
        e("s_cmp_eq_u32 s12, 0")
        e("s_cselect_b64 vcc, -1, 0")
        e("v_cndmask_b32 v%d, v%d, v%d, vcc" % (VC + j, VG + 1, VG))
    for q in range(1, 4):
        e("s_add_u32 s12, s8, %d" % q)
        e("s_and_b32 s12, s12, 3")
        e("s_lshl_b32 s12, s12, 2")
        e("s_add_u32 s12, s12, s8")
        e("s_mul_i32 s12, s12, 5120")
        e("v_add_u32 v%d, s12, v%d" % (VA + q, VT))
        e("s_add_u32 s12, s8, %d" % q)
        e("s_and_b32 s12, s12, 3")
        e("s_lshl_b32 s13, s8, 2")
        e("s_add_u32 s12, s12, s13")
        e("s_mul_i32 s12, s12, 5120")
        e("v_add_u32 v%d, s12, v%d" % (VA8 + q, VT))
    for q in range(1, 4):
        for t in range(5):
            e("ds_write_b128 v%d, %s offset:%d" % (VA + q, vr((q * 5 + t) * 4, 4), t * 1024))
    for i in range(20):
        e("v_mul_f32 v%d, v%d, v%d" % (i, VC, i))
    e("s_lshl_b32 s12, s9, 2")
    e("s_add_u32 s12, s12, s8")
    e("s_lshr_b32 s13, s12, 1")
    e("s_lshl_b32 s13, s13, 5")
    e("s_and_b32 s12, s12, 1")
    e("s_add_u32 s13, s13, s12")
    e("s_mul_i32 s13, s13, 1280")
    e("s_mul_i32 s12, s10, 160")
    e("s_add_u32 s13, s13, s12")
    e("v_mul_u32_u24 v%d, 2560, v%d" % (VT + 2, VT + 2))
    e("v_lshrrev_b32 v%d, 4, v%d" % (VT + 3, VL))
    e("v_lshl_add_u32 v%d, v%d, 4, v%d" % (VA, VT + 3, VT + 2))
    e("v_lshl_add_u32 v%d, v%d, 3, v%d" % (VA8, VT + 3, VT + 2))
    e("s_waitcnt lgkmcnt(0)")
    e("s_barrier")
    for q in range(1, 4):
        for t in range(5):
            e("ds_read_b128 %s, v%d offset:%d" % (vr((q * 5 + t) * 4, 4), VA8 + q, t * 1024))
    for q in range(1, 4):
        e("s_waitcnt lgkmcnt(%d)" % (5 * (3 - q)))
        for i in range(20):
            e("v_fmac_f32 v%d, v%d, v%d" % (i, VC + q, q * 20 + i))
    for i in range(10):
        e("v_cvt_pk_bf16_f32 v%d, v%d, v%d" % (20 + i, 2 * i, 2 * i + 1))
    e("buffer_store_dwordx4 v[20:23], v%d, s[28:31], s13 offen" % VA)
    e("buffer_store_dwordx4 v[24:27], v%d, s[28:31], s13 offen offset:64" % VA)
    e("buffer_store_dwordx2 v[28:29], v%d, s[28:31], s13 offen offset:128" % VA8)
    stamp(e, 3, 4, 1)
    stamp_flush(e, 4, 4, 1, 8, 110)
    e.label("K2_END")
    e("s_endpgm")


def kd(name, vgpr, accum, sgpr=102):
    return """.amdhsa_kernel %s
  .amdhsa_next_free_vgpr %d
  .amdhsa_next_free_sgpr %d
  .amdhsa_accum_offset %d
  .amdhsa_group_segment_fixed_size 0
  .amdhsa_kernarg_size 80
  .amdhsa_user_sgpr_count 2
  .amdhsa_user_sgpr_kernarg_segment_ptr 1
  .amdhsa_system_sgpr_workgroup_id_x 1
.end_amdhsa_kernel
""" % (name, vgpr, sgpr, accum)


def main():
    from gen_k1 import gen_k1, K1_LDS
    hdr = []
    if OPT.get("k1", 1):
        hdr.append("; @launch kernel=k1_kernel grid=(256,1,1) block=(512,1,1) lds=%d" % K1_LDS)
    if OPT.get("k2", 1):
        hdr.append("; @launch kernel=k2_kernel grid=(256,1,1) block=(256,1,1) lds=81920")
    out = "\n".join(hdr) + "\n"
    out += '.amdgcn_target "amdgcn-amd-amdhsa--gfx950"\n.text\n'
    e = Asm(); gen_k1(e)
    out += ".globl k1_kernel\n.p2align 8\n.type k1_kernel,@function\n" + e.text()
    e = Asm(); gen_k2(e)
    out += ".globl k2_kernel\n.p2align 8\n.type k2_kernel,@function\n" + e.text()
    out += '.section .rodata,"a"\n.p2align 6\n' + kd("k1_kernel", 256, 256)
    out += '.p2align 6\n' + kd("k2_kernel", 128 + 36 * OPT.get("k2depth", 6), 128)
    open(sys.argv[1], "w").write(out)


if __name__ == "__main__":
    main()
```

```python
import sys
NAME = "gated_mix__sliding_local_dilated__dense_activation_relu__prompt"

ACT_OFF = 0
RB_STRIDE = 68 * 1024
ACT_BYTES = 128 * RB_STRIDE
WP_OFF = 0x900000
WP_BYTES = 8 * 68 * 5120
G_OFF = 0xC00000
G_BYTES = 2048 * 4
STAMP_OFF = 0x1000000

OPT = dict(stamp=0)
for a in sys.argv[2:]:
    k, v = a.split("=")
    OPT[k] = int(v)


class Asm:
    def __init__(self):
        self.L = []
    def __call__(self, s):
        for l in s.strip("\n").split("\n"):
            self.L.append("    " + l.strip() if not l.strip().endswith(":") else l.strip())
    def label(self, s):
        self.L.append(s + ":")
    def text(self):
        return "\n".join(self.L) + "\n"


def vr(b, n=1):
    return "v%d" % b if n == 1 else "v[%d:%d]" % (b, b + n - 1)
def ar(b, n=1):
    return "a%d" % b if n == 1 else "a[%d:%d]" % (b, b + n - 1)
def sr(b, n=1):
    return "s%d" % b if n == 1 else "s[%d:%d]" % (b, b + n - 1)


def srd(e, d, base, off, size):
    if off:
        e("s_add_u32 s%d, s%d, 0x%x" % (d, base, off))
        e("s_addc_u32 s%d, s%d, 0" % (d + 1, base + 1))
    else:
        e("s_mov_b32 s%d, s%d" % (d, base))
        e("s_mov_b32 s%d, s%d" % (d + 1, base + 1))
    e("s_mov_b32 s%d, 0x%x" % (d + 2, size))
    e("s_mov_b32 s%d, 0x20000" % (d + 3))


def interleave(main, fill, start=0, per=1, every=1):
    out = []
    fi = 0
    for i, m in enumerate(main):
        out.append(m)
        if i >= start and (i - start) % every == 0:
            for _ in range(per):
                if fi < len(fill):
                    out.append(fill[fi]); fi += 1
    out.extend(fill[fi:])
    return out


def stamp(e, idx, sws, kern):
    if not OPT["stamp"]:
        return
    e("s_memtime s[%d:%d]" % (72 + 2 * idx, 73 + 2 * idx))
    if idx == 0:
        e("s_memrealtime s[80:81]")
    if idx == 3:
        e("s_memrealtime s[82:83]")


def stamp_flush(e, n, sws, kern, swave, vt):
    if not OPT["stamp"]:
        return
    n = 6
    e("s_waitcnt lgkmcnt(0)")
    srd(e, 92, sws, STAMP_OFF + kern * 0x40000, 0x40000)
    e("s_lshl_b32 s96, s2, 3")
    e("s_add_u32 s96, s96, s%d" % swave)
    e("s_lshl_b32 s96, s96, 6")
    e("v_mov_b32 v%d, 0" % (vt + 1))
    for i in range(n):
        e("v_mov_b32 v%d, s%d" % (vt, 72 + 2 * i))
        e("s_mov_b64 exec, 1")
        e("buffer_store_dword v%d, v%d, s[92:95], s96 offen offset:%d" % (vt, vt + 1, 4 * i))
        e("s_mov_b64 exec, -1")
        e("s_nop 1")
    if OPT["stamp"] == 2 and kern == 1:
        e("s_cmp_eq_u32 s96, %d" % (OPT.get("dbgwg", 0) * 512))
        e("s_cbranch_scc0 K2_END")
        e("s_load_dwordx2 s[90:91], s[0:1], 64")
        e("s_waitcnt vmcnt(0) lgkmcnt(0)")
        srd(e, 92, sws, STAMP_OFF, 0x80000)
        e("v_and_b32 v%d, 7, v90" % vt)
        e("v_lshlrev_b32 v%d, 2, v%d" % (vt, vt))
        e("v_and_b32 v%d, 8, v90" % (vt + 1))
        e("v_lshl_add_u32 v%d, v%d, 15, v%d" % (vt, vt + 1, vt))
        e("buffer_load_dword v%d, v%d, s[92:95], s96 offen sc0 sc1" % (vt + 1, vt))
        srd(e, 84, 90, 0, 64)
        e("v_lshlrev_b32 v%d, 2, v90" % vt)
        e("s_waitcnt vmcnt(0)")
        e("buffer_store_dword v%d, v%d, s[84:87], 0 offen" % (vt + 1, vt))


def gen_k2(e):
    DEPTH = OPT.get("k2depth", 6)
    e.label("k2_kernel")
    e("s_cmp_ge_u32 s2, 256")
    e("s_cbranch_scc1 K2_END")
    e("s_load_dwordx2 s[4:5], s[0:1], 72")
    e("s_load_dwordx2 s[6:7], s[0:1], 56")
    stamp(e, 0, 4, 1)
    VL, VA, VA8, VW, VG, VT = 90, 92, 96, 100, 101, 104
    e("v_lshrrev_b32 v91, 6, v0")
    e("v_and_b32 v%d, 63, v0" % VL)
    e("v_readfirstlane_b32 s8, v91")
    e("s_and_b32 s9, s2, 7")
    e("s_lshl_b32 s9, s9, 2")
    e("s_lshr_b32 s10, s2, 6")
    e("s_add_u32 s9, s9, s10")
    e("s_lshr_b32 s10, s2, 3")
    e("s_and_b32 s10, s10, 7")
    e("s_lshl_b32 s11, s8, 4")
    e("s_add_u32 s11, s11, 4")
    e("s_cmp_eq_u32 s8, 0")
    e("s_cselect_b32 s11, 0, s11")
    for i in range(1, 26):
        e("s_mov_b32 s%d, %d" % (32 + i, 4096 * i))
    e("v_lshlrev_b32 v%d, 4, v%d" % (VT, VL))
    e("v_lshlrev_b32 v%d, 3, v%d" % (VT + 1, VL))
    for q in range(4):
        e("s_add_u32 s12, s8, %d" % q)
        e("s_and_b32 s12, s12, 3")
        e("s_lshl_b32 s13, s9, 2")
        e("s_add_u32 s12, s12, s13")
        e("s_mul_i32 s12, s12, 68")
        e("s_add_u32 s12, s12, s11")
        e("s_lshl_b32 s12, s12, 10")
        e("v_add_u32 v%d, s12, v%d" % (VA + q, VT))
        e("v_add_u32 v%d, s12, v%d" % (VA8 + q, VT + 1))
    e("s_mul_i32 s12, s10, 68")
    e("s_add_u32 s12, s12, s11")
    e("s_mul_i32 s12, s12, 5120")
    e("v_add_u32 v%d, s12, v%d" % (VW, VT))
    e("s_waitcnt lgkmcnt(0)")
    srd(e, 16, 4, ACT_OFF, ACT_BYTES)
    srd(e, 20, 4, WP_OFF, WP_BYTES)
    srd(e, 24, 4, G_OFF, G_BYTES)
    srd(e, 28, 6, 0, 2048 * 640 * 2)
    e("s_lshl_b32 s12, s9, 2")
    e("s_add_u32 s12, s12, s8")
    e("s_lshl_b32 s13, s12, 6")
    e("v_and_b32 v%d, 15, v%d" % (VT + 2, VL))
    e("v_lshlrev_b32 v%d, 2, v%d" % (VT + 3, VT + 2))
    e("buffer_load_dword v%d, v%d, s[24:27], s13 offen" % (VG, VT + 3))
    e("s_cmp_eq_u32 s8, 0")
    e("s_cbranch_scc0 K2_H")

    def soff(kb):
        return ("0" if kb // 4 == 0 else "s%d" % (32 + kb // 4)), (kb % 4) * 1024

    def loads(s, special):
        slot = (s % DEPTH) * 36
        out = []
        def la(q):
            so, im = soff(s)
            if special:
                out.append("buffer_load_dwordx2 %s, v%d, s[16:19], %s offen offset:%d" % (ar(slot + 4 * q, 2), VA8 + q, so, im))
                out.append("buffer_load_dwordx2 %s, v%d, s[16:19], %s offen offset:%d" % (ar(slot + 4 * q + 2, 2), VA8 + q, so, im + 512))
            else:
                out.append("buffer_load_dwordx4 %s, v%d, s[16:19], %s offen offset:%d" % (ar(slot + 4 * q, 4), VA + q, so, im))
        def lw(t):
            so, im = soff(5 * s + t)
            out.append("buffer_load_dwordx4 %s, v%d, s[20:23], %s offen offset:%d" % (ar(slot + 16 + 4 * t, 4), VW, so, im))
        for q in range(4):
            la(q)
        for t in range(5):
            lw(t)
        return out

    def mainloop(nsteps, specials):
        cnt = [len(loads(s, s in specials)) for s in range(nsteps)]
        issued = 0
        nxt = 0
        while nxt < min(DEPTH, nsteps) and sum(cnt[:nxt + 1]) + 1 <= 63:
            for l in loads(nxt, nxt in specials):
                e(l)
            nxt += 1
        for s in range(nsteps):
            slot = (s % DEPTH) * 36
            e("s_waitcnt vmcnt(%d)" % sum(cnt[s + 1:nxt]))
            if s == 0:
                stamp(e, 1, 4, 1)
            m = []
            for t in range(5):
                for q in range(4):
                    acc = vr((q * 5 + t) * 4, 4)
                    m.append("v_mfma_f32_16x16x32_bf16 %s, %s, %s, %s" % (acc, ar(slot + 16 + 4 * t, 4), ar(slot + 4 * q, 4), "0" if s == 0 else acc))
            for x in m:
                e(x)
            while nxt < nsteps and nxt <= s + DEPTH and sum(cnt[s + 1:nxt + 1]) <= 63:
                for l in loads(nxt, nxt in specials):
                    e(l)
                nxt += 1

    mainloop(20, {16, 17, 18, 19})
    e("s_branch K2_RED")
    e.label("K2_H")
    mainloop(16, set())
    e.label("K2_RED")
    for i in range(OPT.get("fill", 0)):
        e("v_add3_u32 v120, v120, v120, v120")
    stamp(e, 2, 4, 1)
    VC = 108
    e("v_sub_f32 v%d, 1.0, v%d" % (VG + 1, VG))
    e("v_cvt_pk_bf16_f32 v%d, v%d, v%d" % (VG + 1, VG + 1, VG + 1))
    e("v_and_b32 v%d, 0xffff0000, v%d" % (VG + 1, VG + 1))
    for j in range(4):
        e("s_add_u32 s12, s8, %d" % j)
        e("s_and_b32 s12, s12, 3")
        e("s_cmp_eq_u32 s12, 0")
        e("s_cselect_b64 vcc, -1, 0")
        e("v_cndmask_b32 v%d, v%d, v%d, vcc" % (VC + j, VG + 1, VG))
    for q in range(1, 4):
        e("s_add_u32 s12, s8, %d" % q)
        e("s_and_b32 s12, s12, 3")
        e("s_lshl_b32 s12, s12, 2")
        e("s_add_u32 s12, s12, s8")
        e("s_mul_i32 s12, s12, 5120")
        e("v_add_u32 v%d, s12, v%d" % (VA + q, VT))
        e("s_add_u32 s12, s8, %d" % q)
        e("s_and_b32 s12, s12, 3")
        e("s_lshl_b32 s13, s8, 2")
        e("s_add_u32 s12, s12, s13")
        e("s_mul_i32 s12, s12, 5120")
        e("v_add_u32 v%d, s12, v%d" % (VA8 + q, VT))
    for q in range(1, 4):
        for t in range(5):
            e("ds_write_b128 v%d, %s offset:%d" % (VA + q, vr((q * 5 + t) * 4, 4), t * 1024))
    for i in range(20):
        e("v_mul_f32 v%d, v%d, v%d" % (i, VC, i))
    e("s_lshl_b32 s12, s9, 2")
    e("s_add_u32 s12, s12, s8")
    e("s_lshr_b32 s13, s12, 1")
    e("s_lshl_b32 s13, s13, 5")
    e("s_and_b32 s12, s12, 1")
    e("s_add_u32 s13, s13, s12")
    e("s_mul_i32 s13, s13, 1280")
    e("s_mul_i32 s12, s10, 160")
    e("s_add_u32 s13, s13, s12")
    e("v_mul_u32_u24 v%d, 2560, v%d" % (VT + 2, VT + 2))
    e("v_lshrrev_b32 v%d, 4, v%d" % (VT + 3, VL))
    e("v_lshl_add_u32 v%d, v%d, 4, v%d" % (VA, VT + 3, VT + 2))
    e("v_lshl_add_u32 v%d, v%d, 3, v%d" % (VA8, VT + 3, VT + 2))
    e("s_waitcnt lgkmcnt(0)")
    e("s_barrier")
    for q in range(1, 4):
        for t in range(5):
            e("ds_read_b128 %s, v%d offset:%d" % (vr((q * 5 + t) * 4, 4), VA8 + q, t * 1024))
    for q in range(1, 4):
        e("s_waitcnt lgkmcnt(%d)" % (5 * (3 - q)))
        for i in range(20):
            e("v_fmac_f32 v%d, v%d, v%d" % (i, VC + q, q * 20 + i))
    for i in range(10):
        e("v_cvt_pk_bf16_f32 v%d, v%d, v%d" % (20 + i, 2 * i, 2 * i + 1))
    e("buffer_store_dwordx4 v[20:23], v%d, s[28:31], s13 offen" % VA)
    e("buffer_store_dwordx4 v[24:27], v%d, s[28:31], s13 offen offset:64" % VA)
    e("buffer_store_dwordx2 v[28:29], v%d, s[28:31], s13 offen offset:128" % VA8)
    stamp(e, 3, 4, 1)
    stamp_flush(e, 4, 4, 1, 8, 110)
    e.label("K2_END")
    e("s_endpgm")


def kd(name, vgpr, accum, sgpr=102):
    return """.amdhsa_kernel %s
  .amdhsa_next_free_vgpr %d
  .amdhsa_next_free_sgpr %d
  .amdhsa_accum_offset %d
  .amdhsa_group_segment_fixed_size 0
  .amdhsa_kernarg_size 80
  .amdhsa_user_sgpr_count 2
  .amdhsa_user_sgpr_kernarg_segment_ptr 1
  .amdhsa_system_sgpr_workgroup_id_x 1
.end_amdhsa_kernel
""" % (name, vgpr, sgpr, accum)


def main():
    from gen_k1 import gen_k1, K1_LDS
    hdr = []
    if OPT.get("k1", 1):
        hdr.append("; @launch kernel=k1_kernel grid=(256,1,1) block=(512,1,1) lds=%d" % K1_LDS)
    if OPT.get("k2", 1):
        hdr.append("; @launch kernel=k2_kernel grid=(256,1,1) block=(256,1,1) lds=81920")
    if OPT.get("k3", 0):
        hdr.insert(0 if OPT["k3"] == 2 else len(hdr), "; @launch kernel=k3_kernel grid=(256,1,1) block=(256,1,1) lds=0")
    out = "\n".join(hdr) + "\n"
    out += '.amdgcn_target "amdgcn-amd-amdhsa--gfx950"\n.text\n'
    e = Asm(); gen_k1(e)
    out += ".globl k1_kernel\n.p2align 8\n.type k1_kernel,@function\n" + e.text()
    e = Asm(); gen_k2(e)
    out += ".globl k2_kernel\n.p2align 8\n.type k2_kernel,@function\n" + e.text()
    if OPT.get("k3", 0):
        out += ".globl k3_kernel\n.p2align 8\n.type k3_kernel,@function\nk3_kernel:\n    s_endpgm\n"
    out += '.section .rodata,"a"\n.p2align 6\n' + kd("k1_kernel", 256, 256)
    if OPT.get("k3", 0):
        out += '.p2align 6\n' + kd("k3_kernel", 32, 32)
    out += '.p2align 6\n' + kd("k2_kernel", 128 + 36 * OPT.get("k2depth", 6), 128)
    open(sys.argv[1], "w").write(out)


if __name__ == "__main__":
    main()
```

```python
import struct
from gen import *
from sched import schedule

K1_LDS = 163840
QST = 16384
FST = 17408
GT_OFF = 6 * FST + 3 * 16384
NEG = 0xEF800000
SC1 = ["", " sc1", " nt", " sc0 sc1"][OPT.get("sc1", 0)]
MF = "v_mfma_f32_16x16x32_bf16"

def f2u(x):
    return struct.unpack("<I", struct.pack("<f", x))[0]

SWAVE, SX, SY = 20, 21, 22
SW, SXS, SO, SG = 24, 28, 32, 36
VL = 254


def loader(e, tag, wst, wimm, wstep, pre=None):
    pair = 2 * wst + 16384
    xstep = 128
    if OPT.get("exp", 0) in (1, 2): wstep = 0
    if OPT.get("exp", 0) in (1, 3): xstep = 0
    e("s_mov_b32 s42, 0")
    e("s_mul_i32 s43, s48, %d" % (2 * wstep))
    e("s_mul_i32 s44, s48, %d" % xstep)
    e("s_mov_b32 s45, 0")
    if pre: pre()
    e.label(tag + "_LOOP")
    e("s_cmp_lt_u32 s45, 2")
    e("s_cbranch_scc1 %s_ISSUE" % tag)
    sp = OPT.get("sp", 0)
    e("s_waitcnt vmcnt(%d)" % (16 if sp else 12))
    e("s_barrier")
    e.label(tag + "_ISSUE")
    def W(so):
        for i in range(4):
            e("buffer_load_dwordx4 v%d, s[%d:%d], %s offen offset:%d lds" % (10 + i, SW, SW + 3, so, wimm * i))
    def X(j):
        for i in range(2):
            e("buffer_load_dwordx4 v%d, s[%d:%d], s44 offen offset:%d lds" % (14 + 2 * j + i, SXS, SXS + 3, 1024 * i))
    e("s_add_u32 m0, s42, s41")
    e("s_add_u32 s46, s43, %d" % wstep)
    X(0)
    e("s_add_u32 m0, m0, 2048")
    e("s_add_u32 s48, s48, 1")
    X(1)
    e("s_add_u32 m0, s42, s40")
    e("s_add_u32 s44, s44, %d" % xstep)
    W("s43")
    e("s_add_u32 m0, m0, %d" % wst)
    e("s_add_u32 s43, s43, %d" % (2 * wstep))
    W("s46")
    if sp:
        e("buffer_load_dword v30, v20, s[%d:%d], 0 offen" % (SW, SW + 3))
        e("buffer_load_dword v31, v21, s[%d:%d], 0 offen" % (SXS, SXS + 3))
        e("v_add_u32 v20, %d, v20" % (2 * wstep))
        e("v_add_u32 v21, 128, v21")
    e("s_cmp_eq_u32 s48, 10")
    e("s_cselect_b32 s43, 0, s43")
    e("s_cselect_b32 s44, 0, s44")
    e("s_add_u32 s42, s42, %d" % pair)
    e("s_cmp_eq_u32 s42, %d" % (3 * pair))
    e("s_cselect_b32 s42, 0, s42")
    e("s_add_u32 s45, s45, 1")
    e("s_cmp_lt_u32 s45, 10")
    e("s_cbranch_scc1 %s_LOOP" % tag)
    e("s_waitcnt vmcnt(%d)" % (16 if sp else 12))
    e("s_barrier")
    e("s_waitcnt vmcnt(0)")
    e("s_barrier")
    e("s_barrier")
    e("s_endpgm")


def touch(e, kind):
    pf = OPT.get("pf", 0)
    if not pf: return
    e("s_waitcnt lgkmcnt(0)")
    srd(e, SXS, 4, 0, 2048 * 640 * 2)
    if kind == "q":
        srd(e, SW, 6, 0, 640 * 1920 * 2)
        e("s_lshl_b32 s46, s22, 8")
        e("v_add_u32 v1, s46, v0")
        e("v_mul_u32_u24 v2, 10923, v1")
        e("v_lshrrev_b32 v2, 16, v2")
        e("v_mul_u32_u24 v3, 6, v2")
        e("v_sub_u32 v3, v1, v3")
        e("v_lshrrev_b32 v4, 1, v3")
        e("v_mul_u32_u24 v4, 1024, v4")
        e("v_lshl_add_u32 v4, v3, 7, v4")
        e("v_mul_u32_u24 v2, 3840, v2")
        e("s_mul_i32 s46, s21, 160")
        e("s_and_b32 s46, s46, 0xffffff80")
        e("v_add3_u32 v2, v2, v4, s46")
        e("buffer_load_dword v255, v2, s[%d:%d], 0 offen" % (SW, SW + 3))
    else:
        srd(e, SW, 12, 0, 640 * 1536 * 2)
        e("s_and_b32 s46, s22, 3")
        e("s_lshl_b32 s46, s46, 8")
        e("v_add_u32 v1, s46, v0")
        e("v_lshrrev_b32 v2, 2, v1")
        e("v_mul_u32_u24 v2, 3072, v2")
        e("v_and_b32 v3, 3, v1")
        e("v_lshl_add_u32 v2, v3, 7, v2")
        e("s_lshl_b32 s46, s21, 9")
        e("v_add_u32 v2, s46, v2")
        for n in range(3):
            e("buffer_load_dword v255, v2, s[%d:%d], 0 offen" % (SW, SW + 3))
            if n < 2: e("v_add_u32 v2, %d, v2" % (256 * 3072))
    if pf == 1:
        e("s_mul_i32 s46, s2, 86")
        e("v_add_u32 v1, s46, v0")
        e("v_lshlrev_b32 v1, 7, v1")
        e("v_cmp_gt_u32 vcc, 86, v0")
        e("s_nop 1")
        e("v_cndmask_b32 v1, -1, v1, vcc")
        e("buffer_load_dword v255, v1, s[%d:%d], 0 offen" % (SXS, SXS + 3))
    elif pf == 2:
        e("s_lshr_b32 s46, s2, 3")
        e("s_mul_i32 s46, s46, 768")
        e("v_add_u32 v1, s46, v0")
        e("v_lshlrev_b32 v1, 7, v1")
        for n in range(3):
            e("buffer_load_dword v255, v1, s[%d:%d], 0 offen" % (SXS, SXS + 3))
            if n < 2: e("v_add_u32 v1, %d, v1" % (256 * 128))


def sp_setup(e, kind):
    sp = OPT.get("sp", 0); d = OPT.get("spd", 2)
    if not sp: return
    if kind == "q":
        e("s_lshl_b32 s46, s22, 2")
        e("s_add_u32 s46, s46, s20")
        e("s_cmp_ge_u32 s46, 64")
        e("s_cselect_b32 s47, 0x40000000, 0")
        e("s_mul_i32 s46, s46, 3840")
        e("s_or_b32 s46, s46, s47")
        e("s_mul_i32 s47, s21, 160")
        e("s_and_b32 s47, s47, 0xffffff80")
        e("s_add_u32 s46, s46, s47")
        e("s_add_u32 s46, s46, %d" % (d * 64 * 3840))
        e("v_lshrrev_b32 v4, 1, v%d" % VL)
        e("v_lshlrev_b32 v4, 10, v4")
        e("v_lshl_add_u32 v4, v%d, 7, v4" % VL)
        e("v_add_u32 v20, s46, v4")
        nl = 6
    else:
        e("s_and_b32 s46, s22, 3")
        e("s_lshl_b32 s46, s46, 2")
        e("s_add_u32 s46, s46, s20")
        e("s_mul_i32 s46, s46, %d" % (4 * 3072))
        e("s_lshl_b32 s47, s21, 9")
        e("s_add_u32 s46, s46, s47")
        e("s_add_u32 s46, s46, %d" % (d * 64 * 3072))
        e("v_lshrrev_b32 v4, 2, v%d" % VL)
        e("v_mul_u32_u24 v4, 3072, v4")
        e("v_and_b32 v5, 3, v%d" % VL)
        e("v_lshl_add_u32 v4, v5, 7, v4")
        e("v_add_u32 v20, s46, v4")
        nl = 16
    e("v_cmp_gt_u32 vcc, %d, v%d" % (nl, VL))
    e("v_mov_b32 v5, 0x40000000")
    e("s_nop 0")
    e("v_cndmask_b32 v20, v5, v20, vcc")
    if sp == 1:
        e("s_lshl_b32 s46, s2, 2"); nl = 3
    else:
        e("s_lshr_b32 s46, s2, 3"); e("s_lshl_b32 s46, s46, 2"); nl = 18
    e("s_add_u32 s46, s46, s20")
    e("s_mul_i32 s46, s46, %d" % nl)
    e("v_add_u32 v4, s46, v%d" % VL)
    e("v_mul_u32_u24 v4, 1280, v4")
    e("v_add_u32 v4, %d, v4" % (128 * d))
    e("v_cmp_gt_u32 vcc, %d, v%d" % (nl if sp < 3 else 0, VL))
    e("s_nop 1")
    e("v_cndmask_b32 v21, v5, v4, vcc")


def rot_calc(e, a, b):
    if not OPT.get("rot", 1):
        e("s_mov_b32 s48, 0"); return
    R = OPT.get("R", 10); mult = OPT.get("mult", 1)
    e("s_add_u32 s48, s%d, s%d" % (a, b))
    e("s_mul_i32 s49, s48, %d" % ((1024 + R - 1) // R))
    e("s_lshr_b32 s49, s49, 10")
    e("s_mul_i32 s49, s49, %d" % R)
    e("s_sub_u32 s48, s48, s49")
    if mult != 1: e("s_mul_i32 s48, s48, %d" % mult)


def x_lane(e):
    e("v_lshrrev_b32 v2, 3, v%d" % VL)
    e("v_mul_u32_u24 v2, 2560, v2")
    e("v_lshrrev_b32 v3, 4, v%d" % VL)
    e("v_xor_b32 v3, v3, v%d" % VL)
    e("v_and_b32 v3, 7, v3")
    e("v_lshl_add_u32 v2, v3, 4, v2")
    e("v_xor_b32 v3, 64, v2")
    e("v_add_u32 v3, %d, v3" % (8 * 2560 - 1024))


def x_read_addr(e, vd, vl, vg, sbase):
    e("v_bfe_u32 v5, v%d, 1, 3" % vl)
    e("v_xor_b32 v5, v5, v%d" % vg)
    e("v_and_b32 v6, 15, v%d" % vl)
    e("v_lshlrev_b32 v6, 7, v6")
    e("v_lshl_add_u32 v6, v5, 4, v6")
    e("v_add_u32 v%d, %s, v6" % (vd, sbase))
    e("v_xor_b32 v%d, 64, v%d" % (vd + 1, vd))


def mainloop(e, tag, stage, reads, mfmas, nbase, vbase, vcur, extra_upd=None, extra_s=None):
    if OPT.get("nomfma", 0):
        mf0 = mfmas; mfmas = lambda b: mf0(b)[:1]
    for i in range(nbase):
        e("v_mov_b32 v%d, v%d" % (vcur + i, vbase + i))
    e("s_mov_b32 s42, 0")
    e("s_mov_b32 s45, 0")
    e("s_barrier")
    stamp(e, 1, 18, 0)
    for r in reads(0, 0, 0):
        e(r)
    e.label(tag + "_LOOP")
    e("s_add_u32 s42, s42, %d" % (2 * stage + 16384))
    e("s_cmp_eq_u32 s42, %d" % (3 * (2 * stage + 16384)))
    e("s_cselect_b32 s42, 0, s42")
    e("s_add_u32 s45, s45, 1")
    for x in extra_s or []:
        e(x)
    e("s_waitcnt lgkmcnt(0)")
    upd = ["v_add_u32 v%d, s42, v%d" % (vcur + i, vbase + i) for i in range(nbase)] + (extra_upd or [])
    for x in interleave(mfmas(0), reads(1, stage, 1) + upd):
        e(x)
    e("s_waitcnt lgkmcnt(0)")
    e("s_barrier")
    for x in interleave(mfmas(1), reads(0, 0, 0)):
        e(x)
    e("s_cmp_lt_u32 s45, 10")
    e("s_cbranch_scc1 %s_LOOP" % tag)
    e("s_waitcnt lgkmcnt(0)")


def lane_pos0(e, vl, vg, vc, vp):
    e("v_lshrrev_b32 v%d, 4, v%d" % (vg, vl))
    e("v_and_b32 v%d, 3, v%d" % (vc, vl))
    e("v_bfe_u32 v%d, v%d, 2, 3" % (vp, vl))
    e("v_lshrrev_b32 v1, 5, v%d" % vl)
    e("v_lshl_add_u32 v%d, v1, 4, v%d" % (vp, vp))


def kperm(e, vk, vp, t):
    e("v_and_b32 v%d, 0x33, v%d" % (vk, vp))
    e("v_and_b32 v%d, 4, v%d" % (t, vp))
    e("v_lshl_or_b32 v%d, v%d, 1, v%d" % (vk, t, vk))
    e("v_and_b32 v%d, 8, v%d" % (t, vp))
    e("v_lshrrev_b32 v%d, 1, v%d" % (t, t))
    e("v_or_b32 v%d, v%d, v%d" % (vk, t, vk))


def gen_qkv(e):
    if OPT.get("map", 0) == 1:
        e("s_and_b32 s46, s21, 1")
        e("s_and_b32 s21, s21, 6")
        e("s_cmp_ge_u32 s22, 9")
        e("s_addc_u32 s21, s21, 0")
        e("s_cmp_ge_u32 s22, 9")
        e("s_cselect_b32 s47, 9, 0")
        e("s_sub_u32 s22, s22, s47")
        e("s_mul_i32 s46, s46, 9")
        e("s_add_u32 s22, s22, s46")
    e("s_mul_i32 s23, s22, 114")
    e("s_sub_u32 s23, s23, 14")
    e("s_cmp_lt_u32 s20, 4")
    e("s_cbranch_scc1 QKV_C")
    e("s_sub_u32 s20, s20, 4")
    e("s_lshl_b32 s40, s20, 12")
    e("s_add_u32 s41, s40, %d" % (2 * QST))
    rot_calc(e, 21, 22)
    e("s_mul_i32 s46, s21, 160")
    e("s_lshl_b32 s47, s20, 8")
    for i in range(4):
        e("v_add_u32 v2, s47, v%d" % VL)
        if i: e("v_add_u32 v2, %d, v2" % (64 * i))
        e("v_mul_u32_u24 v3, 2185, v2")
        e("v_lshrrev_b32 v3, 16, v3")
        e("v_mul_u32_u24 v4, 30, v3")
        e("v_sub_u32 v4, v2, v4")
        e("v_mul_u32_u24 v5, 205, v4")
        e("v_lshrrev_b32 v5, 11, v5")
        kperm(e, 6, 3, 7)
        e("v_mul_u32_u24 v6, 3840, v6")
        e("v_mul_u32_u24 v5, 1120, v5")
        e("v_lshl_add_u32 v6, v4, 4, v6")
        e("v_add3_u32 v%d, v6, v5, s46" % (10 + i))
        e("s_sub_u32 s46, s46, 1024")
    e("s_cmp_eq_u32 s20, 3")
    e("s_cselect_b32 s47, 0x40000000, 0")
    e("v_or_b32 v13, s47, v13")
    e("s_lshr_b32 s46, s20, 1")
    e("s_add_u32 s46, s46, s23")
    e("s_and_b32 s47, s20, 1")
    e("s_lshl_b32 s47, s47, 6")
    e("s_add_u32 s46, s46, s47")
    e("s_mul_i32 s46, s46, 1280")
    x_lane(e)
    e("v_add_u32 v14, s46, v2")
    e("v_add_u32 v15, s46, v3")
    e("v_add_u32 v16, %d, v14" % (32 * 1280))
    e("v_add_u32 v17, %d, v15" % (32 * 1280))
    sp_setup(e, "q")
    e("s_waitcnt lgkmcnt(0)")
    srd(e, SW, 6, 0, 640 * 1920 * 2)
    srd(e, SXS, 4, 0, 2048 * 640 * 2)
    loader(e, "QL", QST, 1024, 32 * 3840)

    e.label("QKV_C")
    touch(e, "q")
    VB, VCUR = 224, 228
    CC, CP, CF, MP, MG0, MG1, MV0, MV1, ON0, ON1, OS0, OS1, ONES = 232, 236, 240, 244, 246, 247, 248, 249, 250, 251, 252, 253, 224
    e("s_lshr_b32 s40, s20, 1")
    e("s_and_b32 s41, s20, 1")
    e("v_mov_b32 v9, v%d" % VL)
    lane_pos0(e, 9, 2, 3, 4)
    e("s_mul_i32 s46, s41, 80")
    e("v_mul_u32_u24 v4, 480, v4")
    e("v_add_u32 v4, s46, v4")
    e("v_lshl_add_u32 v%d, v3, 3, v4" % VB)
    e("v_and_b32 v5, 1, v3")
    e("v_mul_u32_u24 v5, 40, v5")
    e("v_lshrrev_b32 v6, 1, v3")
    e("v_mul_u32_u24 v6, 160, v6")
    e("v_add3_u32 v4, v4, v5, v6")
    e("v_add_u32 v%d, 32, v4" % (VB + 1))
    e("s_lshl_b32 s46, s40, 13")
    e("s_add_u32 s46, s46, %d" % (2 * QST))
    x_read_addr(e, VB + 2, 9, 2, "s46")
    e("v_and_b32 v3, 15, v9")
    e("v_lshlrev_b32 v4, 2, v2")
    e("v_sub_u32 v5, v3, v4")
    e("s_cmp_eq_u32 s22, 0")
    e("s_cselect_b32 s46, 7, 0")
    e("v_subrev_u32 v4, s46, v4")
    e("s_mov_b32 s47, 0x%x" % NEG)
    for r in range(4):
        e("v_subrev_u32 v6, %d, v5" % r)
        e("v_ashrrev_i32 v%d, 31, v6" % (10 + r))
        e("v_sub_u32 v7, 7, v6")
        e("v_ashrrev_i32 v7, 31, v7")
        e("v_or_b32 v7, v7, v%d" % (10 + r))
        e("v_and_b32 v%d, s47, v7" % (CC + r))
        e("v_sub_u32 v8, -9, v6")
        e("v_ashrrev_i32 v8, 31, v8")
        e("v_and_b32 v%d, s47, v8" % (CP + r))
        e("v_add_u32 v8, %d, v4" % r)
        e("v_ashrrev_i32 v8, 31, v8")
        e("v_or_b32 v7, v7, v8")
        e("v_and_b32 v%d, s47, v7" % (CF + r))
    e("s_mov_b32 s47, 0xffff")
    e("v_bfi_b32 v%d, s47, v10, v11" % MP)
    e("v_bfi_b32 v%d, s47, v12, v13" % (MP + 1))
    e("v_add_u32 v6, -1, v2")
    e("v_ashrrev_i32 v%d, 31, v6" % MG0)
    e("v_xor_b32 v6, 1, v2")
    e("v_add_u32 v6, -1, v6")
    e("v_ashrrev_i32 v%d, 31, v6" % MG1)
    e("v_add_u32 v6, -4, v3")
    e("v_ashrrev_i32 v%d, 31, v6" % MV0)
    e("v_xor_b32 v6, 4, v3")
    e("v_add_u32 v6, -4, v6")
    e("v_ashrrev_i32 v%d, 31, v6" % MV1)
    e("s_mul_i32 s46, s22, 57")
    e("s_add_u32 s46, s46, 9")
    e("v_add_u32 v6, s46, v3")
    e("v_lshrrev_b32 v7, 4, v6")
    e("v_lshl_add_u32 v7, v7, 1, s40")
    e("s_mov_b32 s47, %d" % RB_STRIDE)
    e("v_mul_lo_u32 v7, v7, s47")
    e("v_and_b32 v6, 15, v6")
    e("s_lshl_b32 s46, s21, 1")
    e("s_add_u32 s46, s46, s41")
    e("s_lshl_b32 s46, s46, 10")
    e("v_lshl_add_u32 v8, v6, 4, v7")
    e("v_lshl_add_u32 v8, v2, 8, v8")
    e("v_add_u32 v%d, s46, v8" % ON1)
    e("s_lshr_b32 s46, s21, 1")
    e("s_add_u32 s46, s46, 16")
    e("s_lshl_b32 s46, s46, 3")
    e("s_and_b32 s47, s21, 1")
    e("s_lshl_b32 s47, s47, 2")
    e("s_add_u32 s46, s46, s47")
    e("s_lshl_b32 s47, s41, 1")
    e("s_add_u32 s46, s46, s47")
    e("s_lshl_b32 s46, s46, 7")
    e("v_lshl_add_u32 v8, v6, 3, v7")
    e("v_lshl_add_u32 v8, v2, 7, v8")
    e("v_add_u32 v8, s46, v8")
    e("v_lshlrev_b32 v6, 29, v2")
    e("v_and_b32 v6, 0x40000000, v6")
    e("v_or_b32 v%d, v6, v8" % OS1)
    e("v_add_u32 v6, -7, v3")
    e("v_ashrrev_i32 v6, 31, v6")
    e("v_and_b32 v6, 0x40000000, v6")
    e("s_mov_b32 s47, %d" % (2 * RB_STRIDE))
    e("v_subrev_u32 v7, s47, v%d" % ON1)
    e("v_and_b32 v7, 0x3fffffff, v7")
    e("v_or_b32 v%d, v6, v7" % ON0)
    e("v_subrev_u32 v7, s47, v8")
    e("v_and_b32 v7, 0x3fffffff, v7")
    e("v_or_b32 v7, v6, v7")
    e("v_and_b32 v6, 0x40000000, v%d" % OS1)
    e("v_or_b32 v%d, v6, v7" % OS0)
    for i in range(64):
        e("v_mov_b64 v[%d:%d], 0" % (2 * i, 2 * i + 1))
    e("s_waitcnt lgkmcnt(0)")
    srd(e, SO, 18, ACT_OFF, ACT_BYTES)
    c = f2u(20 ** -0.5 * 1.4426950408889634)
    e("s_mov_b32 s50, 0x%x" % c)
    e("s_mov_b32 s51, 0x%x" % c)
    e("s_mov_b32 s52, 0x%x" % (c ^ 0x80000000))
    e("s_mov_b64 s[54:55], 0xffff")
    e("s_mov_b32 s56, %d" % (2 * RB_STRIDE))
    e("s_mov_b32 s57, %d" % (4 * RB_STRIDE))
    if OPT.get("tw", 0) & 1:
        e("buffer_load_dword v255, v%d, s[%d:%d], 0 offen" % (ON0, SO, SO + 3))
        e("buffer_load_dword v255, v%d, s[%d:%d], 0 offen" % (ON1, SO, SO + 3))
        e("v_add_u32 v254, s56, v%d" % ON1)
        e("buffer_load_dword v255, v254, s[%d:%d], 0 offen" % (SO, SO + 3))
        e("v_add_u32 v254, s57, v%d" % ON1)
        e("buffer_load_dword v255, v254, s[%d:%d], 0 offen" % (SO, SO + 3))

    TOFF = [(0, 0), (0, 40), (0, 160), (0, 200), (1, 0), (0, 320), (0, 360), (1, 320)]
    def reads(buf, imm, half):
        b = 128 + 48 * buf
        out = []
        for q in range(4):
            out.append("ds_read_b128 %s, v%d offset:%d" % (vr(b + 32 + 4 * q, 4), VCUR + 2 + half, 2048 * q))
        for t in range(8):
            for h in range(2):
                out.append("ds_read_b64_tr_b16 %s, v%d offset:%d" % (vr(b + 4 * t + 2 * h, 2), VCUR + TOFF[t][0], imm + TOFF[t][1] + 3840 * h))
        return out
    def mfmas(buf):
        b = 128 + 48 * buf
        out = []
        for t in range(8):
            for q in range(4):
                acc = vr((q * 8 + t) * 4, 4); w = vr(b + 4 * t, 4); x = vr(b + 32 + 4 * q, 4)
                out.append("%s %s, %s, %s, %s" % ((MF, acc, w, x, acc) if t < 5 else (MF, acc, x, w, acc)))
        return out
    mainloop(e, "QC", QST, reads, mfmas, 4, VB, VCUR)
    stamp(e, 2, 18, 0)
    e("s_nop 7")
    KB, QB, V0B, V1B, V7A, V7B = 128, 152, 184, 192, 200, 208
    L = ["v_mov_b32 v%d, 0x3f803f80" % (ONES + r) for r in range(4)]
    def cvt(d, s):
        L.append("v_cvt_pk_bf16_f32 v%d, v%d, v%d" % (d, s, s + 1))
        L.append("v_cvt_pk_bf16_f32 v%d, v%d, v%d" % (d + 1, s + 2, s + 3))
    def conv_kq(q):
        a = 32 * q; k = KB + 6 * q; qq = QB + 8 * q
        cvt(qq + 2, a + 16); cvt(k + 2, a + 16)
        cvt(k, a + 8); cvt(k + 4, a + 12); cvt(qq, a); cvt(qq + 6, a + 4)
        for i in range(2):
            L.append("v_permlane32_swap_b32 v%d, v%d" % (qq + 2 + i, k + 2 + i))
        for i in range(2):
            L.append("v_and_b32 v%d, v%d, v%d" % (qq + 4 + i, MG1, qq + 2 + i))
            L.append("v_and_b32 v%d, v%d, v%d" % (qq + 2 + i, MG0, qq + 2 + i))
    def conv_v(q):
        a = 32 * q
        cvt(V0B + 2 * q, a + 20); cvt(V1B + 2 * q, a + 24); cvt(V7A + 2 * q, a + 28)
        for i in range(2):
            L.append("v_and_b32 v%d, v%d, v%d" % (V7B + 2 * q + i, MV1, V7A + 2 * q + i))
            L.append("v_and_b32 v%d, v%d, v%d" % (V7A + 2 * q + i, MV0, V7A + 2 * q + i))
    def SC(q, h): return 32 * q + 12 * h
    def SP(q, h): return 32 * q + 12 * h + 4
    def PP(q, h): return 32 * q + 12 * h + 8
    def MM(q, h): return 32 * q + 28 + 2 * h
    def scores(q, h):
        qq = vr(QB + 8 * q + 4 * h, 4)
        L.append("%s %s, %s, %s, %s" % (MF, vr(SC(q, h), 4), vr(KB + 6 * q + 2 * h, 4), qq, vr(CF if q == 0 else CC, 4)))
        if q:
            L.append("%s %s, %s, %s, %s" % (MF, vr(SP(q, h), 4), vr(KB + 6 * (q - 1) + 2 * h, 4), qq, vr(CP, 4)))
    def lmax(q, h):
        s = SC(q, h)
        if q:
            for r in range(4):
                L.append("v_max_f32 v%d, v%d, v%d" % (s + r, s + r, SP(q, h) + r))
        L.append("v_max3_f32 v%d, v%d, v%d, v%d" % (MM(q, h), s, s + 1, s + 2))
        L.append("v_max_f32 v%d, v%d, v%d" % (MM(q, h), MM(q, h), s + 3))
    def gmax(q0):
        a, b, c_, d = MM(q0, 0), MM(q0, 1), MM(q0 + 1, 0), MM(q0 + 1, 1)
        L.extend(["v_permlane32_swap_b32 v%d, v%d" % (a, b), "v_permlane32_swap_b32 v%d, v%d" % (c_, d),
                  "v_max_f32 v%d, v%d, v%d" % (a, a, b), "v_max_f32 v%d, v%d, v%d" % (c_, c_, d),
                  "v_permlane16_swap_b32 v%d, v%d" % (a, c_), "v_max_f32 v%d, v%d, v%d" % (a, a, c_),
                  "v_mul_f32 v%d, s52, v%d" % (c_, a), "v_mul_f32 v%d, s52, v%d" % (a, a),
                  "v_permlane16_swap_b32 v%d, v%d" % (a, c_),
                  "v_mov_b32 v%d, v%d" % (b, a), "v_mov_b32 v%d, v%d" % (d, c_),
                  "v_permlane32_swap_b32 v%d, v%d" % (a, b), "v_permlane32_swap_b32 v%d, v%d" % (c_, d)])
    def probs(q, h):
        s = SC(q, h); p = PP(q, h); m = vr(MM(q, h), 2)
        sel = "op_sel:[0,0,0] op_sel_hi:[1,1,0]"
        for k in range(2):
            L.append("v_pk_fma_f32 %s, %s, s[50:51], %s %s" % (vr(s + 2 * k, 2), vr(s + 2 * k, 2), m, sel))
        for r in range(4):
            L.append("v_exp_f32 v%d, v%d" % (s + r, s + r))
        if q == 0:
            cvt(p, s)
            L.append("v_mov_b64 %s, 0" % vr(p + 2, 2))
        else:
            cvt(p + 2, s)
            for k in range(2):
                L.append("v_and_b32 v%d, v%d, v%d" % (p + k, MP + k, p + 2 + k))
                L.append("v_xor_b32 v%d, v%d, v%d" % (p + 2 + k, p + k, p + 2 + k))
    def pv(q, h):
        p = vr(PP(q, h), 4); o = 2 * max(q - 1, 0)
        L.append("%s %s, %s, %s, 0" % (MF, vr(SP(q, h), 4), vr(ONES, 4), p))
        L.append("%s %s, %s, %s, 0" % (MF, vr(SC(q, h), 4), vr((V1B if h else V0B) + o, 4), p))
        o7 = vr(32 * q + 24, 4)
        L.append("%s %s, %s, %s, %s" % (MF, o7, vr((V7B if h else V7A) + o, 4), p, o7 if h else "0"))
    def fin(q):
        for h in range(2):
            L.append("v_rcp_f32 v%d, v%d" % (SP(q, h), SP(q, h)))
        for h in range(2):
            s = SC(q, h)
            for k in range(2):
                L.append("v_pk_mul_f32 %s, %s, %s op_sel:[0,0] op_sel_hi:[1,0]" % (vr(s + 2 * k, 2), vr(s + 2 * k, 2), vr(SP(q, h), 2)))
            cvt(PP(q, 0) + 2 * h, s)
        t = 32 * q + 30; o7 = 32 * q + 24
        L.append("v_cndmask_b32 v%d, v%d, v%d, s[54:55]" % (t, SP(q, 1), SP(q, 0)))
        for k in range(2):
            L.append("v_pk_mul_f32 %s, %s, %s op_sel:[0,0] op_sel_hi:[1,0]" % (vr(o7 + 2 * k, 2), vr(o7 + 2 * k, 2), vr(t, 2)))
        cvt(o7, o7)
        on, os_ = (ON0, OS0) if q == 0 else (ON1, OS1)
        if q >= 2:
            L.append("v_add_u32 v%d, s%d, v%d" % (216 + q, 54 + q, ON1)); on = 216 + q
            L.append("v_add_u32 v%d, s%d, v%d" % (220 + q, 54 + q, OS1)); os_ = 220 + q
        L.append("buffer_store_dwordx4 %s, v%d, s[%d:%d], 0 offen%s" % (vr(PP(q, 0), 4), on, SO, SO + 3, SC1))
        L.append("buffer_store_dwordx2 %s, v%d, s[%d:%d], 0 offen%s" % (vr(o7, 2), os_, SO, SO + 3, SC1))
    for q in range(4):
        conv_kq(q); conv_v(q)
        if q:
            scores(q - 1, 0); scores(q - 1, 1)
    scores(3, 0); scores(3, 1)
    for q in range(2):
        lmax(q, 0); lmax(q, 1)
    gmax(0)
    for q in range(2, 4):
        lmax(q, 0); lmax(q, 1)
    gmax(2)
    for q in range(4):
        probs(q, 0); probs(q, 1); pv(q, 0); pv(q, 1)
        if q: fin(q - 1)
    fin(3)
    for x in schedule(L, window=10000):
        e(x)
    stamp(e, 3, 18, 0)
    stamp_flush(e, 4, 18, 0, 20, 0)
    e("s_endpgm")


def gen_ffn(e):
    e("s_mul_i32 s23, s21, 12")
    e("s_add_u32 s23, s23, s22")
    e("s_sub_u32 s23, s23, 18")
    if OPT.get("map", 0) == 1:
        e("s_and_b32 s46, s21, 1")
        e("s_lshr_b32 s21, s21, 1")
        e("s_mul_i32 s23, s21, 12")
        e("s_add_u32 s23, s23, s22")
        e("s_sub_u32 s23, s23, 18")
        e("s_lshr_b32 s21, s23, 3")
        e("s_and_b32 s22, s23, 7")
        e("s_lshl_b32 s46, s46, 3")
        e("s_add_u32 s22, s22, s46")
    else:
        e("s_lshr_b32 s21, s23, 4")
        e("s_and_b32 s22, s23, 15")
    rot_calc(e, 21, 22)
    e("s_cmp_lt_u32 s20, 4")
    e("s_cbranch_scc1 FFN_C")
    e("s_sub_u32 s20, s20, 4")
    e("s_mul_i32 s40, s20, %d" % (4 * 1088))
    e("s_lshl_b32 s41, s20, 12")
    e("s_add_u32 s41, s41, %d" % (2 * FST))
    e("s_lshl_b32 s46, s21, 9")
    e("s_lshl_b32 s47, s20, 3")
    e("v_lshrrev_b32 v2, 5, v%d" % VL)
    e("v_and_b32 v3, 31, v%d" % VL)
    e("v_lshlrev_b32 v4, 1, v2")
    e("v_xor_b32 v3, v3, v4")
    e("v_add_u32 v2, s47, v2")
    for i in range(4):
        kperm(e, 6, 2, 7)
        e("v_mul_u32_u24 v6, 3072, v6")
        e("v_lshl_add_u32 v6, v3, 4, v6")
        e("v_add_u32 v%d, s46, v6" % (10 + i))
        e("s_sub_u32 s46, s46, 1088")
        e("v_add_u32 v2, 2, v2")
    x_lane(e)
    for j in range(2):
        e("s_lshl_b32 s46, s20, 1")
        e("s_add_u32 s46, s46, s21")
        if j: e("s_add_u32 s46, s46, 1")
        e("s_and_b32 s47, s46, 1")
        e("s_and_b32 s46, s46, 2")
        e("s_lshl_b32 s46, s46, 4")
        e("s_add_u32 s46, s46, s47")
        e("s_lshr_b32 s47, s20, 1")
        e("s_lshl_b32 s47, s47, 6")
        e("s_add_u32 s46, s46, s47")
        e("s_lshl_b32 s47, s22, 7")
        e("s_add_u32 s46, s46, s47")
        e("s_mul_i32 s46, s46, 1280")
        e("v_add_u32 v%d, s46, v2" % (14 + 2 * j))
        e("v_add_u32 v%d, s46, v3" % (15 + 2 * j))
    sp_setup(e, "f")
    e("s_waitcnt lgkmcnt(0)")
    srd(e, SW, 12, 0, 640 * 1536 * 2)
    srd(e, SXS, 4, 0, 2048 * 640 * 2)
    srd(e, SG, 16, 0, 1280)
    e("v_lshlrev_b32 v18, 4, v%d" % VL)
    def pre():
        e("s_mov_b32 m0, %d" % GT_OFF)
        e("s_nop 0")
        e("buffer_load_dwordx4 v18, s[%d:%d], 0 offen lds" % (SG, SG + 3))
        e("buffer_load_dwordx4 v18, s[%d:%d], 0 offen offset:1024 lds" % (SG, SG + 3))
    loader(e, "FL", FST, 1088, 32 * 3072, pre)

    e.label("FFN_C")
    touch(e, "f")
    VB, VCUR, RG, ZA = 236, 240, 246, 232
    e("s_lshr_b32 s40, s20, 1")
    e("s_and_b32 s41, s20, 1")
    e("v_mov_b32 v9, v%d" % VL)
    lane_pos0(e, 9, 2, 3, 4)
    e("v_lshrrev_b32 v5, 1, v4")
    e("v_mul_u32_u24 v5, 1088, v5")
    e("v_and_b32 v4, 1, v4")
    e("v_mul_u32_u24 v6, 544, v4")
    e("v_lshl_add_u32 v5, v3, 3, v5")
    e("s_lshl_b32 s46, s41, 8")
    e("v_add3_u32 v%d, v5, v6, s46" % VB)
    e("v_lshlrev_b32 v4, 6, v4")
    e("v_sub_u32 v%d, v%d, v4" % (VB + 1, VB))
    e("s_lshl_b32 s46, s40, 13")
    e("s_add_u32 s46, s46, %d" % (2 * FST))
    e("v_lshlrev_b32 v244, 4, v9")
    x_read_addr(e, VB + 2, 9, 2, "s46")
    e("v_lshlrev_b32 v5, 4, v2")
    e("v_add_u32 v%d, %d, v5" % (RG + 1, GT_OFF))
    e("s_lshl_b32 s48, s48, 7")
    e("v_add_u32 v%d, s48, v%d" % (RG, RG + 1))
    e("v_and_b32 v245, 15, v9")
    e("v_lshlrev_b32 v245, 2, v245")
    for i in range(64):
        e("v_mov_b64 v[%d:%d], 0" % (2 * i, 2 * i + 1))
    e("v_mov_b64 v[%d:%d], 0" % (ZA, ZA + 1))
    e("v_mov_b64 v[%d:%d], 0" % (ZA + 2, ZA + 3))
    e("s_waitcnt lgkmcnt(0)")
    srd(e, SO, 18, ACT_OFF, ACT_BYTES)
    srd(e, SG, 18, G_OFF, G_BYTES)
    for q in range(4):
        e("s_add_u32 s46, s21, %d" % q)
        e("s_and_b32 s46, s46, 3")
        e("s_lshl_b32 s47, s40, 2")
        e("s_add_u32 s46, s46, s47")
        e("s_lshl_b32 s47, s22, 3")
        e("s_add_u32 s46, s46, s47")
        if q == 0: e("s_lshl_b32 s54, s46, 6")
        e("s_mul_i32 s46, s46, 68")
        e("s_lshl_b32 s47, s21, 3")
        e("s_add_u32 s46, s46, s47")
        e("s_lshl_b32 s47, s41, 2")
        e("s_add_u32 s46, s46, s47")
        e("s_add_u32 s46, s46, 20")
        e("s_lshl_b32 s%d, s46, 10" % (50 + q))
        if OPT.get("tw", 0) & 1:
            e("buffer_load_dword v255, v245, s[%d:%d], s%d offen" % (SO, SO + 3, 50 + q))
            if q == 0: e("buffer_load_dword v255, v245, s[%d:%d], s54 offen" % (SG, SG + 3))
    def reads(buf, imm, half):
        b = 128 + 52 * buf
        out = []
        for q in range(4):
            out.append("ds_read_b128 %s, v%d offset:%d" % (vr(b + 32 + 4 * q, 4), VCUR + 2 + half, 2048 * q))
        out.append("ds_read_b128 %s, v%d offset:%d" % (vr(b + 48, 4), RG, 64 * half))
        for t in range(8):
            for h in range(2):
                out.append("ds_read_b64_tr_b16 %s, v%d offset:%d" % (vr(b + 4 * t + 2 * h, 2), VCUR + (t & 1), imm + 32 * t + 4352 * h))
        return out
    def mfmas(buf):
        b = 128 + 52 * buf
        out = ["%s %s, %s, %s, %s" % (MF, vr(ZA, 4), vr(b + 48, 4), vr(b + 32, 4), vr(ZA, 4))]
        for t in range(8):
            for q in range(4):
                acc = vr((q * 8 + t) * 4, 4); w = vr(b + 4 * t, 4); x = vr(b + 32 + 4 * q, 4)
                out.append("%s %s, %s, %s, %s" % (MF, acc, w, x, acc))
        return out
    mainloop(e, "FC", FST, reads, mfmas, 4, VB, VCUR, ["v_add_u32 v%d, s48, v%d" % (RG, RG + 1)],
             ["s_add_u32 s48, s48, 128", "s_cmp_eq_u32 s48, 1280", "s_cselect_b32 s48, 0, s48"])
    stamp(e, 2, 18, 0)
    e("s_nop 7")
    L = []
    L.append("v_cvt_pk_bf16_f32 v%d, v%d, v%d" % (ZA, ZA, ZA))
    L.append("v_and_b32 v%d, 0xffff0000, v%d" % (ZA, ZA))
    L.append("v_mul_f32 v%d, 0xbfb8aa3b, v%d" % (ZA, ZA))
    L.append("v_exp_f32 v%d, v%d" % (ZA, ZA))
    L.append("v_add_f32 v%d, 1.0, v%d" % (ZA, ZA))
    L.append("v_rcp_f32 v%d, v%d" % (ZA, ZA))
    L.append("v_cvt_pk_bf16_f32 v%d, v%d, v%d" % (ZA, ZA, ZA))
    L.append("v_and_b32 v%d, 0xffff0000, v%d" % (ZA, ZA))
    L.append("buffer_store_dword v%d, v245, s[%d:%d], s54 offen%s" % (ZA, SG, SG + 3, SC1))
    for q in range(4):
        for p in range(4):
            a = (q * 8 + 2 * p) * 4
            for k in range(4):
                L.append("v_cvt_pk_bf16_f32 v%d, v%d, v%d" % (a + k, a + 2 * k, a + 2 * k + 1))
            for k in range(4):
                L.append("v_pk_max_i16 v%d, v%d, 0" % (a + k, a + k))
            L.append("buffer_store_dwordx4 %s, v244, s[%d:%d], s%d offen offset:%d%s" % (vr(a, 4), SO, SO + 3, 50 + q, 1024 * p, SC1))
    for x in schedule(L, window=10000):
        e(x)
    stamp(e, 3, 18, 0)
    stamp_flush(e, 4, 18, 0, 20, 0)
    e("s_endpgm")


def gen_repack(e):
    e("s_lshl_b32 s23, s21, 1")
    e("s_add_u32 s23, s23, s22")
    e("s_sub_u32 s23, s23, 30")
    e("s_lshr_b32 s40, s23, 1")
    e("s_lshl_b32 s41, s20, 3")
    e("s_add_u32 s40, s40, s41")
    e("s_and_b32 s41, s23, 1")
    e("s_lshl_b32 s41, s41, 2")
    e("s_sub_u32 s42, s40, 20")
    e("s_lshl_b32 s42, s42, 5")
    e("s_mov_b32 s43, 4")
    e("s_mov_b32 s44, 16")
    e("s_mul_i32 s46, s40, 160")
    e("s_sub_u32 s46, s46, %d" % (16 * 160 - 16))
    e("s_cmp_lt_u32 s40, 20")
    e("s_cselect_b32 s42, s46, s42")
    e("s_cselect_b32 s43, 20, s43")
    e("s_cselect_b32 s44, 80, s44")
    e("s_mul_i32 s46, s40, 40")
    e("s_cmp_lt_u32 s40, 16")
    e("s_cselect_b32 s42, s46, s42")
    e("s_cselect_b32 s43, 4, s43")
    e("s_cselect_b32 s44, 20, s44")
    e("s_mul_i32 s48, s20, 20480")
    e("v_lshlrev_b32 v10, 4, v%d" % VL)
    e("v_lshrrev_b32 v2, 4, v%d" % VL)
    e("v_bfe_u32 v3, v%d, 2, 2" % VL)
    e("v_lshl_add_u32 v2, v2, 3, v3")
    e("v_mul_u32_u24 v2, 640, v2")
    e("v_add_u32 v2, s48, v2")
    e("v_and_b32 v3, 3, v%d" % VL)
    e("v_lshl_add_u32 v11, v3, 4, v2")
    e("v_lshl_add_u32 v12, v3, 3, v2")
    e("s_waitcnt lgkmcnt(0)")
    e("s_cmp_lt_u32 s40, 20")
    e("s_cbranch_scc1 RP_WO")
    srd(e, SW, 14, 0, 1536 * 640 * 2)
    e("s_branch RP_GO")
    e.label("RP_WO")
    srd(e, SW, 8, 0, 640 * 640 * 2)
    e.label("RP_GO")
    srd(e, SO, 18, WP_OFF, WP_BYTES)
    e("s_mul_i32 s43, s43, 1280")
    e("s_mul_i32 s44, s44, 1280")
    e("s_sub_u32 s43, s43, s44")
    e("s_sub_u32 s43, s43, 3840")
    e("s_sub_u32 s44, s44, 3840")
    def load(tag, lanes_lo, lanes_hi):
        e("s_mul_i32 s46, s42, 1280")
        e("s_mul_i32 s47, s41, 160")
        e("s_add_u32 s46, s46, s47")
        e("s_mov_b32 m0, s48")
        e("s_mov_b32 exec_lo, 0x%x" % lanes_lo)
        e("s_mov_b32 exec_hi, 0x%x" % lanes_hi)
        e("s_mov_b32 s45, 0")
        e.label(tag)
        for h in range(2):
            for r in range(4):
                e("buffer_load_dwordx4 v10, s[%d:%d], s46 offen lds" % (SW, SW + 3))
                e("s_add_u32 m0, m0, 640")
                e("s_add_u32 s46, s46, %s" % ("1280" if r < 3 else ("s44" if h == 0 else "s43")))
        e("s_add_u32 s45, s45, 1")
        e("s_cmp_lt_u32 s45, 4")
        e("s_cbranch_scc1 %s" % tag)
        e("s_mov_b64 exec, -1")
    def trs(n):
        for j in range(n):
            for t in range(5):
                for h in range(2):
                    off = 160 * j + 2560 * h + ([0, 8, 64, 72, 128][t])
                    e("ds_read_b64_tr_b16 %s, v%d offset:%d" % (vr(20 + 20 * j + 4 * t + 2 * h, 2), 12 if t == 4 else 11, off))
    def sts(n):
        e("s_mul_i32 s46, s41, 68")
        e("s_add_u32 s46, s46, s40")
        e("s_mul_i32 s46, s46, 5120")
        for j in range(n):
            e("s_add_u32 s47, s46, 4096")
            for t in range(5):
                e("buffer_store_dwordx4 %s, v10, s[%d:%d], %s offen offset:%d%s" % (vr(20 + 20 * j + 4 * t, 4), SO, SO + 3, "s47" if t == 4 else "s46", 1024 * (t & 3), SC1))
            e("s_add_u32 s46, s46, %d" % (68 * 5120))
    load("RP_L0", 0xffffffff, 0xff)
    e("s_waitcnt vmcnt(0)")
    trs(4)
    e("s_waitcnt lgkmcnt(0)")
    e("s_cmp_lt_u32 s20, 6")
    e("s_cbranch_scc1 RP_ST")
    e("s_mov_b32 s52, s40")
    e("s_mov_b32 s53, s41")
    e("s_sub_u32 s46, s20, 6")
    e("s_lshl_b32 s46, s46, 4")
    e("s_add_u32 s46, s46, s23")
    e("s_and_b32 s41, s46, 7")
    e("s_lshr_b32 s54, s46, 3")
    e("s_add_u32 s42, s54, 44")
    e("s_lshl_b32 s42, s42, 5")
    e("s_add_u32 s54, s54, 64")
    e("s_mov_b32 s55, s41")
    load("RP_L1", 0x3ff, 0)
    e("s_mov_b32 s41, s53")
    e.label("RP_ST")
    sts(4)
    e("s_cmp_lt_u32 s20, 6")
    e("s_cbranch_scc1 K1_END")
    e("s_mov_b32 s40, s54")
    e("s_mov_b32 s41, s55")
    e("s_waitcnt vmcnt(0)")
    trs(1)
    e("s_waitcnt lgkmcnt(0)")
    sts(1)
    e("s_endpgm")


def gen_k1(e):
    e.label("k1_kernel")
    e("s_cmp_ge_u32 s2, 256")
    e("s_cbranch_scc1 K1_END")
    e("s_load_dwordx8 s[4:11], s[0:1], 0")
    e("s_load_dwordx4 s[12:15], s[0:1], 32")
    e("s_load_dwordx2 s[16:17], s[0:1], 48")
    e("s_load_dwordx2 s[18:19], s[0:1], 72")
    stamp(e, 0, 18, 0)
    e("v_lshrrev_b32 v1, 6, v0")
    e("v_and_b32 v%d, 63, v0" % VL)
    e("v_readfirstlane_b32 s20, v1")
    e("s_and_b32 s21, s2, 7")
    e("s_lshr_b32 s22, s2, 3")
    e("s_cmp_ge_u32 s22, 30")
    e("s_cbranch_scc1 %s" % ("K1_END" if OPT.get("norp", 0) else "K1_RP"))
    e("s_cmp_ge_u32 s22, 18")
    e("s_cbranch_scc1 K1_FFN")
    gen_qkv(e)
    e.label("K1_FFN")
    gen_ffn(e)
    e.label("K1_RP")
    gen_repack(e)
    e.label("K1_END")
    e("s_endpgm")
```

```python
import sys
NAME = "gated_mix__sliding_local_dilated__dense_activation_relu__prompt"

ACT_OFF = 0
RB_STRIDE = 68 * 1024
ACT_BYTES = 128 * RB_STRIDE
WP_OFF = 0x900000
WP_BYTES = 8 * 68 * 5120
G_OFF = 0xC00000
G_BYTES = 2048 * 4
STAMP_OFF = 0x1000000

OPT = dict(stamp=0)
for a in sys.argv[2:]:
    k, v = a.split("=")
    OPT[k] = int(v)


class Asm:
    def __init__(self):
        self.L = []
    def __call__(self, s):
        for l in s.strip("\n").split("\n"):
            self.L.append("    " + l.strip() if not l.strip().endswith(":") else l.strip())
    def label(self, s):
        self.L.append(s + ":")
    def text(self):
        return "\n".join(self.L) + "\n"


def vr(b, n=1):
    return "v%d" % b if n == 1 else "v[%d:%d]" % (b, b + n - 1)
def ar(b, n=1):
    return "a%d" % b if n == 1 else "a[%d:%d]" % (b, b + n - 1)
def sr(b, n=1):
    return "s%d" % b if n == 1 else "s[%d:%d]" % (b, b + n - 1)


def srd(e, d, base, off, size):
    if off:
        e("s_add_u32 s%d, s%d, 0x%x" % (d, base, off))
        e("s_addc_u32 s%d, s%d, 0" % (d + 1, base + 1))
    else:
        e("s_mov_b32 s%d, s%d" % (d, base))
        e("s_mov_b32 s%d, s%d" % (d + 1, base + 1))
    e("s_mov_b32 s%d, 0x%x" % (d + 2, size))
    e("s_mov_b32 s%d, 0x20000" % (d + 3))


def interleave(main, fill, start=0, per=1, every=1):
    out = []
    fi = 0
    for i, m in enumerate(main):
        out.append(m)
        if i >= start and (i - start) % every == 0:
            for _ in range(per):
                if fi < len(fill):
                    out.append(fill[fi]); fi += 1
    out.extend(fill[fi:])
    return out


def stamp(e, idx, sws, kern):
    if not OPT["stamp"]:
        return
    e("s_memtime s[%d:%d]" % (72 + 2 * idx, 73 + 2 * idx))
    if idx == 0:
        e("s_memrealtime s[80:81]")
    if idx == 3:
        e("s_memrealtime s[82:83]")


def stamp_flush(e, n, sws, kern, swave, vt):
    if not OPT["stamp"]:
        return
    n = 6
    e("s_waitcnt lgkmcnt(0)")
    srd(e, 92, sws, STAMP_OFF + kern * 0x40000, 0x40000)
    e("s_lshl_b32 s96, s2, 3")
    e("s_add_u32 s96, s96, s%d" % swave)
    e("s_lshl_b32 s96, s96, 6")
    e("v_mov_b32 v%d, 0" % (vt + 1))
    for i in range(n):
        e("v_mov_b32 v%d, s%d" % (vt, 72 + 2 * i))
        e("s_mov_b64 exec, 1")
        e("buffer_store_dword v%d, v%d, s[92:95], s96 offen offset:%d" % (vt, vt + 1, 4 * i))
        e("s_mov_b64 exec, -1")
        e("s_nop 1")
    if OPT["stamp"] == 2 and kern == 1:
        e("s_cmp_eq_u32 s96, %d" % (OPT.get("dbgwg", 0) * 512))
        e("s_cbranch_scc0 K2_END")
        e("s_load_dwordx2 s[90:91], s[0:1], 64")
        e("s_waitcnt vmcnt(0) lgkmcnt(0)")
        srd(e, 92, sws, STAMP_OFF, 0x80000)
        e("v_and_b32 v%d, 7, v90" % vt)
        e("v_lshlrev_b32 v%d, 2, v%d" % (vt, vt))
        e("v_and_b32 v%d, 8, v90" % (vt + 1))
        e("v_lshl_add_u32 v%d, v%d, 15, v%d" % (vt, vt + 1, vt))
        e("buffer_load_dword v%d, v%d, s[92:95], s96 offen sc0 sc1" % (vt + 1, vt))
        srd(e, 84, 90, 0, 64)
        e("v_lshlrev_b32 v%d, 2, v90" % vt)
        e("s_waitcnt vmcnt(0)")
        e("buffer_store_dword v%d, v%d, s[84:87], 0 offen" % (vt + 1, vt))


def gen_k2(e):
    DEPTH = OPT.get("k2depth", 6)
    e.label("k2_kernel")
    e("s_cmp_ge_u32 s2, 256")
    e("s_cbranch_scc1 K2_END")
    e("s_load_dwordx2 s[4:5], s[0:1], 72")
    e("s_load_dwordx2 s[6:7], s[0:1], 56")
    stamp(e, 0, 4, 1)
    VL, VA, VA8, VW, VG, VT = 90, 92, 96, 100, 101, 104
    e("v_lshrrev_b32 v91, 6, v0")
    e("v_and_b32 v%d, 63, v0" % VL)
    e("v_readfirstlane_b32 s8, v91")
    e("s_and_b32 s9, s2, 7")
    e("s_lshl_b32 s9, s9, 2")
    e("s_lshr_b32 s10, s2, 6")
    e("s_add_u32 s9, s9, s10")
    e("s_lshr_b32 s10, s2, 3")
    e("s_and_b32 s10, s10, 7")
    e("s_lshl_b32 s11, s8, 4")
    e("s_add_u32 s11, s11, 4")
    e("s_cmp_eq_u32 s8, 0")
    e("s_cselect_b32 s11, 0, s11")
    for i in range(1, 26):
        e("s_mov_b32 s%d, %d" % (32 + i, 4096 * i))
    e("v_lshlrev_b32 v%d, 4, v%d" % (VT, VL))
    e("v_lshlrev_b32 v%d, 3, v%d" % (VT + 1, VL))
    for q in range(4):
        e("s_add_u32 s12, s8, %d" % q)
        e("s_and_b32 s12, s12, 3")
        e("s_lshl_b32 s13, s9, 2")
        e("s_add_u32 s12, s12, s13")
        e("s_mul_i32 s12, s12, 68")
        e("s_add_u32 s12, s12, s11")
        e("s_lshl_b32 s12, s12, 10")
        e("v_add_u32 v%d, s12, v%d" % (VA + q, VT))
        e("v_add_u32 v%d, s12, v%d" % (VA8 + q, VT + 1))
    e("s_mul_i32 s12, s10, 68")
    e("s_add_u32 s12, s12, s11")
    e("s_mul_i32 s12, s12, 5120")
    e("v_add_u32 v%d, s12, v%d" % (VW, VT))
    e("s_waitcnt lgkmcnt(0)")
    srd(e, 16, 4, ACT_OFF, ACT_BYTES)
    srd(e, 20, 4, WP_OFF, WP_BYTES)
    srd(e, 24, 4, G_OFF, G_BYTES)
    srd(e, 28, 6, 0, 2048 * 640 * 2)
    e("s_lshl_b32 s12, s9, 2")
    e("s_add_u32 s12, s12, s8")
    e("s_lshl_b32 s13, s12, 6")
    e("v_and_b32 v%d, 15, v%d" % (VT + 2, VL))
    e("v_lshlrev_b32 v%d, 2, v%d" % (VT + 3, VT + 2))
    e("buffer_load_dword v%d, v%d, s[24:27], s13 offen" % (VG, VT + 3))
    if OPT.get("tw", 0) & 2:
        e("s_mul_i32 s12, s9, %d" % (64 * 1280))
        e("v_mul_u32_u24 v120, 1280, v%d" % VL)
        e("buffer_load_dword v121, v120, s[28:31], s12 offen")
    e("s_cmp_eq_u32 s8, 0")
    e("s_cbranch_scc0 K2_H")

    def soff(kb):
        return ("0" if kb // 4 == 0 else "s%d" % (32 + kb // 4)), (kb % 4) * 1024

    def loads(s, special):
        slot = (s % DEPTH) * 36
        out = []
        def la(q):
            so, im = soff(s)
            if special:
                out.append("buffer_load_dwordx2 %s, v%d, s[16:19], %s offen offset:%d" % (ar(slot + 4 * q, 2), VA8 + q, so, im))
                out.append("buffer_load_dwordx2 %s, v%d, s[16:19], %s offen offset:%d" % (ar(slot + 4 * q + 2, 2), VA8 + q, so, im + 512))
            else:
                out.append("buffer_load_dwordx4 %s, v%d, s[16:19], %s offen offset:%d" % (ar(slot + 4 * q, 4), VA + q, so, im))
        def lw(t):
            so, im = soff(5 * s + t)
            out.append("buffer_load_dwordx4 %s, v%d, s[20:23], %s offen offset:%d" % (ar(slot + 16 + 4 * t, 4), VW, so, im))
        for q in range(4):
            la(q)
        for t in range(5):
            lw(t)
        return out

    def mainloop(nsteps, specials):
        cnt = [len(loads(s, s in specials)) for s in range(nsteps)]
        issued = 0
        nxt = 0
        while nxt < min(DEPTH, nsteps) and sum(cnt[:nxt + 1]) + 2 <= 63:
            for l in loads(nxt, nxt in specials):
                e(l)
            nxt += 1
        for s in range(nsteps):
            slot = (s % DEPTH) * 36
            e("s_waitcnt vmcnt(%d)" % sum(cnt[s + 1:nxt]))
            if s == 0:
                stamp(e, 1, 4, 1)
            m = []
            for t in range(5):
                for q in range(4):
                    acc = vr((q * 5 + t) * 4, 4)
                    m.append("v_mfma_f32_16x16x32_bf16 %s, %s, %s, %s" % (acc, ar(slot + 16 + 4 * t, 4), ar(slot + 4 * q, 4), "0" if s == 0 else acc))
            for x in m:
                e(x)
            while nxt < nsteps and nxt <= s + DEPTH and sum(cnt[s + 1:nxt + 1]) <= 63:
                for l in loads(nxt, nxt in specials):
                    e(l)
                nxt += 1

    mainloop(20, {16, 17, 18, 19})
    e("s_branch K2_RED")
    e.label("K2_H")
    mainloop(16, set())
    e.label("K2_RED")
    for i in range(OPT.get("fill", 0)):
        e("v_add3_u32 v120, v120, v120, v120")
    stamp(e, 2, 4, 1)
    VC = 108
    e("v_sub_f32 v%d, 1.0, v%d" % (VG + 1, VG))
    e("v_cvt_pk_bf16_f32 v%d, v%d, v%d" % (VG + 1, VG + 1, VG + 1))
    e("v_and_b32 v%d, 0xffff0000, v%d" % (VG + 1, VG + 1))
    for j in range(4):
        e("s_add_u32 s12, s8, %d" % j)
        e("s_and_b32 s12, s12, 3")
        e("s_cmp_eq_u32 s12, 0")
        e("s_cselect_b64 vcc, -1, 0")
        e("v_cndmask_b32 v%d, v%d, v%d, vcc" % (VC + j, VG + 1, VG))
    for q in range(1, 4):
        e("s_add_u32 s12, s8, %d" % q)
        e("s_and_b32 s12, s12, 3")
        e("s_lshl_b32 s12, s12, 2")
        e("s_add_u32 s12, s12, s8")
        e("s_mul_i32 s12, s12, 5120")
        e("v_add_u32 v%d, s12, v%d" % (VA + q, VT))
        e("s_add_u32 s12, s8, %d" % q)
        e("s_and_b32 s12, s12, 3")
        e("s_lshl_b32 s13, s8, 2")
        e("s_add_u32 s12, s12, s13")
        e("s_mul_i32 s12, s12, 5120")
        e("v_add_u32 v%d, s12, v%d" % (VA8 + q, VT))
    for q in range(1, 4):
        for t in range(5):
            e("ds_write_b128 v%d, %s offset:%d" % (VA + q, vr((q * 5 + t) * 4, 4), t * 1024))
    for i in range(20):
        e("v_mul_f32 v%d, v%d, v%d" % (i, VC, i))
    e("s_lshl_b32 s12, s9, 2")
    e("s_add_u32 s12, s12, s8")
    e("s_lshr_b32 s13, s12, 1")
    e("s_lshl_b32 s13, s13, 5")
    e("s_and_b32 s12, s12, 1")
    e("s_add_u32 s13, s13, s12")
    e("s_mul_i32 s13, s13, 1280")
    e("s_mul_i32 s12, s10, 160")
    e("s_add_u32 s13, s13, s12")
    e("v_mul_u32_u24 v%d, 2560, v%d" % (VT + 2, VT + 2))
    e("v_lshrrev_b32 v%d, 4, v%d" % (VT + 3, VL))
    e("v_lshl_add_u32 v%d, v%d, 4, v%d" % (VA, VT + 3, VT + 2))
    e("v_lshl_add_u32 v%d, v%d, 3, v%d" % (VA8, VT + 3, VT + 2))
    e("s_waitcnt lgkmcnt(0)")
    e("s_barrier")
    for q in range(1, 4):
        for t in range(5):
            e("ds_read_b128 %s, v%d offset:%d" % (vr((q * 5 + t) * 4, 4), VA8 + q, t * 1024))
    for q in range(1, 4):
        e("s_waitcnt lgkmcnt(%d)" % (5 * (3 - q)))
        for i in range(20):
            e("v_fmac_f32 v%d, v%d, v%d" % (i, VC + q, q * 20 + i))
    for i in range(10):
        e("v_cvt_pk_bf16_f32 v%d, v%d, v%d" % (20 + i, 2 * i, 2 * i + 1))
    e("buffer_store_dwordx4 v[20:23], v%d, s[28:31], s13 offen" % VA)
    e("buffer_store_dwordx4 v[24:27], v%d, s[28:31], s13 offen offset:64" % VA)
    e("buffer_store_dwordx2 v[28:29], v%d, s[28:31], s13 offen offset:128" % VA8)
    stamp(e, 3, 4, 1)
    stamp_flush(e, 4, 4, 1, 8, 110)
    e.label("K2_END")
    e("s_endpgm")


def kd(name, vgpr, accum, sgpr=102):
    return """.amdhsa_kernel %s
  .amdhsa_next_free_vgpr %d
  .amdhsa_next_free_sgpr %d
  .amdhsa_accum_offset %d
  .amdhsa_group_segment_fixed_size 0
  .amdhsa_kernarg_size 80
  .amdhsa_user_sgpr_count 2
  .amdhsa_user_sgpr_kernarg_segment_ptr 1
  .amdhsa_system_sgpr_workgroup_id_x 1
.end_amdhsa_kernel
""" % (name, vgpr, sgpr, accum)


def main():
    from gen_k1 import gen_k1, K1_LDS
    hdr = []
    if OPT.get("k1", 1):
        hdr.append("; @launch kernel=k1_kernel grid=(256,1,1) block=(512,1,1) lds=%d" % K1_LDS)
    if OPT.get("k2", 1):
        hdr.append("; @launch kernel=k2_kernel grid=(256,1,1) block=(256,1,1) lds=81920")
    if OPT.get("k3", 0):
        hdr.insert(0 if OPT["k3"] == 2 else len(hdr), "; @launch kernel=k3_kernel grid=(256,1,1) block=(256,1,1) lds=0")
    out = "\n".join(hdr) + "\n"
    out += '.amdgcn_target "amdgcn-amd-amdhsa--gfx950"\n.text\n'
    e = Asm(); gen_k1(e)
    out += ".globl k1_kernel\n.p2align 8\n.type k1_kernel,@function\n" + e.text()
    e = Asm(); gen_k2(e)
    out += ".globl k2_kernel\n.p2align 8\n.type k2_kernel,@function\n" + e.text()
    if OPT.get("k3", 0):
        out += ".globl k3_kernel\n.p2align 8\n.type k3_kernel,@function\nk3_kernel:\n    s_endpgm\n"
    out += '.section .rodata,"a"\n.p2align 6\n' + kd("k1_kernel", 256, 256)
    if OPT.get("k3", 0):
        out += '.p2align 6\n' + kd("k3_kernel", 32, 32)
    out += '.p2align 6\n' + kd("k2_kernel", 128 + 36 * OPT.get("k2depth", 6), 128)
    open(sys.argv[1], "w").write(out)


if __name__ == "__main__":
    main()
```

```python
import struct, sys
from gen import Asm, vr, ar, sr, srd, interleave, kd, OPT, NAME, ACT_OFF, RB_STRIDE, ACT_BYTES, G_OFF, G_BYTES, STAMP_OFF
from sched import schedule
FLAG_OFF = 0xC10000
FLAG_BYTES = 16384
SPIN = 20000
G_BYTES = 128 * 128
OB1, OB2, WS_SPAN = 0x1100000, 0x1420000, 0x1500000
GS = 1600 * 16
KS, PS = 4 * GS, 64 * GS
CS = GS // 2
PS2 = 32 * CS
WORDS = 163840 - 16
OPT.setdefault("map", 1)


def stamp(e, idx, last=False):
    if not OPT["stamp"]:
        return
    e("s_memtime s[%d:%d]" % (72 + 2 * idx, 73 + 2 * idx))
    if idx == 0:
        e("s_memrealtime s[84:85]")
    if last:
        e("s_memrealtime s[86:87]")


def stamp_flush(e, wadd, vt):
    if not OPT["stamp"]:
        return
    e("s_waitcnt lgkmcnt(0)")
    srd(e, 24, 18, STAMP_OFF, 0x40000)
    e("s_lshl_b32 s96, s2, 3")
    e("s_add_u32 s96, s96, s20")
    e("s_add_u32 s96, s96, %d" % wadd)
    e("s_lshl_b32 s96, s96, 6")
    e("s_mov_b64 exec, 1")
    for i in range(8):
        e("v_mov_b32 v%d, s%d" % (vt + i, 72 + 2 * i))
        e("buffer_store_dword v%d, off, s[24:27], s96 offset:%d" % (vt + i, 4 * i))

K1_LDS = 163840
QST = 16384
FST = 17408
GT_OFF = 6 * FST + 3 * 16384
NEG = 0xEF800000
SC1 = [" sc1", "", " sc0 sc1", " sc1 nt"][OPT.get("st", 0)]
MF = "v_mfma_f32_16x16x32_bf16"

def f2u(x):
    return struct.unpack("<I", struct.pack("<f", x))[0]

SWAVE, SX, SY = 20, 21, 22
SW, SXS, SO, SG = 24, 28, 32, 36
VL = 254


def loader(e, tag, wst, wimm, wstep, pre=None):
    pair = 2 * wst + 16384
    xstep = 128
    e("s_mov_b32 s42, %d" % (2 * pair))
    e("s_mul_i32 s43, s48, %d" % (2 * wstep))
    e("s_mul_i32 s44, s48, %d" % xstep)
    e("s_mov_b32 s45, 0")
    TW = OPT.get("tw", 0)
    if TW:
        srd(e, 88, 14, 0, 1536 * 1280)
        e("s_lshr_b32 s46, s2, 3")
        e("s_lshl_b32 s46, s46, 11")
        e("s_mul_i32 s47, s20, 491520")
        e("s_add_u32 s46, s46, s47")
        e("v_lshl_add_u32 v19, v%d, 7, s46" % VL)
        e("v_lshlrev_b32 v20, 26, v%d" % VL)
        e("v_and_b32 v20, 0xc0000000, v20")
        e("v_or_b32 v19, v19, v20")
    if pre: pre()
    def W(so):
        for i in range(4):
            e("buffer_load_dwordx4 v%d, s[%d:%d], %s offen offset:%d lds" % (10 + i, SW, SW + 3, so, wimm * i))
    def X(j):
        for i in range(2):
            e("buffer_load_dwordx4 v%d, s[%d:%d], s44 offen offset:%d lds" % (14 + 2 * j + i, SXS, SXS + 3, 1024 * i))
    for lab, lim in (("_PRE", 2), ("_RET", 10)):
        e.label(tag + lab)
        if lim == 10:
            e("s_waitcnt vmcnt(%d)" % (14 if TW else 12))
            e("s_barrier")
        e("s_add_u32 m0, s42, s41")
        e("s_add_u32 s46, s43, %d" % wstep)
        X(0)
        e("s_add_u32 m0, m0, 2048")
        e("s_add_u32 s48, s48, 1")
        X(1)
        e("s_add_u32 m0, s42, s40")
        e("s_add_u32 s44, s44, %d" % xstep)
        W("s43")
        e("s_add_u32 m0, m0, %d" % wst)
        e("s_add_u32 s43, s43, %d" % (2 * wstep))
        W("s46")
        NSM = OPT.get("ns", 0)
        if NSM and lim == 10:
            for i in range(NSM):
                e("s_buffer_load_dword s96, s[88:91], s59 offset:%d" % (128 * i))
            e("s_add_u32 s59, s59, %d" % (128 * NSM))
        if TW:
            e("buffer_load_dword v20, v19, s[88:91], 0 offen")
            e("v_add_u32 v19, 61440, v19")
        e("s_cmp_eq_u32 s48, 10")
        e("s_cselect_b32 s43, 0, s43")
        e("s_cselect_b32 s44, 0, s44")
        e("s_add_u32 s42, s42, %d" % pair)
        e("s_cmp_eq_u32 s42, %d" % (3 * pair))
        e("s_cselect_b32 s42, 0, s42")
        e("s_add_u32 s45, s45, 1")
        e("s_cmp_lt_u32 s45, %d" % lim)
        e("s_cbranch_scc1 %s%s" % (tag, lab))
        e("s_branch %s" % ("P2S" if lim == 2 else "P2L"))


def rot_calc(e, a, b):
    if not OPT.get("rot", 1):
        e("s_mov_b32 s48, 0"); return
    R = OPT.get("R", 4); mult = OPT.get("mult", 1)
    e("s_add_u32 s48, s%d, s%d" % (a, b))
    e("s_mul_i32 s49, s48, %d" % ((1024 + R - 1) // R))
    e("s_lshr_b32 s49, s49, 10")
    e("s_mul_i32 s49, s49, %d" % R)
    e("s_sub_u32 s48, s48, s49")
    if mult != 1: e("s_mul_i32 s48, s48, %d" % mult)


def x_lane(e):
    e("v_lshrrev_b32 v2, 3, v%d" % VL)
    e("v_mul_u32_u24 v2, 2560, v2")
    e("v_lshrrev_b32 v3, 4, v%d" % VL)
    e("v_xor_b32 v3, v3, v%d" % VL)
    e("v_and_b32 v3, 7, v3")
    e("v_lshl_add_u32 v2, v3, 4, v2")
    e("v_xor_b32 v3, 64, v2")
    e("v_add_u32 v3, %d, v3" % (8 * 2560 - 1024))


def x_read_addr(e, vd, vl, vg, sbase):
    e("v_bfe_u32 v5, v%d, 1, 3" % vl)
    e("v_xor_b32 v5, v5, v%d" % vg)
    e("v_and_b32 v6, 15, v%d" % vl)
    e("v_lshlrev_b32 v6, 7, v6")
    e("v_lshl_add_u32 v6, v5, 4, v6")
    e("v_add_u32 v%d, %s, v6" % (vd, sbase))
    e("v_xor_b32 v%d, 64, v%d" % (vd + 1, vd))


def mainloop(e, tag, stage, reads, mfmas, nbase, vbase, vcur, extra_upd=None, extra_s=None, vt=253):
    e("s_mov_b32 s42, %d" % (2 * (2 * stage + 16384)))
    for i in range(nbase):
        e("v_add_u32 v%d, s42, v%d" % (vcur + i, vbase + i))
    e("s_mov_b32 s45, 0")
    TC = OPT.get("tc", 0)
    if TC:
        srd(e, 88, 14, 0, 1536 * 1280)
        e("s_lshr_b32 s46, s2, 3")
        e("s_lshl_b32 s46, s46, 11")
        e("s_mul_i32 s47, s20, 491520")
        e("s_add_u32 s46, s46, s47")
        e("v_mbcnt_lo_u32_b32 v255, -1, 0")
        e("v_mbcnt_hi_u32_b32 v255, -1, v255")
        e("v_lshlrev_b32 v128, 26, v255")
        e("v_lshl_add_u32 v255, v255, 7, s46")
        e("v_and_b32 v128, 0xc0000000, v128")
        e("v_or_b32 v255, v255, v128")
        e("s_mov_b32 m0, %d" % (WORDS - 512))
    e("s_barrier")
    stamp(e, 1)
    for r in reads(0, 0, 0):
        e(r)
    e.label(tag + "_LOOP")
    e("s_add_u32 s42, s42, %d" % (2 * stage + 16384))
    e("s_cmp_eq_u32 s42, %d" % (3 * (2 * stage + 16384)))
    e("s_cselect_b32 s42, 0, s42")
    e("s_add_u32 s45, s45, 1")
    if TC:
        e("buffer_load_dword v255, s[88:91], 0 offen lds")
        e("v_add_u32 v255, 61440, v255")
    for x in extra_s or []:
        e(x)
    e("s_waitcnt lgkmcnt(0)")
    upd = ["v_add_u32 v%d, s42, v%d" % (vcur + i, vbase + i) for i in range(nbase)] + (extra_upd or [])
    for x in interleave(mfmas(0), reads(1, stage, 1) + upd):
        e(x)
    e("s_waitcnt lgkmcnt(0)")
    e("s_barrier")
    for x in interleave(mfmas(1), reads(0, 0, 0)):
        e(x)
    e("s_cmp_lt_u32 s45, 10")
    e("s_cbranch_scc1 %s_LOOP" % tag)
    e("s_waitcnt lgkmcnt(0)")


def lane_pos0(e, vl, vg, vc, vp):
    e("v_lshrrev_b32 v%d, 4, v%d" % (vg, vl))
    e("v_and_b32 v%d, 3, v%d" % (vc, vl))
    e("v_bfe_u32 v%d, v%d, 2, 3" % (vp, vl))
    e("v_lshrrev_b32 v1, 5, v%d" % vl)
    e("v_lshl_add_u32 v%d, v1, 4, v%d" % (vp, vp))


def kperm(e, vk, vp, t):
    e("v_and_b32 v%d, 0x33, v%d" % (vk, vp))
    e("v_and_b32 v%d, 4, v%d" % (t, vp))
    e("v_lshl_or_b32 v%d, v%d, 1, v%d" % (vk, t, vk))
    e("v_and_b32 v%d, 8, v%d" % (t, vp))
    e("v_lshrrev_b32 v%d, 1, v%d" % (t, t))
    e("v_or_b32 v%d, v%d, v%d" % (vk, t, vk))


def gen_qkv(e):
    if OPT.get("map", 0) == 1:
        e("s_and_b32 s46, s21, 1")
        e("s_and_b32 s21, s21, 6")
        e("s_cmp_ge_u32 s22, 9")
        e("s_addc_u32 s21, s21, 0")
        e("s_cmp_ge_u32 s22, 9")
        e("s_cselect_b32 s47, 9, 0")
        e("s_sub_u32 s22, s22, s47")
        e("s_mul_i32 s46, s46, 9")
        e("s_add_u32 s22, s22, s46")
    e("s_mul_i32 s23, s22, 114")
    e("s_sub_u32 s23, s23, 14")
    e("s_cmp_lt_u32 s20, 4")
    e("s_cbranch_scc1 QKV_C")
    e("s_sub_u32 s20, s20, 4")
    e("s_lshl_b32 s40, s20, 12")
    e("s_add_u32 s41, s40, %d" % (2 * QST))
    rot_calc(e, 21, 22)
    e("s_mul_i32 s46, s21, 160")
    e("s_lshl_b32 s47, s20, 8")
    for i in range(4):
        e("v_add_u32 v2, s47, v%d" % VL)
        if i: e("v_add_u32 v2, %d, v2" % (64 * i))
        e("v_mul_u32_u24 v3, 2185, v2")
        e("v_lshrrev_b32 v3, 16, v3")
        e("v_mul_u32_u24 v4, 30, v3")
        e("v_sub_u32 v4, v2, v4")
        e("v_mul_u32_u24 v5, 205, v4")
        e("v_lshrrev_b32 v5, 11, v5")
        kperm(e, 6, 3, 7)
        e("v_mul_u32_u24 v6, 3840, v6")
        e("v_mul_u32_u24 v5, 1120, v5")
        e("v_lshl_add_u32 v6, v4, 4, v6")
        e("v_add3_u32 v%d, v6, v5, s46" % (10 + i))
        e("s_sub_u32 s46, s46, 1024")
    e("s_cmp_eq_u32 s20, 3")
    e("s_cselect_b32 s47, 0x40000000, 0")
    e("v_or_b32 v13, s47, v13")
    e("s_lshr_b32 s46, s20, 1")
    e("s_add_u32 s46, s46, s23")
    e("s_and_b32 s47, s20, 1")
    e("s_lshl_b32 s47, s47, 6")
    e("s_add_u32 s46, s46, s47")
    e("s_mul_i32 s46, s46, 1280")
    x_lane(e)
    e("v_add_u32 v14, s46, v2")
    e("v_add_u32 v15, s46, v3")
    e("v_add_u32 v16, %d, v14" % (32 * 1280))
    e("v_add_u32 v17, %d, v15" % (32 * 1280))
    e("s_waitcnt lgkmcnt(0)")
    srd(e, SW, 6, 0, 640 * 1920 * 2)
    srd(e, SXS, 4, 0, 2048 * 640 * 2)
    loader(e, "QL", QST, 1024, 32 * 3840)

    e.label("QKV_C")
    VB, VCUR = 224, 228
    CC, CP, CF, MP, MG0, MG1, MV0, MV1, ON0, ON1, OS0, OS1, ONES = 232, 236, 240, 244, 246, 247, 248, 249, 250, 251, 252, 253, 224
    ON4 = 254
    e("s_lshr_b32 s40, s20, 1")
    e("s_and_b32 s41, s20, 1")
    e("v_mov_b32 v9, v%d" % VL)
    lane_pos0(e, 9, 2, 3, 4)
    e("s_mul_i32 s46, s41, 80")
    e("v_mul_u32_u24 v4, 480, v4")
    e("v_add_u32 v4, s46, v4")
    e("v_lshl_add_u32 v%d, v3, 3, v4" % VB)
    e("v_and_b32 v5, 1, v3")
    e("v_mul_u32_u24 v5, 40, v5")
    e("v_lshrrev_b32 v6, 1, v3")
    e("v_mul_u32_u24 v6, 160, v6")
    e("v_add3_u32 v4, v4, v5, v6")
    e("v_add_u32 v%d, 32, v4" % (VB + 1))
    e("s_lshl_b32 s46, s40, 13")
    e("s_add_u32 s46, s46, %d" % (2 * QST))
    x_read_addr(e, VB + 2, 9, 2, "s46")
    e("v_and_b32 v3, 15, v9")
    e("v_lshlrev_b32 v4, 2, v2")
    e("v_sub_u32 v5, v3, v4")
    e("s_cmp_eq_u32 s22, 0")
    e("s_cselect_b32 s46, 7, 0")
    e("v_subrev_u32 v4, s46, v4")
    e("s_mov_b32 s47, 0x%x" % NEG)
    for r in range(4):
        e("v_subrev_u32 v6, %d, v5" % r)
        e("v_ashrrev_i32 v%d, 31, v6" % (10 + r))
        e("v_sub_u32 v7, 7, v6")
        e("v_ashrrev_i32 v7, 31, v7")
        e("v_or_b32 v7, v7, v%d" % (10 + r))
        e("v_and_b32 v%d, s47, v7" % (CC + r))
        e("v_sub_u32 v8, -9, v6")
        e("v_ashrrev_i32 v8, 31, v8")
        e("v_and_b32 v%d, s47, v8" % (CP + r))
        e("v_add_u32 v8, %d, v4" % r)
        e("v_ashrrev_i32 v8, 31, v8")
        e("v_or_b32 v7, v7, v8")
        e("v_and_b32 v%d, s47, v7" % (CF + r))
    e("s_mov_b32 s47, 0xffff")
    e("v_bfi_b32 v%d, s47, v10, v11" % MP)
    e("v_bfi_b32 v%d, s47, v12, v13" % (MP + 1))
    e("v_add_u32 v6, -1, v2")
    e("v_ashrrev_i32 v%d, 31, v6" % MG0)
    e("v_xor_b32 v6, 1, v2")
    e("v_add_u32 v6, -1, v6")
    e("v_ashrrev_i32 v%d, 31, v6" % MG1)
    e("v_add_u32 v6, -4, v3")
    e("v_ashrrev_i32 v%d, 31, v6" % MV0)
    e("v_xor_b32 v6, 4, v3")
    e("v_add_u32 v6, -4, v6")
    e("v_ashrrev_i32 v%d, 31, v6" % MV1)
    e("s_mul_i32 s46, s22, 57")
    e("s_add_u32 s46, s46, 9")
    e("s_and_b32 s47, s46, 15")
    e("v_add_u32 v6, s47, v3")
    e("v_cmp_lt_u32 s[56:57], 15, v6")
    e("v_and_b32 v6, 15, v6")
    e("s_sub_u32 s46, s46, s47")
    e("s_lshl_b32 s49, s22, 5")
    e("s_add_u32 s46, s46, s49")
    e("s_add_u32 s46, s46, 16")
    e("v_add_u32 v7, s46, v6")
    e("v_mul_u32_u24 v8, %d, v2" % CS)
    e("v_lshl_add_u32 v7, v7, 3, v8")
    e("s_lshl_b32 s46, s21, 1")
    e("s_add_u32 s46, s46, s41")
    e("s_mul_i32 s49, s46, %d" % KS)
    e("s_mul_i32 s50, s40, %d" % PS)
    e("s_add_u32 s49, s49, s50")
    e("s_add_u32 s49, s49, %d" % OB1)
    e("v_lshl_add_u32 v%d, v7, 1, s49" % ON1)
    e("s_mul_i32 s49, s46, %d" % (2 * CS))
    e("s_mul_i32 s50, s40, %d" % PS2)
    e("s_add_u32 s49, s49, s50")
    e("s_add_u32 s49, s49, %d" % OB2)
    e("v_lshlrev_b32 v8, 29, v2")
    e("v_and_b32 v8, 0x40000000, v8")
    e("v_add3_u32 v%d, v7, v8, s49" % OS1)
    e("v_and_b32 v6, 8, v6")
    e("v_subrev_u32 v6, s47, v6")
    e("v_and_b32 v6, 0x40000000, v6")
    e("v_add_u32 v7, -256, v%d" % ON1)
    e("v_or_b32 v%d, v6, v7" % ON0)
    e("v_xor_b32 v6, 0x40000000, v6")
    e("v_or_b32 v%d, v6, v%d" % (ON4, ON1))
    e("s_cmp_gt_u32 s47, 8")
    e("s_cselect_b32 s46, 0x40000000, 0")
    e("v_add_u32 v7, -128, v%d" % OS1)
    e("v_or_b32 v%d, s46, v7" % OS0)
    for i in range(64):
        e("v_mov_b64 v[%d:%d], 0" % (2 * i, 2 * i + 1))
    e("s_waitcnt lgkmcnt(0)")
    srd(e, SO, 18, 0, WS_SPAN)
    c = f2u(20 ** -0.5 * 1.4426950408889634)
    e("s_mov_b32 s50, 0x%x" % c)
    e("s_mov_b32 s51, 0x%x" % c)
    e("s_mov_b32 s52, 0x%x" % (c ^ 0x80000000))
    e("s_mov_b64 s[54:55], 0xffff")

    TOFF = [(0, 0), (0, 40), (0, 160), (0, 200), (1, 0), (0, 320), (0, 360), (1, 320)]
    def reads(buf, imm, half):
        b = 128 + 48 * buf
        out = []
        for q in range(4):
            out.append("ds_read_b128 %s, v%d offset:%d" % (vr(b + 32 + 4 * q, 4), VCUR + 2 + half, 2048 * q))
        for t in range(8):
            for h in range(2):
                out.append("ds_read_b64_tr_b16 %s, v%d offset:%d" % (vr(b + 4 * t + 2 * h, 2), VCUR + TOFF[t][0], imm + TOFF[t][1] + 3840 * h))
        return out
    def mfmas(buf):
        b = 128 + 48 * buf
        out = []
        for t in range(8):
            for q in range(4):
                acc = vr((q * 8 + t) * 4, 4); w = vr(b + 4 * t, 4); x = vr(b + 32 + 4 * q, 4)
                out.append("%s %s, %s, %s, %s" % ((MF, acc, w, x, acc) if t < 5 else (MF, acc, x, w, acc)))
        return out
    e("s_lshl_b32 s67, s22, 8")
    e("s_lshl_b32 s46, s21, 4")
    e("s_add_u32 s67, s67, s46")
    e("s_add_u32 s67, s67, 4096")
    announce(e, "QA")
    mainloop(e, "QC", QST, reads, mfmas, 4, VB, VCUR)
    stamp(e, 2)
    e("s_nop 7")
    KB, QB, V0B, V1B, V7A, V7B = 128, 152, 184, 192, 200, 208
    L = ["v_mov_b32 v%d, 0x3f803f80" % (ONES + r) for r in range(4)]
    def cvt(d, s):
        L.append("v_cvt_pk_bf16_f32 v%d, v%d, v%d" % (d, s, s + 1))
        L.append("v_cvt_pk_bf16_f32 v%d, v%d, v%d" % (d + 1, s + 2, s + 3))
    def conv_kq(q):
        a = 32 * q; k = KB + 6 * q; qq = QB + 8 * q
        cvt(qq + 2, a + 16); cvt(k + 2, a + 16)
        cvt(k, a + 8); cvt(k + 4, a + 12); cvt(qq, a); cvt(qq + 6, a + 4)
        for i in range(2):
            L.append("v_permlane32_swap_b32 v%d, v%d" % (qq + 2 + i, k + 2 + i))
        for i in range(2):
            L.append("v_and_b32 v%d, v%d, v%d" % (qq + 4 + i, MG1, qq + 2 + i))
            L.append("v_and_b32 v%d, v%d, v%d" % (qq + 2 + i, MG0, qq + 2 + i))
    def conv_v(q):
        a = 32 * q
        cvt(V0B + 2 * q, a + 20); cvt(V1B + 2 * q, a + 24); cvt(V7A + 2 * q, a + 28)
        for i in range(2):
            L.append("v_and_b32 v%d, v%d, v%d" % (V7B + 2 * q + i, MV1, V7A + 2 * q + i))
            L.append("v_and_b32 v%d, v%d, v%d" % (V7A + 2 * q + i, MV0, V7A + 2 * q + i))
    def SC(q, h): return 32 * q + 12 * h
    def SP(q, h): return 32 * q + 12 * h + 4
    def PP(q, h): return 32 * q + 12 * h + 8
    def MM(q, h): return 32 * q + 28 + 2 * h
    def scores(q, h):
        qq = vr(QB + 8 * q + 4 * h, 4)
        L.append("%s %s, %s, %s, %s" % (MF, vr(SC(q, h), 4), vr(KB + 6 * q + 2 * h, 4), qq, vr(CF if q == 0 else CC, 4)))
        if q:
            L.append("%s %s, %s, %s, %s" % (MF, vr(SP(q, h), 4), vr(KB + 6 * (q - 1) + 2 * h, 4), qq, vr(CP, 4)))
    def lmax(q, h):
        s = SC(q, h)
        if q:
            for r in range(4):
                L.append("v_max_f32 v%d, v%d, v%d" % (s + r, s + r, SP(q, h) + r))
        L.append("v_max3_f32 v%d, v%d, v%d, v%d" % (MM(q, h), s, s + 1, s + 2))
        L.append("v_max_f32 v%d, v%d, v%d" % (MM(q, h), MM(q, h), s + 3))
    def gmax(q0):
        a, b, c_, d = MM(q0, 0), MM(q0, 1), MM(q0 + 1, 0), MM(q0 + 1, 1)
        L.extend(["v_permlane32_swap_b32 v%d, v%d" % (a, b), "v_permlane32_swap_b32 v%d, v%d" % (c_, d),
                  "v_max_f32 v%d, v%d, v%d" % (a, a, b), "v_max_f32 v%d, v%d, v%d" % (c_, c_, d),
                  "v_permlane16_swap_b32 v%d, v%d" % (a, c_), "v_max_f32 v%d, v%d, v%d" % (a, a, c_),
                  "v_mul_f32 v%d, s52, v%d" % (c_, a), "v_mul_f32 v%d, s52, v%d" % (a, a),
                  "v_permlane16_swap_b32 v%d, v%d" % (a, c_),
                  "v_mov_b32 v%d, v%d" % (b, a), "v_mov_b32 v%d, v%d" % (d, c_),
                  "v_permlane32_swap_b32 v%d, v%d" % (a, b), "v_permlane32_swap_b32 v%d, v%d" % (c_, d)])
    def probs(q, h):
        s = SC(q, h); p = PP(q, h); m = vr(MM(q, h), 2)
        sel = "op_sel:[0,0,0] op_sel_hi:[1,1,0]"
        for k in range(2):
            L.append("v_pk_fma_f32 %s, %s, s[50:51], %s %s" % (vr(s + 2 * k, 2), vr(s + 2 * k, 2), m, sel))
        for r in range(4):
            L.append("v_exp_f32 v%d, v%d" % (s + r, s + r))
        if q == 0:
            cvt(p, s)
            L.append("v_mov_b64 %s, 0" % vr(p + 2, 2))
        else:
            cvt(p + 2, s)
            for k in range(2):
                L.append("v_and_b32 v%d, v%d, v%d" % (p + k, MP + k, p + 2 + k))
                L.append("v_xor_b32 v%d, v%d, v%d" % (p + 2 + k, p + k, p + 2 + k))
    def pv(q, h):
        p = vr(PP(q, h), 4); o = 2 * max(q - 1, 0)
        L.append("%s %s, %s, %s, 0" % (MF, vr(SP(q, h), 4), vr(ONES, 4), p))
        L.append("%s %s, %s, %s, 0" % (MF, vr(SC(q, h), 4), vr((V1B if h else V0B) + o, 4), p))
        o7 = vr(32 * q + 24, 4)
        L.append("%s %s, %s, %s, %s" % (MF, o7, vr((V7B if h else V7A) + o, 4), p, o7 if h else "0"))
    def fin(q):
        for h in range(2):
            L.append("v_rcp_f32 v%d, v%d" % (SP(q, h), SP(q, h)))
        for h in range(2):
            s = SC(q, h)
            for k in range(2):
                L.append("v_pk_mul_f32 %s, %s, %s op_sel:[0,0] op_sel_hi:[1,0]" % (vr(s + 2 * k, 2), vr(s + 2 * k, 2), vr(SP(q, h), 2)))
            cvt(PP(q, 0) + 2 * h, s)
        t = 32 * q + 30; o7 = 32 * q + 24
        L.append("v_cndmask_b32 v%d, v%d, v%d, s[54:55]" % (t, SP(q, 1), SP(q, 0)))
        for k in range(2):
            L.append("v_pk_mul_f32 %s, %s, %s op_sel:[0,0] op_sel_hi:[1,0]" % (vr(o7 + 2 * k, 2), vr(o7 + 2 * k, 2), vr(t, 2)))
        cvt(o7, o7)
        def st(dn, ds, on, os_, k):
            L.append("buffer_store_dwordx4 %s, v%d, s[%d:%d], 0 offen offset:%d%s" % (vr(dn, 4), on, SO, SO + 3, 256 * k, SC1))
            L.append("buffer_store_dwordx2 %s, v%d, s[%d:%d], 0 offen offset:%d%s" % (vr(ds, 2), os_, SO, SO + 3, 128 * k, SC1))
        if q == 0:
            st(PP(0, 0), o7, ON0, OS0, 0)
        else:
            for r in range(4):
                L.append("v_cndmask_b32 v%d, v%d, v%d, s[56:57]" % (SC(q, 0) + r, PP(q, 0) + r, PP(q - 1, 0) + r))
            for r in range(2):
                L.append("v_cndmask_b32 v%d, v%d, v%d, s[56:57]" % (o7 + 2 + r, o7 + r, o7 - 32 + r))
            st(SC(q, 0), o7 + 2, ON1, OS1, q - 1)
        if q == 3:
            st(PP(3, 0), o7, ON4, OS1, 3)
    for q in range(4):
        conv_kq(q); conv_v(q)
        if q:
            scores(q - 1, 0); scores(q - 1, 1)
    scores(3, 0); scores(3, 1)
    for q in range(2):
        lmax(q, 0); lmax(q, 1)
    gmax(0)
    for q in range(2, 4):
        lmax(q, 0); lmax(q, 1)
    gmax(2)
    for q in range(4):
        probs(q, 0); probs(q, 1); pv(q, 0); pv(q, 1)
        if q: fin(q - 1)
    fin(3)
    ST = []
    if OPT.get("odef", 0):
        ST = [x for x in L if x.startswith("buffer_store")]
        L = [x for x in L if not x.startswith("buffer_store")]
    for x in schedule(L, window=10000):
        e(x)
    if ST:
        e("v_mov_b32 v225, %d" % WORDS)
        e.label("OD_SPIN")
        e("ds_read_b32 v224, v225 offset:4")
        e("s_waitcnt lgkmcnt(0)")
        e("v_cmp_ne_u32 vcc, 0, v224")
        e("s_cbranch_vccz OD_SPIN")
        for x in ST: e(x)
    if OPT.get("cst", 0): stamp(e, 3)
    e("s_branch P2C")


def gen_ffn(e):
    e("s_mul_i32 s23, s21, 12")
    e("s_add_u32 s23, s23, s22")
    e("s_sub_u32 s23, s23, 18")
    if OPT.get("map", 0) == 1:
        e("s_and_b32 s46, s21, 1")
        e("s_lshr_b32 s21, s21, 1")
        e("s_mul_i32 s23, s21, 12")
        e("s_add_u32 s23, s23, s22")
        e("s_sub_u32 s23, s23, 18")
        e("s_lshr_b32 s21, s23, 3")
        e("s_and_b32 s22, s23, 7")
        e("s_lshl_b32 s46, s46, 3")
        e("s_add_u32 s22, s22, s46")
    else:
        e("s_lshr_b32 s21, s23, 4")
        e("s_and_b32 s22, s23, 15")
    rot_calc(e, 21, 22)
    e("s_cmp_lt_u32 s20, 4")
    e("s_cbranch_scc1 FFN_C")
    e("s_sub_u32 s20, s20, 4")
    e("s_mul_i32 s40, s20, %d" % (4 * 1088))
    e("s_lshl_b32 s41, s20, 12")
    e("s_add_u32 s41, s41, %d" % (2 * FST))
    e("s_lshl_b32 s46, s21, 9")
    e("s_lshl_b32 s47, s20, 3")
    e("v_lshrrev_b32 v2, 5, v%d" % VL)
    e("v_and_b32 v3, 31, v%d" % VL)
    e("v_lshlrev_b32 v4, 1, v2")
    e("v_xor_b32 v3, v3, v4")
    e("v_add_u32 v2, s47, v2")
    for i in range(4):
        kperm(e, 6, 2, 7)
        e("v_mul_u32_u24 v6, 3072, v6")
        e("v_lshl_add_u32 v6, v3, 4, v6")
        e("v_add_u32 v%d, s46, v6" % (10 + i))
        e("s_sub_u32 s46, s46, 1088")
        e("v_add_u32 v2, 2, v2")
    x_lane(e)
    for j in range(2):
        e("s_lshl_b32 s46, s20, 1")
        e("s_add_u32 s46, s46, s21")
        if j: e("s_add_u32 s46, s46, 1")
        e("s_and_b32 s47, s46, 1")
        e("s_and_b32 s46, s46, 2")
        e("s_lshl_b32 s46, s46, 4")
        e("s_add_u32 s46, s46, s47")
        e("s_lshr_b32 s47, s20, 1")
        e("s_lshl_b32 s47, s47, 6")
        e("s_add_u32 s46, s46, s47")
        e("s_lshl_b32 s47, s22, 7")
        e("s_add_u32 s46, s46, s47")
        e("s_mul_i32 s46, s46, 1280")
        e("v_add_u32 v%d, s46, v2" % (14 + 2 * j))
        e("v_add_u32 v%d, s46, v3" % (15 + 2 * j))
    e("s_waitcnt lgkmcnt(0)")
    srd(e, SW, 12, 0, 640 * 1536 * 2)
    srd(e, SXS, 4, 0, 2048 * 640 * 2)
    srd(e, SG, 16, 0, 1280)
    e("v_lshlrev_b32 v18, 4, v%d" % VL)
    def pre():
        e("s_mov_b32 m0, %d" % GT_OFF)
        e("s_nop 0")
        e("buffer_load_dwordx4 v18, s[%d:%d], 0 offen lds" % (SG, SG + 3))
        e("buffer_load_dwordx4 v18, s[%d:%d], 0 offen offset:1024 lds" % (SG, SG + 3))
    loader(e, "FL", FST, 1088, 32 * 3072, pre)

    e.label("FFN_C")
    VB, VCUR, RG, ZA = 236, 240, 246, 232
    e("s_lshr_b32 s40, s20, 1")
    e("s_and_b32 s41, s20, 1")
    e("v_mov_b32 v9, v%d" % VL)
    lane_pos0(e, 9, 2, 3, 4)
    e("v_lshrrev_b32 v5, 1, v4")
    e("v_mul_u32_u24 v5, 1088, v5")
    e("v_and_b32 v4, 1, v4")
    e("v_mul_u32_u24 v6, 544, v4")
    e("v_lshl_add_u32 v5, v3, 3, v5")
    e("s_lshl_b32 s46, s41, 8")
    e("v_add3_u32 v%d, v5, v6, s46" % VB)
    e("v_lshlrev_b32 v4, 6, v4")
    e("v_sub_u32 v%d, v%d, v4" % (VB + 1, VB))
    e("s_lshl_b32 s46, s40, 13")
    e("s_add_u32 s46, s46, %d" % (2 * FST))
    e("v_lshlrev_b32 v244, 4, v9")
    x_read_addr(e, VB + 2, 9, 2, "s46")
    e("v_lshlrev_b32 v5, 4, v2")
    e("v_add_u32 v%d, %d, v5" % (RG + 1, GT_OFF))
    e("s_lshl_b32 s48, s48, 7")
    e("v_add_u32 v%d, s48, v%d" % (RG, RG + 1))
    e("v_and_b32 v245, 31, v9")
    e("s_lshr_b32 s46, s21, 2")
    e("s_or_b32 s46, s46, s41")
    e("s_lshl_b32 s46, s46, 30")
    e("v_lshl_add_u32 v245, v245, 2, s46")
    e("s_mov_b32 s56, 0xffff0000")
    e("s_mov_b32 s57, 0xffff0000")
    for i in range(64):
        e("v_mov_b64 v[%d:%d], 0" % (2 * i, 2 * i + 1))
    e("v_mov_b64 v[%d:%d], 0" % (ZA, ZA + 1))
    e("v_mov_b64 v[%d:%d], 0" % (ZA + 2, ZA + 3))
    e("s_waitcnt lgkmcnt(0)")
    srd(e, SO, 18, ACT_OFF, ACT_BYTES)
    srd(e, SG, 18, G_OFF, G_BYTES)
    for q in range(4):
        e("s_add_u32 s46, s21, %d" % q)
        e("s_and_b32 s46, s46, 3")
        e("s_lshl_b32 s47, s40, 2")
        e("s_add_u32 s46, s46, s47")
        e("s_lshl_b32 s47, s22, 3")
        e("s_add_u32 s46, s46, s47")
        if q == 0: e("s_lshl_b32 s54, s46, 7")
        e("s_mul_i32 s46, s46, 68")
        e("s_lshl_b32 s47, s21, 3")
        e("s_add_u32 s46, s46, s47")
        e("s_lshl_b32 s47, s41, 2")
        e("s_add_u32 s46, s46, s47")
        e("s_add_u32 s46, s46, 20")
        e("s_lshl_b32 s%d, s46, 10" % (50 + q))
    def reads(buf, imm, half):
        b = 128 + 52 * buf
        out = []
        for q in range(4):
            out.append("ds_read_b128 %s, v%d offset:%d" % (vr(b + 32 + 4 * q, 4), VCUR + 2 + half, 2048 * q))
        out.append("ds_read_b128 %s, v%d offset:%d" % (vr(b + 48, 4), RG, 64 * half))
        for t in range(8):
            for h in range(2):
                out.append("ds_read_b64_tr_b16 %s, v%d offset:%d" % (vr(b + 4 * t + 2 * h, 2), VCUR + (t & 1), imm + 32 * t + 4352 * h))
        return out
    def mfmas(buf):
        b = 128 + 52 * buf
        out = ["%s %s, %s, %s, %s" % (MF, vr(ZA, 4), vr(b + 48, 4), vr(b + 32, 4), vr(ZA, 4))]
        for t in range(8):
            for q in range(4):
                acc = vr((q * 8 + t) * 4, 4); w = vr(b + 4 * t, 4); x = vr(b + 32 + 4 * q, 4)
                out.append("%s %s, %s, %s, %s" % (MF, acc, w, x, acc))
        return out
    e("s_lshl_b32 s67, s22, 8")
    e("s_lshl_b32 s46, s21, 4")
    e("s_add_u32 s67, s67, s46")
    announce(e, "FA")
    mainloop(e, "FC", FST, reads, mfmas, 4, VB, VCUR, ["v_add_u32 v%d, s48, v%d" % (RG, RG + 1)],
             ["s_add_u32 s48, s48, 128", "s_cmp_eq_u32 s48, 1280", "s_cselect_b32 s48, 0, s48"])
    stamp(e, 2)
    e("s_nop 7")
    L = []
    L.append("v_cvt_pk_bf16_f32 v%d, v%d, v%d" % (ZA, ZA, ZA))
    L.append("v_and_b32 v%d, 0xffff0000, v%d" % (ZA, ZA))
    L.append("v_mul_f32 v%d, 0xbfb8aa3b, v%d" % (ZA, ZA))
    L.append("v_exp_f32 v%d, v%d" % (ZA, ZA))
    L.append("v_add_f32 v%d, 1.0, v%d" % (ZA, ZA))
    L.append("v_rcp_f32 v%d, v%d" % (ZA, ZA))
    L.append("v_cvt_pk_bf16_f32 v%d, v%d, v%d" % (ZA, ZA, ZA))
    L.append("v_and_b32 v%d, 0xffff0000, v%d" % (ZA, ZA))
    L.append("v_sub_f32 v%d, 1.0, v%d" % (ZA + 1, ZA))
    L.append("v_max_f32 v%d, 0x21800000, v%d" % (ZA, ZA))
    L.append("v_cvt_pk_bf16_f32 v%d, v%d, v%d" % (ZA + 1, ZA + 1, ZA + 1))
    L.append("v_rcp_f32 v%d, v%d" % (ZA + 2, ZA))
    L.append("v_and_b32 v%d, 0xffff0000, v%d" % (ZA + 1, ZA + 1))
    L.append("v_mul_f32 v%d, v%d, v%d" % (ZA + 1, ZA + 1, ZA + 2))
    L.append("v_cndmask_b32 v%d, v%d, v%d, s[56:57]" % (ZA, ZA, ZA + 1))
    if not OPT.get("nog", 0): L.append("buffer_store_dword v%d, v245, s[%d:%d], s54 offen%s" % (ZA, SG, SG + 3, SC1))
    for q in range(4):
        for p in range(4):
            a = (q * 8 + 2 * p) * 4
            for k in range(4):
                L.append("v_cvt_pk_bf16_f32 v%d, v%d, v%d" % (a + k, a + 2 * k, a + 2 * k + 1))
            for k in range(4):
                L.append("v_pk_max_i16 v%d, v%d, 0" % (a + k, a + k))
            L.append("buffer_store_dwordx4 %s, v244, s[%d:%d], s%d offen offset:%d%s" % (vr(a, 4), SO, SO + 3, 50 + q, 1024 * p, SC1))
    for x in schedule(L, window=10000):
        e(x)
    if OPT.get("cst", 0): stamp(e, 3)
    e("s_branch P2C")


def announce(e, tag):
    srd(e, 24, 18, FLAG_OFF, FLAG_BYTES)
    srd(e, 28, 62, 0, 256)
    e("s_cmp_eq_u32 s20, 0")
    e("s_cbranch_scc0 %s_SKIP" % tag)
    e("s_mov_b64 exec, 1")
    e("v_mov_b32 v255, 1")
    e("buffer_store_dword v0, off, s[24:27], s67 sc1")
    e("v_mov_b32 v128, %d" % WORDS)
    e("ds_write_b128 v128, v[0:3]")
    e("s_waitcnt vmcnt(0) lgkmcnt(0)")
    e("buffer_atomic_add v255, off, s[28:31], 0 sc1")
    e("s_mov_b64 exec, -1")
    e.label(tag + "_SKIP")


def tile_params(e):
    e("""s_lshr_b32 s46, s2, 3
s_and_b32 s65, s2, 7
s_lshl_b32 s65, s65, 4
s_sub_u32 s47, s46, 10
s_cmp_ge_u32 s46, 18
s_cselect_b32 s47, s47, s46
s_lshr_b32 s64, s47, 1
s_and_b32 s47, s47, 1
s_mul_i32 s47, s47, 5
s_add_u32 s47, s47, 6
s_sub_u32 s46, s46, 18
s_cmp_lt_u32 s46, 10
s_cselect_b32 s64, s46, s64
s_cselect_b32 s47, 0, s47
s_cselect_b32 s66, 6, 5
s_add_u32 s65, s65, s47""")


class Cnt:
    def __init__(self, e, name, mx, init=()):
        self.e, self.name, self.mx, self.q, self.done = e, name, mx, list(init), 0
    def issue(self, tag, ins):
        self.e(ins); self.q.append(tag)
    def wait(self, tags):
        idx = [i for i, t in enumerate(self.q) if t in tags]
        if not idx or idx[-1] < self.done:
            return
        n = min(len(self.q) - 1 - idx[-1], self.mx)
        self.e("s_waitcnt %s(%d)" % (self.name, n))
        self.done = len(self.q) - n


PU = [7, 8, 0, 1, 2, 3]
UN = lambda s: s % 9


def w_setup(e, VW4, VW20, T0):
    e("s_lshl_b32 s58, s20, 12")
    e("s_lshl_b32 s46, s64, 7")
    e("s_mul_i32 s55, s20, %d" % (12 * 40960))
    e("s_add_u32 s55, s55, s46")
    e("s_mul_i32 s56, s20, %d" % (160 * 1280))
    e("s_add_u32 s56, s56, s46")
    e("v_lshrrev_b32 v%d, 3, v%d" % (T0, VL))
    e("v_and_b32 v%d, 6, v%d" % (T0 + 1, T0))
    e("v_xor_b32 v%d, v%d, v%d" % (T0 + 1, T0 + 1, VL))
    e("v_and_b32 v%d, 7, v%d" % (T0 + 1, T0 + 1))
    e("v_mul_u32_u24 v%d, 1280, v%d" % (VW4, T0))
    e("v_lshl_add_u32 v%d, v%d, 4, v%d" % (VW4, T0 + 1, VW4))
    e("v_lshrrev_b32 v%d, 5, v%d" % (T0, VL))
    e("v_mul_u32_u24 v%d, %d, v%d" % (VW20, 16 * 1280, T0))
    e("v_add_u32 v%d, v%d, v%d" % (VW20, VW20, VW4))


def w_src(s, n, VW4, VW20, S2, SWO):
    if s < 12: base, c0, G, J, vw, sd = "s55", 40960 * s, 4, 16, VW4, S2
    elif s < 16: base, c0, G, J, vw, sd = "s56", 51200 * (s - 12), 4, 20, VW4, SWO
    else: base, c0, G, J, vw, sd = "s56", 16 * 1280, 20, 80, VW20, SWO
    return base, c0 + (2 * G * (n >> 1) + J * (n & 1)) * 1280, vw, sd


def gen_p2l(e):
    NS, NH, AD = 17, 12, 5
    WF, AR = 96, 112
    VA, VW4, VW20, AT, VPH, VPO, VP, VC, PW, T0 = 232, 238, 239, 240, 244, 245, 246, 247, 248, 252
    S2, SWO, SA, SF, SD = 88, 92, 32, 36, 68
    LST = [None, [0, 4, 8, 12], [5, 6, 7, 8], [9, 10, 11, 12], [13, 14, 15, 16], [1, 2, 3, 4]][OPT.get("lst", 0)]
    e.label("P2S")
    tile_params(e)
    srd(e, S2, 14, 0, 1536 * 1280)
    srd(e, SWO, 8, 0, 640 * 1280)
    srd(e, SA, 18, 0, WS_SPAN)
    srd(e, SF, 18, FLAG_OFF, FLAG_BYTES)
    srd(e, SD, 62, 0, 256)
    w_setup(e, VW4, VW20, T0)
    e("s_mul_i32 s50, s20, 12288")
    e("s_add_u32 s50, s50, 20480")
    e("s_add_u32 s51, s50, 4096")
    e("s_add_u32 s52, s50, 8192")
    R2 = OPT.get("rot2", 1)
    if R2:
        e("s_mul_i32 s6, s64, %d" % R2)
        e("s_mul_i32 s7, s6, 171")
        e("s_lshr_b32 s7, s7, 11")
        e("s_mul_i32 s7, s7, 12")
        e("s_sub_u32 s6, s6, s7")
        e("s_mul_i32 s7, s6, 40960")
        e("s_add_u32 s55, s55, s7")
        e("s_sub_u32 s7, s55, %d" % (12 * 40960))
        e("s_lshl_b32 s51, s6, 10")
        e("s_add_u32 s50, s50, s51")
        e("s_sub_u32 s51, s50, 12288")
    e("s_and_b32 s46, s65, 1")
    e("s_mul_i32 s10, s20, %d" % (4 * KS))
    e("s_add_u32 s10, s10, %d" % OB1)
    e("s_add_u32 s11, s10, %d" % PS)
    e("s_mul_i32 s53, s20, %d" % (8 * CS))
    e("s_add_u32 s53, s53, %d" % OB2)
    e("s_add_u32 s57, s53, %d" % PS2)
    e("s_mul_i32 s47, s46, %d" % PS)
    e("s_add_u32 s10, s10, s47")
    e("s_sub_u32 s11, s11, s47")
    e("s_mul_i32 s47, s46, %d" % PS2)
    e("s_add_u32 s53, s53, s47")
    e("s_sub_u32 s57, s57, s47")
    e("s_mul_i32 s46, s65, %d" % RB_STRIDE)
    e("v_lshl_add_u32 v%d, v%d, 4, s46" % (VA, VL))
    for q in range(1, 6):
        e("v_add_u32 v%d, %d, v%d" % (VA + q, RB_STRIDE * q, VA))
    e("s_cmp_eq_u32 s66, 5")
    e("s_cselect_b32 s46, 0x40000000, 0")
    e("v_or_b32 v%d, s46, v%d" % (VA + 5, VA + 5))
    e("v_bfe_u32 v%d, v%d, 2, 3" % (T0 + 1, VL))
    e("v_lshl_add_u32 v%d, v%d, 11, s58" % (AT, T0))
    e("v_lshl_add_u32 v%d, v%d, 7, v%d" % (AT, T0 + 1, AT))
    e("v_lshrrev_b32 v%d, 1, v%d" % (T0 + 1, T0 + 1))
    e("v_lshl_add_u32 v%d, v%d, 5, v%d" % (AT, T0 + 1, AT))
    e("v_and_b32 v%d, 3, v%d" % (T0 + 1, VL))
    e("v_lshl_add_u32 v%d, v%d, 3, v%d" % (AT, T0 + 1, AT))
    for t in range(1, 4):
        e("v_xor_b32 v%d, %d, v%d" % (AT + t, 32 * t, AT))
    e("v_lshl_add_u32 v%d, v%d, 1, v%d" % (T0 + 1, T0, VL))
    e("v_and_b32 v%d, 48, v%d" % (VP, VL))
    e("v_lshl_add_u32 v%d, v%d, 4, s58" % (VP, VP))
    for t in range(4):
        e("v_add_u32 v%d, %d, v%d" % (PW + t, 4 * t, T0 + 1))
        e("v_and_b32 v%d, 15, v%d" % (PW + t, PW + t))
        e("v_lshl_add_u32 v%d, v%d, 4, v%d" % (PW + t, PW + t, VP))
    e("s_add_u32 s47, s65, s66")
    e("s_sub_u32 s47, s47, 1")
    e("s_lshr_b32 s54, s65, 3")
    e("s_lshr_b32 s49, s47, 3")
    e("s_sub_u32 s49, s49, s54")
    e("s_lshl_b32 s54, s54, 8")
    e("s_lshl_b32 s49, s49, 8")
    e("v_and_b32 v%d, 31, v%d" % (T0 + 1, VL))
    e("v_lshlrev_b32 v%d, 2, v%d" % (T0 + 1, T0 + 1))
    e("v_mad_u32_u24 v%d, v%d, s49, v%d" % (VPH, T0, T0 + 1))
    e("v_add_u32 v%d, s54, v%d" % (VPH, VPH))
    e("v_lshrrev_b32 v%d, 4, v%d" % (T0 + 1, VL))
    e("v_mul_u32_u24 v%d, %d, v%d" % (T0 + 1, GS, T0 + 1))
    e("v_add_u32 v%d, 256, v%d" % (T0 + 1, T0 + 1))
    e("v_and_b32 v%d, 15, v%d" % (VL, VL))
    e("v_mov_b32 v%d, %d" % (VPO, WORDS))
    e("s_mov_b32 s98, 0x111111")
    e("s_mov_b32 s99, 0x111111")
    e("s_movk_i32 s97, 240")
    if OPT.get("ns", 0):
        e("s_lshr_b32 s59, s2, 3")
        e("s_lshl_b32 s59, s59, 2")
        e("s_add_u32 s59, s59, s20")
        e("s_mul_i32 s59, s59, %d" % (8 * 128 * OPT["ns"]))
    e("s_cmp_lt_u32 s2, 144")
    e("s_cbranch_scc1 QL_RET")
    e("s_branch FL_RET")
    e.label("P2L")
    vm = Cnt(e, "vmcnt", 63, ["p8"] * 12 + ["t"] * OPT.get("tw", 0) + ["p9"] * 12 + ["t"] * OPT.get("tw", 0))
    lg = Cnt(e, "lgkmcnt", 15)

    def wdma(s):
        if s >= NS: return
        if s < NH: base, c0, G, J, vw, sd = "s55", 40960 * s, 4, 16, VW4, S2
        elif s < NS - 1: base, c0, G, J, vw, sd = "s56", 51200 * (s - NH), 4, 20, VW4, SWO
        else: base, c0, G, J, vw, sd = "s56", 16 * 1280, 20, 80, VW20, SWO
        if OPT.get("exp", 0) & 16: c0 = 0
        if R2 and s < NH:
            e("s_cmp_ge_u32 s6, %d" % (12 - s))
            e("s_cselect_b32 s47, s7, s55")
            base = "s47"
        e("s_add_u32 m0, s58, %d" % (16384 * UN(s)))
        for n in range(4):
            e("s_add_u32 s46, %s, %d" % (base, c0 + (2 * G * (n >> 1) + J * (n & 1)) * 1280 - 1024 * n))
            vm.issue(("W", s), "buffer_load_dwordx4 v%d, s[%d:%d], s46 offen offset:%d lds" % (vw, sd, sd + 3, 1024 * n))

    EXP = OPT.get("exp", 0)
    WR = OPT.get("wr", 1)
    if WR:
        SLOT = {0: 0, 1: 1, 2: 2}
        ISS = {}
        nxt = 3
        for s in range(NS):
            free = [SLOT[s]] + ([3] if s == 2 else [4] if s == 3 else [])
            ISS[s] = []
            for f in free:
                SLOT[nxt] = f; ISS[s].append(nxt); nxt += 1
    else:
        SLOT = {s: s % AD for s in range(NS + AD)}
        ISS = {s: [s + AD] for s in range(NS)}
    def WREG(s): return AR + 72 + 16 * (s - 1) if WR and 1 <= s <= 3 else WF
    def aload(s, q):
        if s >= NS: return
        if EXP & 1 and s >= AD: return
        r = AR + 24 * SLOT[s] + 4 * q
        if s < NH and R2:
            so, im = "s52", 0
            if q == 0:
                e("s_cmp_ge_u32 s6, %d" % (12 - s))
                e("s_cselect_b32 s52, s51, s50")
                e("s_add_u32 s52, s52, %d" % (1024 * s))
        elif s < NH: so, im = "s%d" % (50 + (s >> 2)), 1024 * (s & 3)
        elif s < NS - 1:
            so, im = "s%d" % (10 + (q & 1)), 0
            if s > NH and q < 2: e("s_add_u32 %s, %s, %d" % (so, so, KS))
        else:
            e("v_lshrrev_b32 v%d, 1, v%d" % (VA + q, VA + q))
            so = "s57" if q & 1 else "s53"
            e("s_add_u32 s46, %s, %d" % (so, 4 * CS))
            for k in range(2):
                vm.issue(("A", s), "buffer_load_dwordx2 %s, v%d, s[%d:%d], %s offen sc1" % (vr(r + 2 * k, 2), VA + q, SA, SA + 3, "s46" if k else so))
            return
        if EXP & 32: so, im = "s50", 0
        vm.issue(("A", s), "buffer_load_dwordx4 %s, v%d, s[%d:%d], %s offen offset:%d sc1" % (vr(r, 4), VA + q, SA, SA + 3, so, im))

    def oaddr(q):
        v = VA + q
        e("s_add_u32 s46, s65, %d" % q)
        e("s_lshr_b32 s46, s46, 1")
        e("s_lshl_b32 s46, s46, 4")
        e("v_add_u32 v%d, s46, v%d" % (v, VL))
        e("v_mul_u32_u24 v%d, 1150, v%d" % (T0, v))
        e("v_lshrrev_b32 v%d, 16, v%d" % (T0, T0))
        e("v_lshl_add_u32 v%d, v%d, 5, v%d" % (v, T0, v))
        e("v_lshl_add_u32 v%d, v%d, 4, v%d" % (v, v, T0 + 1))
        if q == 5:
            e("s_cmp_eq_u32 s66, 5")
            e("s_cselect_b32 s46, 0x40000000, 0")
            e("v_or_b32 v%d, s46, v%d" % (v, v))

    def lcheck(tag, off, first=True):
        if not first:
            e("v_cmp_ne_u32 vcc, 0, v%d" % VP)
            e("s_cbranch_vccnz %s_OK" % tag)
        e.label(tag + "_SPIN")
        e("ds_read_b32 v%d, v%d offset:%d" % (VP, VPO, off))
        e("s_waitcnt lgkmcnt(0)")
        e("v_cmp_ne_u32 vcc, 0, v%d" % VP)
        e("s_cbranch_vccz %s_SPIN" % tag)
        e.label(tag + "_OK")

    atb = [0] * 4
    def wread(s, t):
        if s >= NS: return
        if EXP & 2 and s >= 1: return
        u = UN(s)
        if atb[t] != u >> 2:
            e("v_add_u32 v%d, 0x%x, v%d" % (AT + t, (65536 * ((u >> 2) - atb[t])) & 0xffffffff, AT + t)); atb[t] = u >> 2
        for h in range(2):
            lg.issue(("R", s, t), "ds_read_b64_tr_b16 %s, v%d offset:%d" % (vr(WREG(s) + 4 * t + 2 * h, 2), AT + t, (u & 3) * 16384 + 1024 * h))

    def check(tag, vres, vaddr, sd, val, mask):
        def cmp():
            e("v_cmp_ne_u32 s[48:49], %s, v%d" % (val, vres))
            e("s_and_b64 s[48:49], s[48:49], %s" % mask)
            e("s_cbranch_scc0 %s_OK" % tag)
        cmp()
        e("s_mov_b32 s59, 0")
        e.label(tag + "_SPIN")
        e("buffer_load_dword v%d, %s, s[%d:%d], 0 %ssc1" % (vres, "v%d" % vaddr if vaddr else "off", sd, sd + 3, "offen " if vaddr else ""))
        e("s_add_u32 s59, s59, 1")
        e("s_waitcnt vmcnt(0)")
        cmp()
        if OPT.get("psleep", 0): e("s_sleep %d" % OPT["psleep"])
        e("s_cmp_lt_u32 s59, %d" % SPIN)
        e("s_cbranch_scc1 %s_SPIN" % tag)
        e.label(tag + "_OK")

    vm.wait(["p8"])
    e("s_barrier")
    WQ = OPT.get("wq", 9)
    for s in range(min(3, WQ)): wdma(s)
    vm.wait(["p9"])
    e("s_barrier")
    vm.issue("C", "buffer_load_dword v%d, off, s[%d:%d], 0 sc1" % (VC, SD, SD + 3))
    for s in range(3, min(6, WQ)): wdma(s)
    e("s_barrier")
    if not LST: stamp(e, 1)
    GATE = OPT.get("gate", 2)
    if OPT.get("ns", 0): e("s_waitcnt lgkmcnt(0)")
    def gate():
        e("s_cmp_lt_u32 s2, 144")
        e("s_cbranch_scc1 GT_OK")
        e.label("GT_SPIN")
        e("ds_read_b32 v%d, v%d" % (VP, VPO))
        e("s_waitcnt lgkmcnt(0)")
        e("v_cmp_ne_u32 vcc, 4, v%d" % VP)
        e("s_cbranch_vccnz GT_SPIN")
        e.label("GT_OK")
    if GATE < 2:
        for s in range(6, min(9, WQ)): wdma(s)
    if WR:
        for s in range(4):
            vm.wait([("W", s)])
            for t in range(4): wread(s, t)
        lg.wait([("R", 3, 3)])
    if GATE: gate()
    if GATE == 2:
        for s in range(6, min(9, WQ)): wdma(s)
    if WR:
        for s in range(9, 13): wdma(s)
    vm.wait(["C"])
    e("s_cmp_eq_u32 s20, 0")
    e("s_cbranch_scc0 LH_SPIN")
    e("v_mov_b32 v%d, 0" % VP)
    check("CK", VC, 0, SD, "s97", "exec")
    check("PH", VP, VPH, SF, "1", "s[98:99]")
    e("v_mov_b32 v%d, 1" % VP)
    e("ds_write_b32 v%d, v%d offset:4" % (VPO, VP))
    e("s_branch LH_OK")
    lcheck("LH", 4)
    if not LST: stamp(e, 2)
    lg.q.append("x")
    for s in range(3 if WR else AD):
        for q in range(6): aload(s, q)
    if not WR:
        vm.wait([("W", 0)])
        for t in range(4): wread(0, t)

    pwb = [0] * 4
    CW = OPT.get("cw", 0)
    def pwrite(t, tag):
        for q in (range(6) if pwb[t] else [2, 3, 4, 5, 0, 1]):
            hi = 1 if PU[q] >= 7 else 0
            if pwb[t] != hi:
                e("v_add_u32 v%d, 0x%x, v%d" % (PW + t, (7 * 16384 * (hi - pwb[t])) & 0xffffffff, PW + t)); pwb[t] = hi
            lg.issue(tag, "ds_write_b128 v%d, %s offset:%d" % (PW + t, vr(16 * q + 4 * t, 4), 16384 * (PU[q] - 7 * hi) + 1024 * t))

    RR = [VPH, VPO, VP, VC, T0, 255]
    for s in range(NS):
        vm.wait([("A", s), ("W", s + 1)])
        if LST:
            if s in LST: stamp(e, 1 + LST.index(s))
        else:
            if s == 0: stamp(e, 3)
            if s == NH + 1: stamp(e, 4)
        for t in range(4):
            lg.wait([("R", s, t)])
            if t == 3 and s + AD == NH:
                if CW: e("s_barrier")
                else:
                    lg.wait(["PO"])
                    lcheck("PO", 8, False)
                e("s_lshl_b32 s46, s65, 7")
                e("s_add_u32 s46, s46, %d" % (G_OFF + 64))
                e("v_lshl_add_u32 v%d, v%d, 2, s46" % (T0 + 1, VL))
                e("v_and_b32 v255, 0x40000000, v%d" % (VA + 5))
                e("v_or_b32 v255, v255, v%d" % (T0 + 1))
                for q in range(6):
                    vm.issue("G", "buffer_load_dword v%d, v%d, s[%d:%d], 0 offen offset:%d sc1" % (RR[q], 255 if q == 5 else T0 + 1, SA, SA + 3, 128 * q))
            sc = t + 1 if s == NH and t < 3 else (0 if s == NH - 1 and t == 3 else None)
            if sc == 0: vm.wait(["G"])
            for q in range(6):
                acc = vr(16 * q + 4 * t, 4)
                if not (EXP & 4): e("%s %s, %s, %s, %s" % (MF, acc, vr(WREG(s) + 4 * t, 4), vr(AR + 24 * SLOT[s] + 4 * q, 4), "0" if s == 0 else acc))
                if t == 3: aload(ISS[s][0], q)
                if s + AD == NH and t < 2 and q % 2 == 0: oaddr(3 * t + q // 2)
                if sc is not None:
                    for j in range(4):
                        e("v_mul_f32 v%d, v%d, v%d" % (16 * q + 4 * sc + j, RR[q], 16 * q + 4 * sc + j))
            if CW and t == 0 and s in (OPT.get("x1", 4), NH): e("s_barrier")
            if not (WR and s < 3): wread(s + 1, t)
            if t == 3 and len(ISS[s]) > 1:
                for q in range(6): aload(ISS[s][1], q)
            if s + AD == NH and t == 1 and not CW:
                lg.issue("PO", "ds_read_b32 v%d, v%d offset:8" % (VP, VPO))
            if t == 3 and not (EXP & 8) and not CW and not (WR and s < 4): wdma(s + 9)
            if s == NS - 1 and t: pwrite(t - 1, "PWO")
    e("s_nop 7")
    pwrite(3, "PWO")
    lg.wait(["PWO"])
    e("s_barrier")
    stamp(e, 5, True)
    stamp_flush(e, 4, 0)
    e("s_endpgm")


def gen_p2c(e):
    RA, OA, GA, GV, T0 = 200, 204, 208, 212, 220
    e.label("P2C")
    def publish(n):
        e("v_mov_b32 v255, 1")
        e("v_mov_b32 v%d, %d" % (T0 + 5, WORDS))
        e("s_mov_b64 exec, 1")
        e("s_waitcnt vmcnt(%d)" % n)
        e("ds_add_rtn_u32 v%d, v%d, v255" % (T0 + 4, T0 + 5))
        e("s_waitcnt lgkmcnt(0)")
        e("v_readfirstlane_b32 s59, v%d" % (T0 + 4))
        e("s_cmp_eq_u32 s59, 3")
        e("s_cbranch_scc0 PUB_SKIP")
        e("buffer_store_dword v255, off, s[24:27], s67 sc1")
        e.label("PUB_SKIP")
        e("s_mov_b64 exec, -1")
        stamp(e, 4 if OPT.get("cst", 0) else 3)
    EARLY = OPT.get("early", 0)
    if not EARLY: publish(0)
    tile_params(e)
    srd(e, 28, 60, 0, 2048 * 1280)
    srd(e, 36, 18, G_OFF, G_BYTES)
    e("v_mbcnt_lo_u32_b32 v%d, -1, 0" % VL)
    e("v_mbcnt_hi_u32_b32 v%d, -1, v%d" % (VL, VL))
    CW = OPT.get("cw", 0)
    if CW:
        srd(e, 88, 14, 0, 1536 * 1280)
        srd(e, 92, 8, 0, 640 * 1280)
        w_setup(e, 228, 229, T0)
        for s in range(9, 17):
            for n in range(4):
                base, c0, vw, sd = w_src(s, n, 228, 229, 88, 92)
                e("s_add_u32 s46, %s, %d" % (base, c0))
                e("buffer_load_dwordx4 %s, v%d, s[%d:%d], s46 offen" % (vr(16 * (s - 9) + 4 * n, 4), vw, sd, sd + 3))
        e("v_lshl_add_u32 v230, v%d, 4, s58" % VL)
        e("v_add_u32 v231, 0x10000, v230")
        e("v_add_u32 v232, 0x20000, v230")
        if EARLY: publish(32)
    def wput(s0):
        for s in range(s0, s0 + 4):
            for n in range(4):
                if n == 0 and s0 == 9: e("s_waitcnt vmcnt(%d)" % (4 * (16 - s)))
                u = UN(s)
                e("ds_write_b128 v%d, %s offset:%d" % (230 + (u >> 2), vr(16 * (s - 9) + 4 * n, 4), 16384 * (u & 3) + 1024 * n))
    e("v_lshrrev_b32 v%d, 3, v%d" % (T0, VL))
    e("v_and_b32 v%d, 7, v%d" % (T0 + 1, VL))
    e("v_lshl_add_u32 v%d, v%d, 1, v%d" % (T0 + 2, T0 + 1, T0))
    e("v_mul_u32_u24 v%d, 2560, v%d" % (T0 + 3, T0))
    e("v_lshl_add_u32 v%d, v%d, 4, v%d" % (T0 + 3, T0 + 1, T0 + 3))
    e("s_lshl_b32 s50, s64, 7")
    for k in range(3):
        e("s_mul_i32 s46, s20, 3")
        if k: e("s_add_u32 s46, s46, %d" % k)
        e("s_lshr_b32 s47, s46, 1")
        e("s_and_b32 s46, s46, 1")
        e("s_lshl_b32 s46, s46, 3")
        e("s_add_u32 s48, s47, 7")
        e("s_sub_u32 s49, s47, 2")
        e("s_cmp_lt_u32 s47, 2")
        e("s_cselect_b32 s48, s48, s49")
        e("s_lshl_b32 s48, s48, 14")
        e("v_add_u32 v%d, s46, v%d" % (RA + k, T0 + 2))
        e("v_and_b32 v%d, 15, v%d" % (RA + k, RA + k))
        e("v_lshl_add_u32 v%d, v%d, 4, s48" % (RA + k, RA + k))
        e("v_lshl_add_u32 v%d, v%d, 9, v%d" % (RA + k, T0 + 1, RA + k))
        e("s_cmp_lt_u32 s47, s66")
        e("s_cselect_b32 s51, 0, 0x40000000")
        e("s_add_u32 s47, s47, s65")
        e("s_lshl_b32 s48, s47, 5")
        e("s_add_u32 s48, s48, s46")
        e("s_lshl_b32 s48, s48, 2")
        e("s_or_b32 s48, s48, s51")
        e("v_lshl_add_u32 v%d, v%d, 2, s48" % (GA + k, T0))
        e("s_lshr_b32 s48, s47, 1")
        e("s_lshl_b32 s48, s48, 4")
        e("s_add_u32 s48, s48, s46")
        e("s_lshl_b32 s48, s48, 1")
        e("s_and_b32 s47, s47, 1")
        e("s_add_u32 s48, s48, s47")
        e("s_mul_i32 s48, s48, 1280")
        e("s_add_u32 s48, s48, s50")
        e("s_or_b32 s48, s48, s51")
        e("v_add_u32 v%d, s48, v%d" % (OA + k, T0 + 3))
    def reads(b):
        for k in range(3):
            for w in range(4):
                for h in range(2):
                    e("ds_read_b128 %s, v%d offset:%d" % (vr(b + 32 * k + 8 * w + 4 * h, 4), RA + k, 4096 * w + 256 * h))
    def sums(b, k):
        r = b + 32 * k
        for a, c in ((0, 8), (16, 24), (0, 16)):
            for j in range(0, 8, 2):
                e("v_pk_add_f32 %s, %s, %s" % (vr(r + a + j, 2), vr(r + a + j, 2), vr(r + c + j, 2)))
    if CW:
        e("s_barrier")
        wput(9)
    if not CW:
        e.label("CH_SPIN")
        e("ds_read_b32 v%d, v%d offset:4" % (T0 + 4, T0 + 5))
        e("s_waitcnt lgkmcnt(0)")
        e("v_cmp_ne_u32 vcc, 0, v%d" % (T0 + 4))
        e("s_cbranch_vccz CH_SPIN")
    for k in range(3):
        e("buffer_load_dword v%d, v%d, s[36:39], 0 offen sc1" % (GV + k, GA + k))
    e("s_cmp_eq_u32 s59, 3")
    e("s_cbranch_scc0 OP_OK")
    e("s_add_u32 s47, s65, s66")
    e("s_sub_u32 s47, s47, 1")
    e("s_lshr_b32 s54, s65, 1")
    e("s_mul_i32 s54, s54, %d" % (16 * 1150))
    e("s_lshr_b32 s54, s54, 16")
    e("s_lshr_b32 s49, s47, 1")
    e("s_mul_i32 s49, s49, %d" % (16 * 1150))
    e("s_add_u32 s49, s49, %d" % (15 * 1150))
    e("s_lshr_b32 s49, s49, 16")
    e("s_sub_u32 s49, s49, s54")
    e("s_lshl_b32 s54, s54, 8")
    e("s_add_u32 s54, s54, 4096")
    e("s_lshl_b32 s49, s49, 8")
    e("v_and_b32 v%d, 1, v%d" % (T0 + 6, T0))
    e("v_mul_u32_u24 v%d, s49, v%d" % (T0 + 6, T0 + 6))
    e("v_lshl_add_u32 v%d, v%d, 4, v%d" % (T0 + 6, T0 + 1, T0 + 6))
    e("s_mov_b64 exec, 0xffff")
    e("s_mov_b32 s59, 0")
    e.label("OP_SPIN")
    e("buffer_load_dword v%d, v%d, s[24:27], s54 offen sc1" % (T0 + 4, T0 + 6))
    e("s_add_u32 s59, s59, 1")
    e("s_waitcnt vmcnt(0)")
    e("v_cmp_ne_u32 vcc, 1, v%d" % (T0 + 4))
    e("s_cbranch_vccz OP_SET")
    e("s_cmp_lt_u32 s59, %d" % SPIN)
    e("s_cbranch_scc1 OP_SPIN")
    e.label("OP_SET")
    if not CW: e("ds_write_b32 v%d, v255 offset:8" % (T0 + 5))
    e("s_mov_b64 exec, -1")
    e.label("OP_OK")
    e("s_waitcnt lgkmcnt(0)")
    if CW:
        e("s_barrier")
        e("s_waitcnt vmcnt(0)")
        wput(13)
        e("s_waitcnt lgkmcnt(0)")
        e("s_barrier")
    if not OPT.get("cst", 0): stamp(e, 4)
    e("s_waitcnt vmcnt(0)")
    e("s_barrier")
    reads(0)
    for k in range(3):
        e("s_waitcnt lgkmcnt(%d)" % min(15, 8 * (2 - k)))
        sums(0, k)
        for j in range(8):
            e("v_mul_f32 v%d, v%d, v%d" % (32 * k + j, GV + k, 32 * k + j))
        for j in range(4):
            e("v_cvt_pk_bf16_f32 v%d, v%d, v%d" % (32 * k + 8 + j, 32 * k + 2 * j, 32 * k + 2 * j + 1))
        e("buffer_store_dwordx4 %s, v%d, s[28:31], 0 offen" % (vr(32 * k + 8, 4), OA + k))
    stamp(e, 5, True)
    stamp_flush(e, 0, 224)
    e("s_endpgm")


def gen_spare(e):
    mode = OPT.get("spare", 2)
    if not mode:
        return
    e("s_sub_u32 s46, s22, 30")
    e("s_lshl_b32 s46, s46, 9")
    e("v_add_u32 v1, s46, v0")
    e("v_lshlrev_b32 v1, 7, v1")
    e("s_waitcnt lgkmcnt(0)")
    srd(e, 24, 14, 0, 1536 * 1280)
    srd(e, 28, 8, 0, 640 * 1280)
    if OPT.get("kp", 1):
        k0 = OPT.get("k0", 5)
        srd(e, 32, 4, 0, 2048 * 1280)
        srd(e, 36, 6, 0, 640 * 3840)
        srd(e, 40, 12, 0, 640 * 3072)
        e("s_sub_u32 s46, s2, 240")
        e("s_lshl_b32 s46, s46, 1")
        e("s_and_b32 s47, s20, 1")
        e("s_add_u32 s46, s46, s47")
        e("s_lshl_b32 s46, s46, 6")
        e("v_add_u32 v4, s46, v%d" % VL)
        e("s_lshr_b32 s47, s20, 1")
        for i, (sd, mul, n, step) in enumerate(((32, 1280, 2048, 128), (36, 128, 1920, 64 * 3840), (40, 128, 1536, 64 * 3072))):
            e("s_cmp_eq_u32 s47, %d" % i)
            e("s_cbranch_scc0 KP%d" % i)
            e("s_cmp_ge_u32 s46, %d" % n)
            e("s_cbranch_scc1 KP_END")
            e("v_mul_u32_u24 v4, %d, v4" % mul)
            for k in range(k0, 10):
                e("s_mov_b32 s48, %d" % (step * k))
                e("buffer_load_dword v3, v4, s[%d:%d], s48 offen" % (sd, sd + 3))
            e("s_branch KP_END")
            e.label("KP%d" % i)
        e.label("KP_END")
        if OPT.get("kb", 1): e("s_barrier")
    n2, no = {1: (15, 7), 2: (2, 1), 3: (0, 7)}[mode]
    dep = OPT.get("sdep", 1)
    e("s_lshl_b32 s46, s21, 1")
    e("s_mov_b32 s49, s21")
    def touch(sc, lim, sd):
        e("s_cmp_ge_u32 s%d, %d" % (sc, lim))
        e("s_cselect_b32 s%d, 0, s%d" % (sc, sc))
        e("s_lshl_b32 s47, s%d, 17" % sc)
        e("v_add_u32 v2, s47, v1")
        e("buffer_load_dword v3, v2, s[%d:%d], 0 offen" % (sd, sd + 3))
        e("s_add_u32 s%d, s%d, 1" % (sc, sc))
        e("s_waitcnt vmcnt(%d)" % dep)
    c0 = 120 * 8 * OPT.get("ns", 0) // 1024
    for i in range(n2 if not c0 else 2):
        touch(46, 15, 24)
        if i == 1: touch(49, 7, 28)
    if c0:
        e("s_mov_b32 s46, %d" % c0)
        for i in range(c0, 15): touch(46, 15, 24)
    for i in range(no - 1): touch(49, 7, 28)


def main():
    K = NAME + "_kernel"
    e = Asm()
    e.label(K)
    e("s_cmp_ge_u32 s2, 256")
    e("s_cbranch_scc1 K_END")
    e("s_load_dwordx8 s[4:11], s[0:1], 0")
    e("s_load_dwordx4 s[12:15], s[0:1], 32")
    e("s_load_dwordx2 s[16:17], s[0:1], 48")
    e("s_load_dwordx2 s[18:19], s[0:1], 72")
    e("s_load_dwordx2 s[60:61], s[0:1], 56")
    e("s_load_dwordx2 s[62:63], s[0:1], 64")
    stamp(e, 0)
    e("v_lshrrev_b32 v1, 6, v0")
    e("v_and_b32 v%d, 63, v0" % VL)
    e("v_readfirstlane_b32 s20, v1")
    e("s_and_b32 s21, s2, 7")
    e("s_lshr_b32 s22, s2, 3")
    e("s_cmp_ge_u32 s22, 30")
    e("s_cbranch_scc1 K_SPARE")
    e("s_cmp_ge_u32 s22, 18")
    e("s_cbranch_scc1 K_FFN")
    gen_qkv(e)
    e.label("K_FFN")
    gen_ffn(e)
    gen_p2c(e)
    gen_p2l(e)
    e.label("K_SPARE")
    gen_spare(e)
    e.label("K_END")
    e("s_endpgm")
    out = "; @launch grid=(256,1,1) block=(512,1,1) lds=%d\n" % K1_LDS
    out += '.amdgcn_target "amdgcn-amd-amdhsa--gfx950"\n.text\n'
    out += ".globl %s\n.p2align 8\n.type %s,@function\n" % (K, K) + e.text()
    out += '.section .rodata,"a"\n.p2align 6\n' + kd(K, 256, 256)
    open(sys.argv[1], "w").write(out)


if __name__ == "__main__":
    main()
```

```python
import struct, sys
from gen import Asm, vr, ar, sr, srd, interleave, kd, OPT, NAME, ACT_OFF, RB_STRIDE, ACT_BYTES, G_OFF, G_BYTES, STAMP_OFF
from sched import schedule
FLAG_OFF = 0xC10000
FLAG_BYTES = 16384
SPIN = 20000
G_BYTES = 128 * 128
OB1, OB2, WS_SPAN = 0x1100000, 0x1420000, 0x1500000
GS = 1600 * 16
KS, PS = 4 * GS, 64 * GS
CS = GS // 2
PS2 = 32 * CS
WORDS = 163840 - 16
OPT.setdefault("map", 1)


def stamp(e, idx, last=False):
    if not OPT["stamp"]:
        return
    e("s_memtime s[%d:%d]" % (72 + 2 * idx, 73 + 2 * idx))
    if idx == 0:
        e("s_memrealtime s[84:85]")
    if last:
        e("s_memrealtime s[86:87]")


def stamp_flush(e, wadd, vt):
    if not OPT["stamp"]:
        return
    e("s_waitcnt lgkmcnt(0)")
    srd(e, 24, 18, STAMP_OFF, 0x40000)
    e("s_lshl_b32 s96, s2, 3")
    e("s_add_u32 s96, s96, s20")
    e("s_add_u32 s96, s96, %d" % wadd)
    e("s_lshl_b32 s96, s96, 6")
    e("s_mov_b64 exec, 1")
    for i in range(8):
        e("v_mov_b32 v%d, s%d" % (vt + i, 72 + 2 * i))
        e("buffer_store_dword v%d, off, s[24:27], s96 offset:%d" % (vt + i, 4 * i))

K1_LDS = 163840
QST = 16384
FST = 17408
GT_OFF = 6 * FST + 3 * 16384
NEG = 0xEF800000
SC1 = [" sc1", "", " sc0 sc1", " sc1 nt"][OPT.get("st", 0)]
MF = "v_mfma_f32_16x16x32_bf16"

def f2u(x):
    return struct.unpack("<I", struct.pack("<f", x))[0]

SWAVE, SX, SY = 20, 21, 22
SW, SXS, SO, SG = 24, 28, 32, 36
VL = 254


def loader(e, tag, wst, wimm, wstep, pre=None):
    pair = 2 * wst + 16384
    xstep = 128
    e("s_mov_b32 s42, %d" % (2 * pair))
    e("s_mul_i32 s43, s48, %d" % (2 * wstep))
    e("s_mul_i32 s44, s48, %d" % xstep)
    e("s_mov_b32 s45, 0")
    TW = OPT.get("tw", 0)
    if TW:
        srd(e, 88, 14, 0, 1536 * 1280)
        e("s_lshr_b32 s46, s2, 3")
        e("s_lshl_b32 s46, s46, 11")
        e("s_mul_i32 s47, s20, 491520")
        e("s_add_u32 s46, s46, s47")
        e("v_lshl_add_u32 v19, v%d, 7, s46" % VL)
        e("v_lshlrev_b32 v20, 26, v%d" % VL)
        e("v_and_b32 v20, 0xc0000000, v20")
        e("v_or_b32 v19, v19, v20")
    if pre: pre()
    def W(so):
        for i in range(4):
            e("buffer_load_dwordx4 v%d, s[%d:%d], %s offen offset:%d lds" % (10 + i, SW, SW + 3, so, wimm * i))
    def X(j):
        for i in range(2):
            e("buffer_load_dwordx4 v%d, s[%d:%d], s44 offen offset:%d lds" % (14 + 2 * j + i, SXS, SXS + 3, 1024 * i))
    P3 = OPT.get("pre3", 0)
    PA = OPT.get("pa", 0)
    PB = OPT.get("pb", 0)
    for lab, lim in ([("_PRE", 1), ("_RET", 2), ("_RL", 10)] if PB else [("_PRE", 2 + P3)] + ([("_MID", PA)] if PA else []) + [("_RET", 10)]):
        e.label(tag + lab)
        if lim == 10 and P3:
            e("s_waitcnt vmcnt(24)")
            e("s_barrier")
            lab = "_RL"
            e.label(tag + lab)
        if lab != "_PRE" and lim > 2:
            e("s_waitcnt vmcnt(%d)" % (14 if TW else 12))
            e("s_barrier")
        e("s_add_u32 m0, s42, s41")
        e("s_add_u32 s46, s43, %d" % wstep)
        X(0)
        e("s_add_u32 m0, m0, 2048")
        e("s_add_u32 s48, s48, 1")
        X(1)
        e("s_add_u32 m0, s42, s40")
        e("s_add_u32 s44, s44, %d" % xstep)
        W("s43")
        e("s_add_u32 m0, m0, %d" % wst)
        e("s_add_u32 s43, s43, %d" % (2 * wstep))
        W("s46")
        NSM = OPT.get("ns", 0)
        if NSM and lim == 10:
            for i in range(NSM):
                e("s_buffer_load_dword s96, s[88:91], s59 offset:%d" % (128 * i))
            e("s_add_u32 s59, s59, %d" % (128 * NSM))
        if TW:
            e("buffer_load_dword v20, v19, s[88:91], 0 offen")
            e("v_add_u32 v19, 61440, v19")
        e("s_cmp_eq_u32 s48, 10")
        e("s_cselect_b32 s43, 0, s43")
        e("s_cselect_b32 s44, 0, s44")
        e("s_add_u32 s42, s42, %d" % pair)
        e("s_cmp_eq_u32 s42, %d" % (3 * pair))
        e("s_cselect_b32 s42, 0, s42")
        e("s_add_u32 s45, s45, 1")
        if PB and lim == 2: continue
        if not (PB and lim == 1):
            e("s_cmp_lt_u32 s45, %d" % lim)
            e("s_cbranch_scc1 %s%s" % (tag, lab))
        if not (PA and lab == "_PRE"): e("s_branch %s" % ("P2S" if lim < 10 else "P2L"))


def rot_calc(e, a, b, pf):
    R = OPT.get(pf + "R", OPT.get("R", 4)); mult = OPT.get(pf + "m", 1); base = OPT.get(pf + "b", 0)
    if R == 1:
        e("s_mov_b32 s48, %d" % base); return
    e("s_add_u32 s48, s%d, s%d" % (a, b))
    e("s_mul_i32 s49, s48, %d" % ((1024 + R - 1) // R))
    e("s_lshr_b32 s49, s49, 10")
    e("s_mul_i32 s49, s49, %d" % R)
    e("s_sub_u32 s48, s48, s49")
    if mult != 1: e("s_mul_i32 s48, s48, %d" % mult)
    if base: e("s_add_u32 s48, s48, %d" % base)


def x_lane(e):
    e("v_lshrrev_b32 v2, 3, v%d" % VL)
    e("v_mul_u32_u24 v2, 2560, v2")
    e("v_lshrrev_b32 v3, 4, v%d" % VL)
    e("v_xor_b32 v3, v3, v%d" % VL)
    e("v_and_b32 v3, 7, v3")
    e("v_lshl_add_u32 v2, v3, 4, v2")
    e("v_xor_b32 v3, 64, v2")
    e("v_add_u32 v3, %d, v3" % (8 * 2560 - 1024))


def x_read_addr(e, vd, vl, vg, sbase):
    e("v_bfe_u32 v5, v%d, 1, 3" % vl)
    e("v_xor_b32 v5, v5, v%d" % vg)
    e("v_and_b32 v6, 15, v%d" % vl)
    e("v_lshlrev_b32 v6, 7, v6")
    e("v_lshl_add_u32 v6, v5, 4, v6")
    e("v_add_u32 v%d, %s, v6" % (vd, sbase))
    e("v_xor_b32 v%d, 64, v%d" % (vd + 1, vd))


def mainloop(e, tag, stage, reads, mfmas, nbase, vbase, vcur, extra_upd=None, extra_s=None, vt=253):
    e("s_mov_b32 s42, %d" % (2 * (2 * stage + 16384)))
    for i in range(nbase):
        e("v_add_u32 v%d, s42, v%d" % (vcur + i, vbase + i))
    e("s_mov_b32 s45, 0")
    TC = OPT.get("tc", 0)
    if TC:
        srd(e, 88, 14, 0, 1536 * 1280)
        e("s_lshr_b32 s46, s2, 3")
        e("s_lshl_b32 s46, s46, 11")
        e("s_mul_i32 s47, s20, 491520")
        e("s_add_u32 s46, s46, s47")
        e("v_mbcnt_lo_u32_b32 v255, -1, 0")
        e("v_mbcnt_hi_u32_b32 v255, -1, v255")
        e("v_lshlrev_b32 v128, 26, v255")
        e("v_lshl_add_u32 v255, v255, 7, s46")
        e("v_and_b32 v128, 0xc0000000, v128")
        e("v_or_b32 v255, v255, v128")
        e("s_mov_b32 m0, %d" % (WORDS - 512))
    e("s_barrier")
    stamp(e, 1)
    for r in reads(0, 0, 0):
        e(r)
    e.label(tag + "_LOOP")
    e("s_add_u32 s42, s42, %d" % (2 * stage + 16384))
    e("s_cmp_eq_u32 s42, %d" % (3 * (2 * stage + 16384)))
    e("s_cselect_b32 s42, 0, s42")
    e("s_add_u32 s45, s45, 1")
    if TC:
        e("buffer_load_dword v255, s[88:91], 0 offen lds")
        e("v_add_u32 v255, 61440, v255")
    for x in extra_s or []:
        e(x)
    e("s_waitcnt lgkmcnt(0)")
    upd = ["v_add_u32 v%d, s42, v%d" % (vcur + i, vbase + i) for i in range(nbase)] + (extra_upd or [])
    for x in interleave(mfmas(0), reads(1, stage, 1) + upd):
        e(x)
    e("s_waitcnt lgkmcnt(0)")
    e("s_barrier")
    for x in interleave(mfmas(1), reads(0, 0, 0)):
        e(x)
    e("s_cmp_lt_u32 s45, 10")
    e("s_cbranch_scc1 %s_LOOP" % tag)
    e("s_waitcnt lgkmcnt(0)")


def lane_pos0(e, vl, vg, vc, vp):
    e("v_lshrrev_b32 v%d, 4, v%d" % (vg, vl))
    e("v_and_b32 v%d, 3, v%d" % (vc, vl))
    e("v_bfe_u32 v%d, v%d, 2, 3" % (vp, vl))
    e("v_lshrrev_b32 v1, 5, v%d" % vl)
    e("v_lshl_add_u32 v%d, v1, 4, v%d" % (vp, vp))


def kperm(e, vk, vp, t):
    e("v_and_b32 v%d, 0x33, v%d" % (vk, vp))
    e("v_and_b32 v%d, 4, v%d" % (t, vp))
    e("v_lshl_or_b32 v%d, v%d, 1, v%d" % (vk, t, vk))
    e("v_and_b32 v%d, 8, v%d" % (t, vp))
    e("v_lshrrev_b32 v%d, 1, v%d" % (t, t))
    e("v_or_b32 v%d, v%d, v%d" % (vk, t, vk))


def gen_qkv(e):
    if OPT.get("map", 0) == 1:
        e("s_and_b32 s46, s21, 1")
        e("s_and_b32 s21, s21, 6")
        e("s_cmp_ge_u32 s22, 9")
        e("s_addc_u32 s21, s21, 0")
        e("s_cmp_ge_u32 s22, 9")
        e("s_cselect_b32 s47, 9, 0")
        e("s_sub_u32 s22, s22, s47")
        e("s_mul_i32 s46, s46, 9")
        e("s_add_u32 s22, s22, s46")
    e("s_mul_i32 s23, s22, 114")
    e("s_sub_u32 s23, s23, 14")
    e("s_cmp_lt_u32 s20, 4")
    e("s_cbranch_scc1 QKV_C")
    e("s_sub_u32 s20, s20, 4")
    e("s_lshl_b32 s40, s20, 12")
    e("s_add_u32 s41, s40, %d" % (2 * QST))
    rot_calc(e, 21, 22, "q")
    e("s_mul_i32 s46, s21, 160")
    e("s_lshl_b32 s47, s20, 8")
    for i in range(4):
        e("v_add_u32 v2, s47, v%d" % VL)
        if i: e("v_add_u32 v2, %d, v2" % (64 * i))
        e("v_mul_u32_u24 v3, 2185, v2")
        e("v_lshrrev_b32 v3, 16, v3")
        e("v_mul_u32_u24 v4, 30, v3")
        e("v_sub_u32 v4, v2, v4")
        e("v_mul_u32_u24 v5, 205, v4")
        e("v_lshrrev_b32 v5, 11, v5")
        kperm(e, 6, 3, 7)
        e("v_mul_u32_u24 v6, 3840, v6")
        e("v_mul_u32_u24 v5, 1120, v5")
        e("v_lshl_add_u32 v6, v4, 4, v6")
        e("v_add3_u32 v%d, v6, v5, s46" % (10 + i))
        e("s_sub_u32 s46, s46, 1024")
    e("s_cmp_eq_u32 s20, 3")
    e("s_cselect_b32 s47, 0x40000000, 0")
    e("v_or_b32 v13, s47, v13")
    e("s_lshr_b32 s46, s20, 1")
    e("s_add_u32 s46, s46, s23")
    e("s_and_b32 s47, s20, 1")
    e("s_lshl_b32 s47, s47, 6")
    e("s_add_u32 s46, s46, s47")
    e("s_mul_i32 s46, s46, 1280")
    x_lane(e)
    e("v_add_u32 v14, s46, v2")
    e("v_add_u32 v15, s46, v3")
    e("v_add_u32 v16, %d, v14" % (32 * 1280))
    e("v_add_u32 v17, %d, v15" % (32 * 1280))
    e("s_waitcnt lgkmcnt(0)")
    srd(e, SW, 6, 0, 640 * 1920 * 2)
    srd(e, SXS, 4, 0, 2048 * 640 * 2)
    loader(e, "QL", QST, 1024, 32 * 3840)

    e.label("QKV_C")
    VB, VCUR = 224, 228
    CC, CP, CF, MP, MG0, MG1, MV0, MV1, ON0, ON1, OS0, OS1, ONES = 232, 236, 240, 244, 246, 247, 248, 249, 250, 251, 252, 253, 224
    ON4 = 254
    e("s_lshr_b32 s40, s20, 1")
    e("s_and_b32 s41, s20, 1")
    e("v_mov_b32 v9, v%d" % VL)
    lane_pos0(e, 9, 2, 3, 4)
    e("s_mul_i32 s46, s41, 80")
    e("v_mul_u32_u24 v4, 480, v4")
    e("v_add_u32 v4, s46, v4")
    e("v_lshl_add_u32 v%d, v3, 3, v4" % VB)
    e("v_and_b32 v5, 1, v3")
    e("v_mul_u32_u24 v5, 40, v5")
    e("v_lshrrev_b32 v6, 1, v3")
    e("v_mul_u32_u24 v6, 160, v6")
    e("v_add3_u32 v4, v4, v5, v6")
    e("v_add_u32 v%d, 32, v4" % (VB + 1))
    e("s_lshl_b32 s46, s40, 13")
    e("s_add_u32 s46, s46, %d" % (2 * QST))
    x_read_addr(e, VB + 2, 9, 2, "s46")
    e("v_and_b32 v3, 15, v9")
    e("v_lshlrev_b32 v4, 2, v2")
    e("v_sub_u32 v5, v3, v4")
    e("s_cmp_eq_u32 s22, 0")
    e("s_cselect_b32 s46, 7, 0")
    e("v_subrev_u32 v4, s46, v4")
    e("s_mov_b32 s47, 0x%x" % NEG)
    for r in range(4):
        e("v_subrev_u32 v6, %d, v5" % r)
        e("v_ashrrev_i32 v%d, 31, v6" % (10 + r))
        e("v_sub_u32 v7, 7, v6")
        e("v_ashrrev_i32 v7, 31, v7")
        e("v_or_b32 v7, v7, v%d" % (10 + r))
        e("v_and_b32 v%d, s47, v7" % (CC + r))
        e("v_sub_u32 v8, -9, v6")
        e("v_ashrrev_i32 v8, 31, v8")
        e("v_and_b32 v%d, s47, v8" % (CP + r))
        e("v_add_u32 v8, %d, v4" % r)
        e("v_ashrrev_i32 v8, 31, v8")
        e("v_or_b32 v7, v7, v8")
        e("v_and_b32 v%d, s47, v7" % (CF + r))
    e("s_mov_b32 s47, 0xffff")
    e("v_bfi_b32 v%d, s47, v10, v11" % MP)
    e("v_bfi_b32 v%d, s47, v12, v13" % (MP + 1))
    e("v_add_u32 v6, -1, v2")
    e("v_ashrrev_i32 v%d, 31, v6" % MG0)
    e("v_xor_b32 v6, 1, v2")
    e("v_add_u32 v6, -1, v6")
    e("v_ashrrev_i32 v%d, 31, v6" % MG1)
    e("v_add_u32 v6, -4, v3")
    e("v_ashrrev_i32 v%d, 31, v6" % MV0)
    e("v_xor_b32 v6, 4, v3")
    e("v_add_u32 v6, -4, v6")
    e("v_ashrrev_i32 v%d, 31, v6" % MV1)
    e("s_mul_i32 s46, s22, 57")
    e("s_add_u32 s46, s46, 9")
    e("s_and_b32 s47, s46, 15")
    e("v_add_u32 v6, s47, v3")
    e("v_cmp_lt_u32 s[56:57], 15, v6")
    e("v_and_b32 v6, 15, v6")
    e("s_sub_u32 s46, s46, s47")
    e("s_lshl_b32 s49, s22, 5")
    e("s_add_u32 s46, s46, s49")
    e("s_add_u32 s46, s46, 16")
    e("v_add_u32 v7, s46, v6")
    e("v_mul_u32_u24 v8, %d, v2" % CS)
    e("v_lshl_add_u32 v7, v7, 3, v8")
    e("s_lshl_b32 s46, s21, 1")
    e("s_add_u32 s46, s46, s41")
    e("s_mul_i32 s49, s46, %d" % KS)
    e("s_mul_i32 s50, s40, %d" % PS)
    e("s_add_u32 s49, s49, s50")
    e("s_add_u32 s49, s49, %d" % OB1)
    e("v_lshl_add_u32 v%d, v7, 1, s49" % ON1)
    e("s_mul_i32 s49, s46, %d" % (2 * CS))
    e("s_mul_i32 s50, s40, %d" % PS2)
    e("s_add_u32 s49, s49, s50")
    e("s_add_u32 s49, s49, %d" % OB2)
    e("v_lshlrev_b32 v8, 29, v2")
    e("v_and_b32 v8, 0x40000000, v8")
    e("v_add3_u32 v%d, v7, v8, s49" % OS1)
    e("v_and_b32 v6, 8, v6")
    e("v_subrev_u32 v6, s47, v6")
    e("v_and_b32 v6, 0x40000000, v6")
    e("v_add_u32 v7, -256, v%d" % ON1)
    e("v_or_b32 v%d, v6, v7" % ON0)
    e("v_xor_b32 v6, 0x40000000, v6")
    e("v_or_b32 v%d, v6, v%d" % (ON4, ON1))
    e("s_cmp_gt_u32 s47, 8")
    e("s_cselect_b32 s46, 0x40000000, 0")
    e("v_add_u32 v7, -128, v%d" % OS1)
    e("v_or_b32 v%d, s46, v7" % OS0)
    for i in range(64):
        e("v_mov_b64 v[%d:%d], 0" % (2 * i, 2 * i + 1))
    e("s_waitcnt lgkmcnt(0)")
    srd(e, SO, 18, 0, WS_SPAN)
    c = f2u(20 ** -0.5 * 1.4426950408889634)
    e("s_mov_b32 s50, 0x%x" % c)
    e("s_mov_b32 s51, 0x%x" % c)
    e("s_mov_b32 s52, 0x%x" % (c ^ 0x80000000))
    e("s_mov_b64 s[54:55], 0xffff")

    TOFF = [(0, 0), (0, 40), (0, 160), (0, 200), (1, 0), (0, 320), (0, 360), (1, 320)]
    def reads(buf, imm, half):
        b = 128 + 48 * buf
        out = []
        for q in range(4):
            out.append("ds_read_b128 %s, v%d offset:%d" % (vr(b + 32 + 4 * q, 4), VCUR + 2 + half, 2048 * q))
        for t in range(8):
            for h in range(2):
                out.append("ds_read_b64_tr_b16 %s, v%d offset:%d" % (vr(b + 4 * t + 2 * h, 2), VCUR + TOFF[t][0], imm + TOFF[t][1] + 3840 * h))
        return out
    def mfmas(buf):
        b = 128 + 48 * buf
        out = []
        for t in range(8):
            for q in range(4):
                acc = vr((q * 8 + t) * 4, 4); w = vr(b + 4 * t, 4); x = vr(b + 32 + 4 * q, 4)
                out.append("%s %s, %s, %s, %s" % ((MF, acc, w, x, acc) if t < 5 else (MF, acc, x, w, acc)))
        return out
    e("s_lshl_b32 s67, s22, 8")
    e("s_lshl_b32 s46, s21, 4")
    e("s_add_u32 s67, s67, s46")
    e("s_add_u32 s67, s67, 4096")
    announce(e, "QA")
    mainloop(e, "QC", QST, reads, mfmas, 4, VB, VCUR)
    stamp(e, 2)
    e("s_nop 7")
    KB, QB, V0B, V1B, V7A, V7B = 128, 152, 184, 192, 200, 208
    L = ["v_mov_b32 v%d, 0x3f803f80" % (ONES + r) for r in range(4)]
    def cvt(d, s):
        L.append("v_cvt_pk_bf16_f32 v%d, v%d, v%d" % (d, s, s + 1))
        L.append("v_cvt_pk_bf16_f32 v%d, v%d, v%d" % (d + 1, s + 2, s + 3))
    def conv_kq(q):
        a = 32 * q; k = KB + 6 * q; qq = QB + 8 * q
        cvt(qq + 2, a + 16); cvt(k + 2, a + 16)
        cvt(k, a + 8); cvt(k + 4, a + 12); cvt(qq, a); cvt(qq + 6, a + 4)
        for i in range(2):
            L.append("v_permlane32_swap_b32 v%d, v%d" % (qq + 2 + i, k + 2 + i))
        for i in range(2):
            L.append("v_and_b32 v%d, v%d, v%d" % (qq + 4 + i, MG1, qq + 2 + i))
            L.append("v_and_b32 v%d, v%d, v%d" % (qq + 2 + i, MG0, qq + 2 + i))
    def conv_v(q):
        a = 32 * q
        cvt(V0B + 2 * q, a + 20); cvt(V1B + 2 * q, a + 24); cvt(V7A + 2 * q, a + 28)
        for i in range(2):
            L.append("v_and_b32 v%d, v%d, v%d" % (V7B + 2 * q + i, MV1, V7A + 2 * q + i))
            L.append("v_and_b32 v%d, v%d, v%d" % (V7A + 2 * q + i, MV0, V7A + 2 * q + i))
    def SC(q, h): return 32 * q + 12 * h
    def SP(q, h): return 32 * q + 12 * h + 4
    def PP(q, h): return 32 * q + 12 * h + 8
    def MM(q, h): return 32 * q + 28 + 2 * h
    def scores(q, h):
        qq = vr(QB + 8 * q + 4 * h, 4)
        L.append("%s %s, %s, %s, %s" % (MF, vr(SC(q, h), 4), vr(KB + 6 * q + 2 * h, 4), qq, vr(CF if q == 0 else CC, 4)))
        if q:
            L.append("%s %s, %s, %s, %s" % (MF, vr(SP(q, h), 4), vr(KB + 6 * (q - 1) + 2 * h, 4), qq, vr(CP, 4)))
    def lmax(q, h):
        s = SC(q, h)
        if q:
            for r in range(4):
                L.append("v_max_f32 v%d, v%d, v%d" % (s + r, s + r, SP(q, h) + r))
        L.append("v_max3_f32 v%d, v%d, v%d, v%d" % (MM(q, h), s, s + 1, s + 2))
        L.append("v_max_f32 v%d, v%d, v%d" % (MM(q, h), MM(q, h), s + 3))
    def gmax(q0):
        a, b, c_, d = MM(q0, 0), MM(q0, 1), MM(q0 + 1, 0), MM(q0 + 1, 1)
        L.extend(["v_permlane32_swap_b32 v%d, v%d" % (a, b), "v_permlane32_swap_b32 v%d, v%d" % (c_, d),
                  "v_max_f32 v%d, v%d, v%d" % (a, a, b), "v_max_f32 v%d, v%d, v%d" % (c_, c_, d),
                  "v_permlane16_swap_b32 v%d, v%d" % (a, c_), "v_max_f32 v%d, v%d, v%d" % (a, a, c_),
                  "v_mul_f32 v%d, s52, v%d" % (c_, a), "v_mul_f32 v%d, s52, v%d" % (a, a),
                  "v_permlane16_swap_b32 v%d, v%d" % (a, c_),
                  "v_mov_b32 v%d, v%d" % (b, a), "v_mov_b32 v%d, v%d" % (d, c_),
                  "v_permlane32_swap_b32 v%d, v%d" % (a, b), "v_permlane32_swap_b32 v%d, v%d" % (c_, d)])
    def probs(q, h):
        s = SC(q, h); p = PP(q, h); m = vr(MM(q, h), 2)
        sel = "op_sel:[0,0,0] op_sel_hi:[1,1,0]"
        for k in range(2):
            L.append("v_pk_fma_f32 %s, %s, s[50:51], %s %s" % (vr(s + 2 * k, 2), vr(s + 2 * k, 2), m, sel))
        for r in range(4):
            L.append("v_exp_f32 v%d, v%d" % (s + r, s + r))
        if q == 0:
            cvt(p, s)
            L.append("v_mov_b64 %s, 0" % vr(p + 2, 2))
        else:
            cvt(p + 2, s)
            for k in range(2):
                L.append("v_and_b32 v%d, v%d, v%d" % (p + k, MP + k, p + 2 + k))
                L.append("v_xor_b32 v%d, v%d, v%d" % (p + 2 + k, p + k, p + 2 + k))
    def pv(q, h):
        p = vr(PP(q, h), 4); o = 2 * max(q - 1, 0)
        L.append("%s %s, %s, %s, 0" % (MF, vr(SP(q, h), 4), vr(ONES, 4), p))
        L.append("%s %s, %s, %s, 0" % (MF, vr(SC(q, h), 4), vr((V1B if h else V0B) + o, 4), p))
        o7 = vr(32 * q + 24, 4)
        L.append("%s %s, %s, %s, %s" % (MF, o7, vr((V7B if h else V7A) + o, 4), p, o7 if h else "0"))
    def fin(q):
        for h in range(2):
            L.append("v_rcp_f32 v%d, v%d" % (SP(q, h), SP(q, h)))
        for h in range(2):
            s = SC(q, h)
            for k in range(2):
                L.append("v_pk_mul_f32 %s, %s, %s op_sel:[0,0] op_sel_hi:[1,0]" % (vr(s + 2 * k, 2), vr(s + 2 * k, 2), vr(SP(q, h), 2)))
            cvt(PP(q, 0) + 2 * h, s)
        t = 32 * q + 30; o7 = 32 * q + 24
        L.append("v_cndmask_b32 v%d, v%d, v%d, s[54:55]" % (t, SP(q, 1), SP(q, 0)))
        for k in range(2):
            L.append("v_pk_mul_f32 %s, %s, %s op_sel:[0,0] op_sel_hi:[1,0]" % (vr(o7 + 2 * k, 2), vr(o7 + 2 * k, 2), vr(t, 2)))
        cvt(o7, o7)
        def st(dn, ds, on, os_, k):
            L.append("buffer_store_dwordx4 %s, v%d, s[%d:%d], 0 offen offset:%d%s" % (vr(dn, 4), on, SO, SO + 3, 256 * k, SC1))
            L.append("buffer_store_dwordx2 %s, v%d, s[%d:%d], 0 offen offset:%d%s" % (vr(ds, 2), os_, SO, SO + 3, 128 * k, SC1))
        if q == 0:
            st(PP(0, 0), o7, ON0, OS0, 0)
        else:
            for r in range(4):
                L.append("v_cndmask_b32 v%d, v%d, v%d, s[56:57]" % (SC(q, 0) + r, PP(q, 0) + r, PP(q - 1, 0) + r))
            for r in range(2):
                L.append("v_cndmask_b32 v%d, v%d, v%d, s[56:57]" % (o7 + 2 + r, o7 + r, o7 - 32 + r))
            st(SC(q, 0), o7 + 2, ON1, OS1, q - 1)
        if q == 3:
            st(PP(3, 0), o7, ON4, OS1, 3)
    for q in range(4):
        conv_kq(q); conv_v(q)
        if q:
            scores(q - 1, 0); scores(q - 1, 1)
    scores(3, 0); scores(3, 1)
    for q in range(2):
        lmax(q, 0); lmax(q, 1)
    gmax(0)
    for q in range(2, 4):
        lmax(q, 0); lmax(q, 1)
    gmax(2)
    for q in range(4):
        probs(q, 0); probs(q, 1); pv(q, 0); pv(q, 1)
        if q: fin(q - 1)
    fin(3)
    ST = []
    if OPT.get("odef", 0):
        ST = [x for x in L if x.startswith("buffer_store")]
        L = [x for x in L if not x.startswith("buffer_store")]
    for x in schedule(L, window=10000):
        e(x)
    if ST:
        e("v_mov_b32 v225, %d" % WORDS)
        e.label("OD_SPIN")
        e("ds_read_b32 v224, v225 offset:4")
        e("s_waitcnt lgkmcnt(0)")
        e("v_cmp_ne_u32 vcc, 0, v224")
        e("s_cbranch_vccz OD_SPIN")
        for x in ST: e(x)
    if OPT.get("cst", 0): stamp(e, 3)
    e("s_branch P2C")


def gen_ffn(e):
    e("s_mul_i32 s23, s21, 12")
    e("s_add_u32 s23, s23, s22")
    e("s_sub_u32 s23, s23, 18")
    if OPT.get("map", 0) == 1:
        e("s_and_b32 s46, s21, 1")
        e("s_lshr_b32 s21, s21, 1")
        e("s_mul_i32 s23, s21, 12")
        e("s_add_u32 s23, s23, s22")
        e("s_sub_u32 s23, s23, 18")
        e("s_lshr_b32 s21, s23, 3")
        e("s_and_b32 s22, s23, 7")
        e("s_lshl_b32 s46, s46, 3")
        e("s_add_u32 s22, s22, s46")
    else:
        e("s_lshr_b32 s21, s23, 4")
        e("s_and_b32 s22, s23, 15")
    rot_calc(e, 21, 22, "f")
    e("s_cmp_lt_u32 s20, 4")
    e("s_cbranch_scc1 FFN_C")
    e("s_sub_u32 s20, s20, 4")
    e("s_mul_i32 s40, s20, %d" % (4 * 1088))
    e("s_lshl_b32 s41, s20, 12")
    e("s_add_u32 s41, s41, %d" % (2 * FST))
    e("s_lshl_b32 s46, s21, 9")
    e("s_lshl_b32 s47, s20, 3")
    e("v_lshrrev_b32 v2, 5, v%d" % VL)
    e("v_and_b32 v3, 31, v%d" % VL)
    e("v_lshlrev_b32 v4, 1, v2")
    e("v_xor_b32 v3, v3, v4")
    e("v_add_u32 v2, s47, v2")
    for i in range(4):
        kperm(e, 6, 2, 7)
        e("v_mul_u32_u24 v6, 3072, v6")
        e("v_lshl_add_u32 v6, v3, 4, v6")
        e("v_add_u32 v%d, s46, v6" % (10 + i))
        e("s_sub_u32 s46, s46, 1088")
        e("v_add_u32 v2, 2, v2")
    x_lane(e)
    for j in range(2):
        e("s_lshl_b32 s46, s20, 1")
        e("s_add_u32 s46, s46, s21")
        if j: e("s_add_u32 s46, s46, 1")
        e("s_and_b32 s47, s46, 1")
        e("s_and_b32 s46, s46, 2")
        e("s_lshl_b32 s46, s46, 4")
        e("s_add_u32 s46, s46, s47")
        e("s_lshr_b32 s47, s20, 1")
        e("s_lshl_b32 s47, s47, 6")
        e("s_add_u32 s46, s46, s47")
        e("s_lshl_b32 s47, s22, 7")
        e("s_add_u32 s46, s46, s47")
        e("s_mul_i32 s46, s46, 1280")
        e("v_add_u32 v%d, s46, v2" % (14 + 2 * j))
        e("v_add_u32 v%d, s46, v3" % (15 + 2 * j))
    e("s_waitcnt lgkmcnt(0)")
    srd(e, SW, 12, 0, 640 * 1536 * 2)
    srd(e, SXS, 4, 0, 2048 * 640 * 2)
    srd(e, SG, 16, 0, 1280)
    e("v_lshlrev_b32 v18, 4, v%d" % VL)
    def pre():
        e("s_mov_b32 m0, %d" % GT_OFF)
        e("s_nop 0")
        e("buffer_load_dwordx4 v18, s[%d:%d], 0 offen lds" % (SG, SG + 3))
        e("buffer_load_dwordx4 v18, s[%d:%d], 0 offen offset:1024 lds" % (SG, SG + 3))
    loader(e, "FL", FST, 1088, 32 * 3072, pre)

    e.label("FFN_C")
    VB, VCUR, RG, ZA = 236, 240, 246, 232
    e("s_lshr_b32 s40, s20, 1")
    e("s_and_b32 s41, s20, 1")
    e("v_mov_b32 v9, v%d" % VL)
    lane_pos0(e, 9, 2, 3, 4)
    e("v_lshrrev_b32 v5, 1, v4")
    e("v_mul_u32_u24 v5, 1088, v5")
    e("v_and_b32 v4, 1, v4")
    e("v_mul_u32_u24 v6, 544, v4")
    e("v_lshl_add_u32 v5, v3, 3, v5")
    e("s_lshl_b32 s46, s41, 8")
    e("v_add3_u32 v%d, v5, v6, s46" % VB)
    e("v_lshlrev_b32 v4, 6, v4")
    e("v_sub_u32 v%d, v%d, v4" % (VB + 1, VB))
    e("s_lshl_b32 s46, s40, 13")
    e("s_add_u32 s46, s46, %d" % (2 * FST))
    e("v_lshlrev_b32 v244, 4, v9")
    x_read_addr(e, VB + 2, 9, 2, "s46")
    e("v_lshlrev_b32 v5, 4, v2")
    e("v_add_u32 v%d, %d, v5" % (RG + 1, GT_OFF))
    e("s_lshl_b32 s48, s48, 7")
    e("v_add_u32 v%d, s48, v%d" % (RG, RG + 1))
    e("v_and_b32 v245, 31, v9")
    e("s_lshr_b32 s46, s21, 2")
    e("s_or_b32 s46, s46, s41")
    e("s_lshl_b32 s46, s46, 30")
    e("v_lshl_add_u32 v245, v245, 2, s46")
    e("s_mov_b32 s56, 0xffff0000")
    e("s_mov_b32 s57, 0xffff0000")
    for i in range(64):
        e("v_mov_b64 v[%d:%d], 0" % (2 * i, 2 * i + 1))
    e("v_mov_b64 v[%d:%d], 0" % (ZA, ZA + 1))
    e("v_mov_b64 v[%d:%d], 0" % (ZA + 2, ZA + 3))
    e("s_waitcnt lgkmcnt(0)")
    srd(e, SO, 18, ACT_OFF, ACT_BYTES)
    srd(e, SG, 18, G_OFF, G_BYTES)
    for q in range(4):
        e("s_add_u32 s46, s21, %d" % q)
        e("s_and_b32 s46, s46, 3")
        e("s_lshl_b32 s47, s40, 2")
        e("s_add_u32 s46, s46, s47")
        e("s_lshl_b32 s47, s22, 3")
        e("s_add_u32 s46, s46, s47")
        if q == 0: e("s_lshl_b32 s54, s46, 7")
        e("s_mul_i32 s46, s46, 68")
        e("s_lshl_b32 s47, s21, 3")
        e("s_add_u32 s46, s46, s47")
        e("s_lshl_b32 s47, s41, 2")
        e("s_add_u32 s46, s46, s47")
        e("s_add_u32 s46, s46, 20")
        e("s_lshl_b32 s%d, s46, 10" % (50 + q))
    def reads(buf, imm, half):
        b = 128 + 52 * buf
        out = []
        for q in range(4):
            out.append("ds_read_b128 %s, v%d offset:%d" % (vr(b + 32 + 4 * q, 4), VCUR + 2 + half, 2048 * q))
        out.append("ds_read_b128 %s, v%d offset:%d" % (vr(b + 48, 4), RG, 64 * half))
        for t in range(8):
            for h in range(2):
                out.append("ds_read_b64_tr_b16 %s, v%d offset:%d" % (vr(b + 4 * t + 2 * h, 2), VCUR + (t & 1), imm + 32 * t + 4352 * h))
        return out
    def mfmas(buf):
        b = 128 + 52 * buf
        out = ["%s %s, %s, %s, %s" % (MF, vr(ZA, 4), vr(b + 48, 4), vr(b + 32, 4), vr(ZA, 4))]
        for t in range(8):
            for q in range(4):
                acc = vr((q * 8 + t) * 4, 4); w = vr(b + 4 * t, 4); x = vr(b + 32 + 4 * q, 4)
                out.append("%s %s, %s, %s, %s" % (MF, acc, w, x, acc))
        return out
    e("s_lshl_b32 s67, s22, 8")
    e("s_lshl_b32 s46, s21, 4")
    e("s_add_u32 s67, s67, s46")
    announce(e, "FA")
    mainloop(e, "FC", FST, reads, mfmas, 4, VB, VCUR, ["v_add_u32 v%d, s48, v%d" % (RG, RG + 1)],
             ["s_add_u32 s48, s48, 128", "s_cmp_eq_u32 s48, 1280", "s_cselect_b32 s48, 0, s48"])
    stamp(e, 2)
    e("s_nop 7")
    L = []
    L.append("v_cvt_pk_bf16_f32 v%d, v%d, v%d" % (ZA, ZA, ZA))
    L.append("v_and_b32 v%d, 0xffff0000, v%d" % (ZA, ZA))
    L.append("v_mul_f32 v%d, 0xbfb8aa3b, v%d" % (ZA, ZA))
    L.append("v_exp_f32 v%d, v%d" % (ZA, ZA))
    L.append("v_add_f32 v%d, 1.0, v%d" % (ZA, ZA))
    L.append("v_rcp_f32 v%d, v%d" % (ZA, ZA))
    L.append("v_cvt_pk_bf16_f32 v%d, v%d, v%d" % (ZA, ZA, ZA))
    L.append("v_and_b32 v%d, 0xffff0000, v%d" % (ZA, ZA))
    L.append("v_sub_f32 v%d, 1.0, v%d" % (ZA + 1, ZA))
    L.append("v_max_f32 v%d, 0x21800000, v%d" % (ZA, ZA))
    L.append("v_cvt_pk_bf16_f32 v%d, v%d, v%d" % (ZA + 1, ZA + 1, ZA + 1))
    L.append("v_rcp_f32 v%d, v%d" % (ZA + 2, ZA))
    L.append("v_and_b32 v%d, 0xffff0000, v%d" % (ZA + 1, ZA + 1))
    L.append("v_mul_f32 v%d, v%d, v%d" % (ZA + 1, ZA + 1, ZA + 2))
    L.append("v_cndmask_b32 v%d, v%d, v%d, s[56:57]" % (ZA, ZA, ZA + 1))
    if not OPT.get("nog", 0): L.append("buffer_store_dword v%d, v245, s[%d:%d], s54 offen%s" % (ZA, SG, SG + 3, SC1))
    for q in range(4):
        for p in range(4):
            a = (q * 8 + 2 * p) * 4
            for k in range(4):
                L.append("v_cvt_pk_bf16_f32 v%d, v%d, v%d" % (a + k, a + 2 * k, a + 2 * k + 1))
            for k in range(4):
                L.append("v_pk_max_i16 v%d, v%d, 0" % (a + k, a + k))
            L.append("buffer_store_dwordx4 %s, v244, s[%d:%d], s%d offen offset:%d%s" % (vr(a, 4), SO, SO + 3, 50 + q, 1024 * p, SC1))
    for x in schedule(L, window=10000):
        e(x)
    if OPT.get("cst", 0): stamp(e, 3)
    e("s_branch P2C")


def announce(e, tag):
    srd(e, 24, 18, FLAG_OFF, FLAG_BYTES)
    srd(e, 28, 62, 0, 256)
    e("s_cmp_eq_u32 s20, 0")
    e("s_cbranch_scc0 %s_SKIP" % tag)
    e("s_mov_b64 exec, 1")
    e("v_mov_b32 v255, 1")
    e("buffer_store_dword v0, off, s[24:27], s67 sc1")
    e("v_mov_b32 v128, %d" % WORDS)
    e("ds_write_b128 v128, v[0:3]")
    e("s_waitcnt vmcnt(0) lgkmcnt(0)")
    e("buffer_atomic_add v255, off, s[28:31], 0 sc1")
    e("s_mov_b64 exec, -1")
    e.label(tag + "_SKIP")


def tile_params(e):
    if OPT.get("m6", 0):
        sets = {1: [[0, 1, 4, 5, 8, 9, 12, 13, 16, 17], [0, 3, 4, 7, 8, 11, 12, 15, 16, 17],
                    [0, 2, 3, 6, 7, 10, 11, 14, 15, 16], [1, 2, 3, 5, 6, 9, 10, 13, 14, 17]],
                2: [list(range(10))] * 4}[OPT["m6"]]
        M = [sum(1 << y for y in st) for st in sets]
        e("""s_lshr_b32 s46, s2, 3
s_and_b32 s65, s2, 7
s_lshl_b32 s65, s65, 4
s_bitcmp1_b32 s2, 0
s_cselect_b32 s47, 0x%x, 0x%x
s_cselect_b32 s64, 0x%x, 0x%x
s_bitcmp1_b32 s2, 1
s_cselect_b32 s47, s64, s47
s_bfm_b32 s64, s46, 0
s_and_b32 s64, s64, s47
s_bcnt1_i32_b32 s64, s64
s_sub_u32 s66, s46, s64
s_bitcmp1_b32 s47, s46
s_cselect_b32 s47, 1, 0
s_lshr_b32 s46, s66, 1
s_and_b32 s66, s66, 1
s_mul_i32 s66, s66, 5
s_add_u32 s66, s66, 6
s_cmp_eq_u32 s47, 1
s_cselect_b32 s64, s64, s46
s_cselect_b32 s47, 0, s66
s_cselect_b32 s66, 6, 5
s_add_u32 s65, s65, s47""".replace("s_cselect_b32 s47, 0x%x, 0x%x", "s_mov_b32 s47, 0x%x\ns_cselect_b32 s47, 0x%x, s47")
     .replace("s_cselect_b32 s64, 0x%x, 0x%x", "s_mov_b32 s64, 0x%x\ns_cselect_b32 s64, 0x%x, s64") % (M[0], M[1], M[2], M[3]))
        return
    e("""s_lshr_b32 s46, s2, 3
s_and_b32 s65, s2, 7
s_lshl_b32 s65, s65, 4
s_sub_u32 s47, s46, 10
s_cmp_ge_u32 s46, 18
s_cselect_b32 s47, s47, s46
s_lshr_b32 s64, s47, 1
s_and_b32 s47, s47, 1
s_mul_i32 s47, s47, 5
s_add_u32 s47, s47, 6
s_sub_u32 s46, s46, 18
s_cmp_lt_u32 s46, 10
s_cselect_b32 s64, s46, s64
s_cselect_b32 s47, 0, s47
s_cselect_b32 s66, 6, 5
s_add_u32 s65, s65, s47""")


class Cnt:
    def __init__(self, e, name, mx, init=()):
        self.e, self.name, self.mx, self.q, self.done = e, name, mx, list(init), 0
    def issue(self, tag, ins):
        self.e(ins); self.q.append(tag)
    def wait(self, tags):
        idx = [i for i, t in enumerate(self.q) if t in tags]
        if not idx or idx[-1] < self.done:
            return
        n = min(len(self.q) - 1 - idx[-1], self.mx)
        self.e("s_waitcnt %s(%d)" % (self.name, n))
        self.done = len(self.q) - n


PU = [7, 8, 0, 1, 2, 3]
UN = lambda s: s % 9


def w_setup(e, VW4, VW20, T0):
    e("s_lshl_b32 s58, s20, 12")
    e("s_lshl_b32 s46, s64, 7")
    e("s_mul_i32 s55, s20, %d" % (12 * 40960))
    e("s_add_u32 s55, s55, s46")
    e("s_mul_i32 s56, s20, %d" % (160 * 1280))
    e("s_add_u32 s56, s56, s46")
    e("v_lshrrev_b32 v%d, 3, v%d" % (T0, VL))
    e("v_and_b32 v%d, 6, v%d" % (T0 + 1, T0))
    e("v_xor_b32 v%d, v%d, v%d" % (T0 + 1, T0 + 1, VL))
    e("v_and_b32 v%d, 7, v%d" % (T0 + 1, T0 + 1))
    e("v_mul_u32_u24 v%d, 1280, v%d" % (VW4, T0))
    e("v_lshl_add_u32 v%d, v%d, 4, v%d" % (VW4, T0 + 1, VW4))
    e("v_lshrrev_b32 v%d, 5, v%d" % (T0, VL))
    e("v_mul_u32_u24 v%d, %d, v%d" % (VW20, 16 * 1280, T0))
    e("v_add_u32 v%d, v%d, v%d" % (VW20, VW20, VW4))


def w_src(s, n, VW4, VW20, S2, SWO):
    if s < 12: base, c0, G, J, vw, sd = "s55", 40960 * s, 4, 16, VW4, S2
    elif s < 16: base, c0, G, J, vw, sd = "s56", 51200 * (s - 12), 4, 20, VW4, SWO
    else: base, c0, G, J, vw, sd = "s56", 16 * 1280, 20, 80, VW20, SWO
    return base, c0 + (2 * G * (n >> 1) + J * (n & 1)) * 1280, vw, sd


def gen_p2l(e):
    NS, NH, AD = 17, 12, 5
    WF, AR = 96, 112
    VA, VW4, VW20, AT, VPH, VPO, VP, VC, PW, T0 = 232, 238, 239, 240, 244, 245, 246, 247, 248, 252
    S2, SWO, SA, SF, SD = 88, 92, 32, 36, 68
    LST = [None, [0, 4, 8, 12], [5, 6, 7, 8], [9, 10, 11, 12], [13, 14, 15, 16], [1, 2, 3, 4]][OPT.get("lst", 0)]
    e.label("P2S")
    tile_params(e)
    srd(e, S2, 14, 0, 1536 * 1280)
    srd(e, SWO, 8, 0, 640 * 1280)
    srd(e, SA, 18, 0, WS_SPAN)
    srd(e, SF, 18, FLAG_OFF, FLAG_BYTES)
    srd(e, SD, 62, 0, 256)
    w_setup(e, VW4, VW20, T0)
    e("s_mul_i32 s50, s20, 12288")
    e("s_add_u32 s50, s50, 20480")
    e("s_add_u32 s51, s50, 4096")
    e("s_add_u32 s52, s50, 8192")
    R2 = OPT.get("rot2", 1)
    if R2:
        e("s_mul_i32 s6, s64, %d" % R2)
        e("s_mul_i32 s7, s6, 171")
        e("s_lshr_b32 s7, s7, 11")
        e("s_mul_i32 s7, s7, 12")
        e("s_sub_u32 s6, s6, s7")
        e("s_mul_i32 s7, s6, 40960")
        e("s_add_u32 s55, s55, s7")
        e("s_sub_u32 s7, s55, %d" % (12 * 40960))
        e("s_lshl_b32 s51, s6, 10")
        e("s_add_u32 s50, s50, s51")
        e("s_sub_u32 s51, s50, 12288")
    e("s_and_b32 s46, s65, 1")
    e("s_mul_i32 s10, s20, %d" % (4 * KS))
    e("s_add_u32 s10, s10, %d" % OB1)
    e("s_add_u32 s11, s10, %d" % PS)
    e("s_mul_i32 s53, s20, %d" % (8 * CS))
    e("s_add_u32 s53, s53, %d" % OB2)
    e("s_add_u32 s57, s53, %d" % PS2)
    e("s_mul_i32 s47, s46, %d" % PS)
    e("s_add_u32 s10, s10, s47")
    e("s_sub_u32 s11, s11, s47")
    e("s_mul_i32 s47, s46, %d" % PS2)
    e("s_add_u32 s53, s53, s47")
    e("s_sub_u32 s57, s57, s47")
    e("s_mul_i32 s46, s65, %d" % RB_STRIDE)
    e("v_lshl_add_u32 v%d, v%d, 4, s46" % (VA, VL))
    for q in range(1, 6):
        e("v_add_u32 v%d, %d, v%d" % (VA + q, RB_STRIDE * q, VA))
    e("s_cmp_eq_u32 s66, 5")
    e("s_cselect_b32 s46, 0x40000000, 0")
    SK5 = OPT.get("sk5", 0)
    if SK5: e("s_cselect_b64 s[4:5], %d, -1" % (SK5 - 1))
    e("v_or_b32 v%d, s46, v%d" % (VA + 5, VA + 5))
    e("v_bfe_u32 v%d, v%d, 2, 3" % (T0 + 1, VL))
    e("v_lshl_add_u32 v%d, v%d, 11, s58" % (AT, T0))
    e("v_lshl_add_u32 v%d, v%d, 7, v%d" % (AT, T0 + 1, AT))
    e("v_lshrrev_b32 v%d, 1, v%d" % (T0 + 1, T0 + 1))
    e("v_lshl_add_u32 v%d, v%d, 5, v%d" % (AT, T0 + 1, AT))
    e("v_and_b32 v%d, 3, v%d" % (T0 + 1, VL))
    e("v_lshl_add_u32 v%d, v%d, 3, v%d" % (AT, T0 + 1, AT))
    for t in range(1, 4):
        e("v_xor_b32 v%d, %d, v%d" % (AT + t, 32 * t, AT))
    e("v_lshl_add_u32 v%d, v%d, 1, v%d" % (T0 + 1, T0, VL))
    e("v_and_b32 v%d, 48, v%d" % (VP, VL))
    e("v_lshl_add_u32 v%d, v%d, 4, s58" % (VP, VP))
    for t in range(4):
        e("v_add_u32 v%d, %d, v%d" % (PW + t, 4 * t, T0 + 1))
        e("v_and_b32 v%d, 15, v%d" % (PW + t, PW + t))
        e("v_lshl_add_u32 v%d, v%d, 4, v%d" % (PW + t, PW + t, VP))
    e("s_add_u32 s47, s65, s66")
    e("s_sub_u32 s47, s47, 1")
    e("s_lshr_b32 s54, s65, 3")
    e("s_lshr_b32 s49, s47, 3")
    e("s_sub_u32 s49, s49, s54")
    e("s_lshl_b32 s54, s54, 8")
    e("s_lshl_b32 s49, s49, 8")
    e("v_and_b32 v%d, 31, v%d" % (T0 + 1, VL))
    e("v_lshlrev_b32 v%d, 2, v%d" % (T0 + 1, T0 + 1))
    e("v_mad_u32_u24 v%d, v%d, s49, v%d" % (VPH, T0, T0 + 1))
    e("v_add_u32 v%d, s54, v%d" % (VPH, VPH))
    e("v_lshrrev_b32 v%d, 4, v%d" % (T0 + 1, VL))
    e("v_mul_u32_u24 v%d, %d, v%d" % (T0 + 1, GS, T0 + 1))
    e("v_add_u32 v%d, 256, v%d" % (T0 + 1, T0 + 1))
    e("v_and_b32 v%d, 15, v%d" % (VL, VL))
    e("v_mov_b32 v%d, %d" % (VPO, WORDS))
    e("s_mov_b32 s98, 0x111111")
    e("s_mov_b32 s99, 0x111111")
    e("s_movk_i32 s97, 240")
    if OPT.get("ns", 0):
        e("s_lshr_b32 s59, s2, 3")
        e("s_lshl_b32 s59, s59, 2")
        e("s_add_u32 s59, s59, s20")
        e("s_mul_i32 s59, s59, %d" % (8 * 128 * OPT["ns"]))
    e("s_cmp_lt_u32 s2, 144")
    e("s_cbranch_scc1 QL_RET")
    e("s_branch FL_RET")
    e.label("P2L")
    vm = Cnt(e, "vmcnt", 63, ["p8"] * 12 + ["t"] * OPT.get("tw", 0) + ["p9"] * 12 + ["t"] * OPT.get("tw", 0))
    lg = Cnt(e, "lgkmcnt", 15)

    def wdma(s):
        if s >= NS: return
        if s < NH: base, c0, G, J, vw, sd = "s55", 40960 * s, 4, 16, VW4, S2
        elif s < NS - 1: base, c0, G, J, vw, sd = "s56", 51200 * (s - NH), 4, 20, VW4, SWO
        else: base, c0, G, J, vw, sd = "s56", 16 * 1280, 20, 80, VW20, SWO
        if OPT.get("exp", 0) & 16: c0 = 0
        if R2 and s < NH:
            e("s_cmp_ge_u32 s6, %d" % (12 - s))
            e("s_cselect_b32 s47, s7, s55")
            base = "s47"
        e("s_add_u32 m0, s58, %d" % (16384 * UN(s)))
        for n in range(4):
            e("s_add_u32 s46, %s, %d" % (base, c0 + (2 * G * (n >> 1) + J * (n & 1)) * 1280 - 1024 * n))
            vm.issue(("W", s), "buffer_load_dwordx4 v%d, s[%d:%d], s46 offen offset:%d lds" % (vw, sd, sd + 3, 1024 * n))

    EXP = OPT.get("exp", 0)
    WR = OPT.get("wr", 1)
    if WR:
        SLOT = {0: 0, 1: 1, 2: 2}
        ISS = {}
        nxt = 3
        for s in range(NS):
            free = [SLOT[s]] + ([3] if s == 2 else [4] if s == 3 else [])
            ISS[s] = []
            for f in free:
                SLOT[nxt] = f; ISS[s].append(nxt); nxt += 1
    else:
        SLOT = {s: s % AD for s in range(NS + AD)}
        ISS = {s: [s + AD] for s in range(NS)}
    def WREG(s): return AR + 72 + 16 * (s - 1) if WR and 1 <= s <= 3 else WF
    def aload(s, q):
        if s >= NS: return
        if EXP & 1 and s >= AD: return
        r = AR + 24 * SLOT[s] + 4 * q
        if s < NH and R2:
            so, im = "s52", 0
            if q == 0:
                e("s_cmp_ge_u32 s6, %d" % (12 - s))
                e("s_cselect_b32 s52, s51, s50")
                e("s_add_u32 s52, s52, %d" % (1024 * s))
        elif s < NH: so, im = "s%d" % (50 + (s >> 2)), 1024 * (s & 3)
        elif s < NS - 1:
            so, im = "s%d" % (10 + (q & 1)), 0
            if s > NH and q < 2: e("s_add_u32 %s, %s, %d" % (so, so, KS))
        else:
            e("v_lshrrev_b32 v%d, 1, v%d" % (VA + q, VA + q))
            so = "s57" if q & 1 else "s53"
            e("s_add_u32 s46, %s, %d" % (so, 4 * CS))
            if SK5 and q == 5: e("s_mov_b64 exec, s[4:5]")
            for k in range(2):
                vm.issue(("A", s), "buffer_load_dwordx2 %s, v%d, s[%d:%d], %s offen sc1" % (vr(r + 2 * k, 2), VA + q, SA, SA + 3, "s46" if k else so))
            if SK5 and q == 5: e("s_mov_b64 exec, -1")
            return
        if EXP & 32: so, im = "s50", 0
        if SK5 and q == 5: e("s_mov_b64 exec, s[4:5]")
        vm.issue(("A", s), "buffer_load_dwordx4 %s, v%d, s[%d:%d], %s offen offset:%d sc1" % (vr(r, 4), VA + q, SA, SA + 3, so, im))
        if SK5 and q == 5: e("s_mov_b64 exec, -1")

    def oaddr(q):
        v = VA + q
        e("s_add_u32 s46, s65, %d" % q)
        e("s_lshr_b32 s46, s46, 1")
        e("s_lshl_b32 s46, s46, 4")
        e("v_add_u32 v%d, s46, v%d" % (v, VL))
        e("v_mul_u32_u24 v%d, 1150, v%d" % (T0, v))
        e("v_lshrrev_b32 v%d, 16, v%d" % (T0, T0))
        e("v_lshl_add_u32 v%d, v%d, 5, v%d" % (v, T0, v))
        e("v_lshl_add_u32 v%d, v%d, 4, v%d" % (v, v, T0 + 1))
        if q == 5:
            e("s_cmp_eq_u32 s66, 5")
            e("s_cselect_b32 s46, 0x40000000, 0")
            e("v_or_b32 v%d, s46, v%d" % (v, v))

    def lcheck(tag, off, first=True):
        if not first:
            e("v_cmp_ne_u32 vcc, 0, v%d" % VP)
            e("s_cbranch_vccnz %s_OK" % tag)
        e.label(tag + "_SPIN")
        e("ds_read_b32 v%d, v%d offset:%d" % (VP, VPO, off))
        e("s_waitcnt lgkmcnt(0)")
        e("v_cmp_ne_u32 vcc, 0, v%d" % VP)
        e("s_cbranch_vccz %s_SPIN" % tag)
        e.label(tag + "_OK")

    atb = [0] * 4
    def wread(s, t):
        if s >= NS: return
        if EXP & 2 and s >= 1: return
        u = UN(s)
        if atb[t] != u >> 2:
            e("v_add_u32 v%d, 0x%x, v%d" % (AT + t, (65536 * ((u >> 2) - atb[t])) & 0xffffffff, AT + t)); atb[t] = u >> 2
        for h in range(2):
            lg.issue(("R", s, t), "ds_read_b64_tr_b16 %s, v%d offset:%d" % (vr(WREG(s) + 4 * t + 2 * h, 2), AT + t, (u & 3) * 16384 + 1024 * h))

    def check(tag, vres, vaddr, sd, val, mask):
        def cmp():
            e("v_cmp_ne_u32 s[48:49], %s, v%d" % (val, vres))
            e("s_and_b64 s[48:49], s[48:49], %s" % mask)
            e("s_cbranch_scc0 %s_OK" % tag)
        cmp()
        e("s_mov_b32 s59, 0")
        e.label(tag + "_SPIN")
        e("buffer_load_dword v%d, %s, s[%d:%d], 0 %ssc1" % (vres, "v%d" % vaddr if vaddr else "off", sd, sd + 3, "offen " if vaddr else ""))
        e("s_add_u32 s59, s59, 1")
        e("s_waitcnt vmcnt(0)")
        cmp()
        if OPT.get("psleep", 0): e("s_sleep %d" % OPT["psleep"])
        e("s_cmp_lt_u32 s59, %d" % SPIN)
        e("s_cbranch_scc1 %s_SPIN" % tag)
        e.label(tag + "_OK")

    vm.wait(["p8"])
    e("s_barrier")
    WQ = OPT.get("wq", 9)
    for s in range(min(3, WQ)): wdma(s)
    vm.wait(["p9"])
    e("s_barrier")
    vm.issue("C", "buffer_load_dword v%d, off, s[%d:%d], 0 sc1" % (VC, SD, SD + 3))
    for s in range(3, min(6, WQ)): wdma(s)
    e("s_barrier")
    if not LST: stamp(e, 1)
    GATE = OPT.get("gate", 2)
    if OPT.get("ns", 0): e("s_waitcnt lgkmcnt(0)")
    def gate():
        e("s_cmp_lt_u32 s2, 144")
        e("s_cbranch_scc1 GT_OK")
        e.label("GT_SPIN")
        e("ds_read_b32 v%d, v%d" % (VP, VPO))
        e("s_waitcnt lgkmcnt(0)")
        e("v_cmp_ne_u32 vcc, 4, v%d" % VP)
        e("s_cbranch_vccnz GT_SPIN")
        e.label("GT_OK")
    if GATE < 2:
        for s in range(6, min(9, WQ)): wdma(s)
    if WR:
        for s in range(4):
            vm.wait([("W", s)])
            for t in range(4): wread(s, t)
        lg.wait([("R", 3, 3)])
    if GATE: gate()
    if GATE == 2:
        for s in range(6, min(9, WQ)): wdma(s)
    if WR:
        for s in range(9, 13): wdma(s)
    vm.wait(["C"])
    e("s_cmp_eq_u32 s20, 0")
    e("s_cbranch_scc0 LH_SPIN")
    e("v_mov_b32 v%d, 0" % VP)
    check("CK", VC, 0, SD, "s97", "exec")
    check("PH", VP, VPH, SF, "1", "s[98:99]")
    e("v_mov_b32 v%d, 1" % VP)
    e("ds_write_b32 v%d, v%d offset:4" % (VPO, VP))
    e("s_branch LH_OK")
    lcheck("LH", 4)
    if not LST: stamp(e, 2)
    lg.q.append("x")
    for s in range(3 if WR else AD):
        for q in range(6): aload(s, q)
    if not WR:
        vm.wait([("W", 0)])
        for t in range(4): wread(0, t)

    pwb = [0] * 4
    CW = OPT.get("cw", 0)
    def pwrite(t, tag):
        for q in (range(6) if pwb[t] else [2, 3, 4, 5, 0, 1]):
            hi = 1 if PU[q] >= 7 else 0
            if pwb[t] != hi:
                e("v_add_u32 v%d, 0x%x, v%d" % (PW + t, (7 * 16384 * (hi - pwb[t])) & 0xffffffff, PW + t)); pwb[t] = hi
            lg.issue(tag, "ds_write_b128 v%d, %s offset:%d" % (PW + t, vr(16 * q + 4 * t, 4), 16384 * (PU[q] - 7 * hi) + 1024 * t))

    RR = [VPH, VPO, VP, VC, T0, 255]
    for s in range(NS):
        vm.wait([("A", s), ("W", s + 1)])
        if LST:
            if s in LST: stamp(e, 1 + LST.index(s))
        else:
            if s == 0: stamp(e, 3)
            if s == NH + 1: stamp(e, 4)
        for t in range(4):
            lg.wait([("R", s, t)])
            if t == 3 and s + AD == NH:
                if CW: e("s_barrier")
                else:
                    lg.wait(["PO"])
                    lcheck("PO", 8, False)
                e("s_lshl_b32 s46, s65, 7")
                e("s_add_u32 s46, s46, %d" % (G_OFF + 64))
                e("v_lshl_add_u32 v%d, v%d, 2, s46" % (T0 + 1, VL))
                e("v_and_b32 v255, 0x40000000, v%d" % (VA + 5))
                e("v_or_b32 v255, v255, v%d" % (T0 + 1))
                for q in range(6):
                    vm.issue("G", "buffer_load_dword v%d, v%d, s[%d:%d], 0 offen offset:%d sc1" % (RR[q], 255 if q == 5 else T0 + 1, SA, SA + 3, 128 * q))
            sc = t + 1 if s == NH and t < 3 else (0 if s == NH - 1 and t == 3 else None)
            if sc == 0: vm.wait(["G"])
            for q in range(6):
                acc = vr(16 * q + 4 * t, 4)
                if not (EXP & 4): e("%s %s, %s, %s, %s" % (MF, acc, vr(WREG(s) + 4 * t, 4), vr(AR + 24 * SLOT[s] + 4 * q, 4), "0" if s == 0 else acc))
                if t == 3: aload(ISS[s][0], q)
                if s + AD == NH and t < 2 and q % 2 == 0: oaddr(3 * t + q // 2)
                if sc is not None:
                    for j in range(4):
                        e("v_mul_f32 v%d, v%d, v%d" % (16 * q + 4 * sc + j, RR[q], 16 * q + 4 * sc + j))
            if CW and t == 0 and s in (OPT.get("x1", 4), NH): e("s_barrier")
            if not (WR and s < 3): wread(s + 1, t)
            if t == 3 and len(ISS[s]) > 1:
                for q in range(6): aload(ISS[s][1], q)
            if s + AD == NH and t == 1 and not CW:
                lg.issue("PO", "ds_read_b32 v%d, v%d offset:8" % (VP, VPO))
            if t == 3 and not (EXP & 8) and not CW and not (WR and s < 4 + OPT.get("wd", 0)): wdma(s + 9 - OPT.get("wd", 0))
            if s == NS - 1 and t: pwrite(t - 1, "PWO")
    e("s_nop 7")
    pwrite(3, "PWO")
    lg.wait(["PWO"])
    e("s_barrier")
    stamp(e, 5, True)
    stamp_flush(e, 4, 0)
    e("s_endpgm")


def gen_p2c(e):
    RA, OA, GA, GV, T0 = 200, 204, 208, 212, 220
    e.label("P2C")
    def publish(n):
        e("v_mov_b32 v255, 1")
        e("v_mov_b32 v%d, %d" % (T0 + 5, WORDS))
        e("s_mov_b64 exec, 1")
        e("s_waitcnt vmcnt(%d)" % n)
        e("ds_add_rtn_u32 v%d, v%d, v255" % (T0 + 4, T0 + 5))
        e("s_waitcnt lgkmcnt(0)")
        e("v_readfirstlane_b32 s59, v%d" % (T0 + 4))
        e("s_cmp_eq_u32 s59, 3")
        e("s_cbranch_scc0 PUB_SKIP")
        e("buffer_store_dword v255, off, s[24:27], s67 sc1")
        e.label("PUB_SKIP")
        e("s_mov_b64 exec, -1")
        stamp(e, 4 if OPT.get("cst", 0) else 3)
    EARLY = OPT.get("early", 0)
    if not EARLY: publish(0)
    tile_params(e)
    srd(e, 28, 60, 0, 2048 * 1280)
    srd(e, 36, 18, G_OFF, G_BYTES)
    e("v_mbcnt_lo_u32_b32 v%d, -1, 0" % VL)
    e("v_mbcnt_hi_u32_b32 v%d, -1, v%d" % (VL, VL))
    CW = OPT.get("cw", 0)
    if CW:
        srd(e, 88, 14, 0, 1536 * 1280)
        srd(e, 92, 8, 0, 640 * 1280)
        w_setup(e, 228, 229, T0)
        for s in range(9, 17):
            for n in range(4):
                base, c0, vw, sd = w_src(s, n, 228, 229, 88, 92)
                e("s_add_u32 s46, %s, %d" % (base, c0))
                e("buffer_load_dwordx4 %s, v%d, s[%d:%d], s46 offen" % (vr(16 * (s - 9) + 4 * n, 4), vw, sd, sd + 3))
        e("v_lshl_add_u32 v230, v%d, 4, s58" % VL)
        e("v_add_u32 v231, 0x10000, v230")
        e("v_add_u32 v232, 0x20000, v230")
        if EARLY: publish(32)
    def wput(s0):
        for s in range(s0, s0 + 4):
            for n in range(4):
                if n == 0 and s0 == 9: e("s_waitcnt vmcnt(%d)" % (4 * (16 - s)))
                u = UN(s)
                e("ds_write_b128 v%d, %s offset:%d" % (230 + (u >> 2), vr(16 * (s - 9) + 4 * n, 4), 16384 * (u & 3) + 1024 * n))
    e("v_lshrrev_b32 v%d, 3, v%d" % (T0, VL))
    e("v_and_b32 v%d, 7, v%d" % (T0 + 1, VL))
    e("v_lshl_add_u32 v%d, v%d, 1, v%d" % (T0 + 2, T0 + 1, T0))
    e("v_mul_u32_u24 v%d, 2560, v%d" % (T0 + 3, T0))
    e("v_lshl_add_u32 v%d, v%d, 4, v%d" % (T0 + 3, T0 + 1, T0 + 3))
    e("s_lshl_b32 s50, s64, 7")
    for k in range(3):
        e("s_mul_i32 s46, s20, 3")
        if k: e("s_add_u32 s46, s46, %d" % k)
        e("s_lshr_b32 s47, s46, 1")
        e("s_and_b32 s46, s46, 1")
        e("s_lshl_b32 s46, s46, 3")
        e("s_add_u32 s48, s47, 7")
        e("s_sub_u32 s49, s47, 2")
        e("s_cmp_lt_u32 s47, 2")
        e("s_cselect_b32 s48, s48, s49")
        e("s_lshl_b32 s48, s48, 14")
        e("v_add_u32 v%d, s46, v%d" % (RA + k, T0 + 2))
        e("v_and_b32 v%d, 15, v%d" % (RA + k, RA + k))
        e("v_lshl_add_u32 v%d, v%d, 4, s48" % (RA + k, RA + k))
        e("v_lshl_add_u32 v%d, v%d, 9, v%d" % (RA + k, T0 + 1, RA + k))
        e("s_cmp_lt_u32 s47, s66")
        e("s_cselect_b32 s51, 0, 0x40000000")
        e("s_add_u32 s47, s47, s65")
        e("s_lshl_b32 s48, s47, 5")
        e("s_add_u32 s48, s48, s46")
        e("s_lshl_b32 s48, s48, 2")
        e("s_or_b32 s48, s48, s51")
        e("v_lshl_add_u32 v%d, v%d, 2, s48" % (GA + k, T0))
        e("s_lshr_b32 s48, s47, 1")
        e("s_lshl_b32 s48, s48, 4")
        e("s_add_u32 s48, s48, s46")
        e("s_lshl_b32 s48, s48, 1")
        e("s_and_b32 s47, s47, 1")
        e("s_add_u32 s48, s48, s47")
        e("s_mul_i32 s48, s48, 1280")
        e("s_add_u32 s48, s48, s50")
        e("s_or_b32 s48, s48, s51")
        e("v_add_u32 v%d, s48, v%d" % (OA + k, T0 + 3))
    def reads(b):
        for k in range(3):
            for w in range(4):
                for h in range(2):
                    e("ds_read_b128 %s, v%d offset:%d" % (vr(b + 32 * k + 8 * w + 4 * h, 4), RA + k, 4096 * w + 256 * h))
    def sums(b, k):
        r = b + 32 * k
        for a, c in ((0, 8), (16, 24), (0, 16)):
            for j in range(0, 8, 2):
                e("v_pk_add_f32 %s, %s, %s" % (vr(r + a + j, 2), vr(r + a + j, 2), vr(r + c + j, 2)))
    if CW:
        e("s_barrier")
        wput(9)
    if not CW:
        e.label("CH_SPIN")
        e("ds_read_b32 v%d, v%d offset:4" % (T0 + 4, T0 + 5))
        e("s_waitcnt lgkmcnt(0)")
        e("v_cmp_ne_u32 vcc, 0, v%d" % (T0 + 4))
        e("s_cbranch_vccz CH_SPIN")
    for k in range(3):
        e("buffer_load_dword v%d, v%d, s[36:39], 0 offen sc1" % (GV + k, GA + k))
    e("s_cmp_eq_u32 s59, 3")
    e("s_cbranch_scc0 OP_OK")
    e("s_add_u32 s47, s65, s66")
    e("s_sub_u32 s47, s47, 1")
    e("s_lshr_b32 s54, s65, 1")
    e("s_mul_i32 s54, s54, %d" % (16 * 1150))
    e("s_lshr_b32 s54, s54, 16")
    e("s_lshr_b32 s49, s47, 1")
    e("s_mul_i32 s49, s49, %d" % (16 * 1150))
    e("s_add_u32 s49, s49, %d" % (15 * 1150))
    e("s_lshr_b32 s49, s49, 16")
    e("s_sub_u32 s49, s49, s54")
    e("s_lshl_b32 s54, s54, 8")
    e("s_add_u32 s54, s54, 4096")
    e("s_lshl_b32 s49, s49, 8")
    e("v_and_b32 v%d, 1, v%d" % (T0 + 6, T0))
    e("v_mul_u32_u24 v%d, s49, v%d" % (T0 + 6, T0 + 6))
    e("v_lshl_add_u32 v%d, v%d, 4, v%d" % (T0 + 6, T0 + 1, T0 + 6))
    e("s_mov_b64 exec, 0xffff")
    e("s_mov_b32 s59, 0")
    e.label("OP_SPIN")
    e("buffer_load_dword v%d, v%d, s[24:27], s54 offen sc1" % (T0 + 4, T0 + 6))
    e("s_add_u32 s59, s59, 1")
    e("s_waitcnt vmcnt(0)")
    e("v_cmp_ne_u32 vcc, 1, v%d" % (T0 + 4))
    e("s_cbranch_vccz OP_SET")
    e("s_cmp_lt_u32 s59, %d" % SPIN)
    e("s_cbranch_scc1 OP_SPIN")
    e.label("OP_SET")
    if not CW: e("ds_write_b32 v%d, v255 offset:8" % (T0 + 5))
    e("s_mov_b64 exec, -1")
    e.label("OP_OK")
    e("s_waitcnt lgkmcnt(0)")
    if CW:
        e("s_barrier")
        e("s_waitcnt vmcnt(0)")
        wput(13)
        e("s_waitcnt lgkmcnt(0)")
        e("s_barrier")
    if not OPT.get("cst", 0): stamp(e, 4)
    e("s_waitcnt vmcnt(0)")
    e("s_barrier")
    reads(0)
    for k in range(3):
        e("s_waitcnt lgkmcnt(%d)" % min(15, 8 * (2 - k)))
        sums(0, k)
        for j in range(8):
            e("v_mul_f32 v%d, v%d, v%d" % (32 * k + j, GV + k, 32 * k + j))
        for j in range(4):
            e("v_cvt_pk_bf16_f32 v%d, v%d, v%d" % (32 * k + 8 + j, 32 * k + 2 * j, 32 * k + 2 * j + 1))
        e("buffer_store_dwordx4 %s, v%d, s[28:31], 0 offen" % (vr(32 * k + 8, 4), OA + k))
    stamp(e, 5, True)
    stamp_flush(e, 0, 224)
    e("s_endpgm")


def gen_spare(e):
    mode = OPT.get("spare", 2)
    if not mode:
        return
    e("s_sub_u32 s46, s22, 30")
    e("s_lshl_b32 s46, s46, 9")
    e("v_add_u32 v1, s46, v0")
    e("v_lshlrev_b32 v1, 7, v1")
    e("s_waitcnt lgkmcnt(0)")
    srd(e, 24, 14, 0, 1536 * 1280)
    srd(e, 28, 8, 0, 640 * 1280)
    if OPT.get("kp", 1):
        k0 = OPT.get("k0", 5)
        srd(e, 32, 4, 0, 2048 * 1280)
        srd(e, 36, 6, 0, 640 * 3840)
        srd(e, 40, 12, 0, 640 * 3072)
        e("s_sub_u32 s46, s2, 240")
        e("s_lshl_b32 s46, s46, 1")
        e("s_and_b32 s47, s20, 1")
        e("s_add_u32 s46, s46, s47")
        e("s_lshl_b32 s46, s46, 6")
        e("v_add_u32 v4, s46, v%d" % VL)
        e("s_lshr_b32 s47, s20, 1")
        XW = OPT.get("xw", 0)
        if XW:
            e("s_cmp_lt_u32 s20, 4")
            e("s_cbranch_scc1 KPX")
            e("s_sub_u32 s48, s22, 31")
            e("s_lshl_b32 s48, s48, 2")
            e("s_add_u32 s48, s48, s20")
            e("s_lshl_b32 s48, s48, 3")
            e("v_lshrrev_b32 v5, 3, v%d" % VL)
            e("v_add_u32 v5, s48, v5")
            e("v_mul_u32_u24 v5, 3072, v5")
            e("v_and_b32 v6, 7, v%d" % VL)
            e("v_lshl_add_u32 v5, v6, 7, v5")
            e("s_lshr_b32 s48, s21, 1")
            e("s_mul_i32 s48, s48, 3")
            e("s_lshr_b32 s48, s48, 1")
            e("s_lshl_b32 s48, s48, 9")
            e("v_add_u32 v5, s48, v5")
            for k in range(XW - 1, 10):
                e("s_mov_b32 s48, %d" % (64 * 3072 * k))
                e("buffer_load_dword v3, v5, s[40:43], s48 offen")
            e("s_branch KP_END")
            e.label("KPX")
        for i, (sd, mul, n, step) in enumerate(((32, 1280, 2048, 128), (36, 128, 1920, 64 * 3840), (40, 128, 1536, 64 * 3072))):
            e("s_cmp_eq_u32 s47, %d" % i)
            e("s_cbranch_scc0 KP%d" % i)
            e("s_cmp_ge_u32 s46, %d" % n)
            e("s_cbranch_scc1 KP_END")
            e("v_mul_u32_u24 v4, %d, v4" % mul)
            for k in range(k0, 10):
                e("s_mov_b32 s48, %d" % (step * k))
                e("buffer_load_dword v3, v4, s[%d:%d], s48 offen" % (sd, sd + 3))
            e("s_branch KP_END")
            e.label("KP%d" % i)
        e.label("KP_END")
        if OPT.get("kb", 1): e("s_barrier")
    n2, no = {1: (15, 7), 2: (2, 1), 3: (0, 7)}[mode]
    dep = OPT.get("sdep", 1)
    e("s_lshl_b32 s46, s21, 1")
    e("s_mov_b32 s49, s21")
    def touch(sc, lim, sd):
        e("s_cmp_ge_u32 s%d, %d" % (sc, lim))
        e("s_cselect_b32 s%d, 0, s%d" % (sc, sc))
        e("s_lshl_b32 s47, s%d, 17" % sc)
        e("v_add_u32 v2, s47, v1")
        e("buffer_load_dword v3, v2, s[%d:%d], 0 offen" % (sd, sd + 3))
        e("s_add_u32 s%d, s%d, 1" % (sc, sc))
        e("s_waitcnt vmcnt(%d)" % dep)
    c0 = 120 * 8 * OPT.get("ns", 0) // 1024
    for i in range(n2 if not c0 else 2):
        touch(46, 15, 24)
        if i == 1: touch(49, 7, 28)
    if c0:
        e("s_mov_b32 s46, %d" % c0)
        for i in range(c0, 15): touch(46, 15, 24)
    for i in range(no - 1): touch(49, 7, 28)


def main():
    K = NAME + "_kernel"
    e = Asm()
    e.label(K)
    e("s_cmp_ge_u32 s2, 256")
    e("s_cbranch_scc1 K_END")
    if OPT.get("perm", 0):
        e("s_mul_i32 s2, s2, %d" % OPT["perm"])
        e("s_add_u32 s2, s2, 77")
        e("s_and_b32 s2, s2, 255")
    e("s_load_dwordx8 s[4:11], s[0:1], 0")
    e("s_load_dwordx4 s[12:15], s[0:1], 32")
    e("s_load_dwordx2 s[16:17], s[0:1], 48")
    e("s_load_dwordx2 s[18:19], s[0:1], 72")
    e("s_load_dwordx2 s[60:61], s[0:1], 56")
    e("s_load_dwordx2 s[62:63], s[0:1], 64")
    stamp(e, 0)
    e("v_lshrrev_b32 v1, 6, v0")
    e("v_and_b32 v%d, 63, v0" % VL)
    e("v_readfirstlane_b32 s20, v1")
    e("s_and_b32 s21, s2, 7")
    e("s_lshr_b32 s22, s2, 3")
    e("s_cmp_ge_u32 s22, 30")
    e("s_cbranch_scc1 K_SPARE")
    e("s_cmp_ge_u32 s22, 18")
    e("s_cbranch_scc1 K_FFN")
    gen_qkv(e)
    e.label("K_FFN")
    gen_ffn(e)
    gen_p2c(e)
    gen_p2l(e)
    e.label("K_SPARE")
    gen_spare(e)
    e.label("K_END")
    e("s_endpgm")
    out = "; @launch grid=(256,1,1) block=(512,1,1) lds=%d\n" % K1_LDS
    out += '.amdgcn_target "amdgcn-amd-amdhsa--gfx950"\n.text\n'
    out += ".globl %s\n.p2align 8\n.type %s,@function\n" % (K, K) + e.text()
    out += '.section .rodata,"a"\n.p2align 6\n' + kd(K, 256, 256)
    open(sys.argv[1], "w").write(out)


if __name__ == "__main__":
    main()
```

```python
import struct, sys
from gen import Asm, vr, ar, sr, srd, interleave, kd, OPT, NAME, ACT_OFF, RB_STRIDE, ACT_BYTES, G_OFF, G_BYTES, STAMP_OFF
from sched import schedule
FLAG_OFF = 0xC10000
FLAG_BYTES = 16384
SPIN = 20000
G_BYTES = 128 * 128
OB1, OB2, WS_SPAN = 0x1100000, 0x1420000, 0x1500000
GS = 1600 * 16
KS, PS = 4 * GS, 64 * GS
CS = GS // 2
PS2 = 32 * CS
WORDS = 163840 - 16
OPT.setdefault("map", 1)


def stamp(e, idx, last=False):
    if not OPT["stamp"]:
        return
    e("s_memtime s[%d:%d]" % (72 + 2 * idx, 73 + 2 * idx))
    if idx == 0:
        e("s_memrealtime s[84:85]")
    if last:
        e("s_memrealtime s[86:87]")


def stamp_flush(e, wadd, vt):
    if not OPT["stamp"]:
        return
    e("s_waitcnt lgkmcnt(0)")
    srd(e, 24, 18, STAMP_OFF, 0x40000)
    e("s_lshl_b32 s96, s2, 3")
    e("s_add_u32 s96, s96, s20")
    e("s_add_u32 s96, s96, %d" % wadd)
    e("s_lshl_b32 s96, s96, 6")
    e("s_mov_b64 exec, 1")
    for i in range(8):
        e("v_mov_b32 v%d, s%d" % (vt + i, 72 + 2 * i))
        e("buffer_store_dword v%d, off, s[24:27], s96 offset:%d" % (vt + i, 4 * i))

K1_LDS = 163840
QST = 16384
FST = 17408
GT_OFF = 6 * FST + 3 * 16384
NEG = 0xEF800000
SC1 = [" sc1", "", " sc0 sc1", " sc1 nt"][OPT.get("st", 0)]
MF = "v_mfma_f32_16x16x32_bf16"

def f2u(x):
    return struct.unpack("<I", struct.pack("<f", x))[0]

SWAVE, SX, SY = 20, 21, 22
SW, SXS, SO, SG = 24, 28, 32, 36
VL = 254


def loader(e, tag, wst, wimm, wstep, pre=None):
    pair = 2 * wst + 16384
    xstep = 128
    e("s_mov_b32 s42, %d" % (2 * pair))
    e("s_mul_i32 s43, s48, %d" % (2 * wstep))
    e("s_mul_i32 s44, s48, %d" % xstep)
    e("s_mov_b32 s45, 0")
    TW = OPT.get("tw", 0)
    if TW:
        srd(e, 88, 14, 0, 1536 * 1280)
        e("s_lshr_b32 s46, s2, 3")
        e("s_lshl_b32 s46, s46, 11")
        e("s_mul_i32 s47, s20, 491520")
        e("s_add_u32 s46, s46, s47")
        e("v_lshl_add_u32 v19, v%d, 7, s46" % VL)
        e("v_lshlrev_b32 v20, 26, v%d" % VL)
        e("v_and_b32 v20, 0xc0000000, v20")
        e("v_or_b32 v19, v19, v20")
    if pre: pre()
    def W(so):
        for i in range(4):
            e("buffer_load_dwordx4 v%d, s[%d:%d], %s offen offset:%d lds" % (10 + i, SW, SW + 3, so, wimm * i))
    def X(j):
        for i in range(2):
            e("buffer_load_dwordx4 v%d, s[%d:%d], s44 offen offset:%d lds" % (14 + 2 * j + i, SXS, SXS + 3, 1024 * i))
    P3 = OPT.get("pre3", 0)
    PA = OPT.get("pa", 0)
    PB = OPT.get("pb", 0)
    for lab, lim in ([("_PRE", 1), ("_RET", 2), ("_RL", 10)] if PB else [("_PRE", 2 + P3)] + ([("_MID", PA)] if PA else []) + [("_RET", 10)]):
        e.label(tag + lab)
        if lim == 10 and P3:
            e("s_waitcnt vmcnt(24)")
            e("s_barrier")
            lab = "_RL"
            e.label(tag + lab)
        if lab != "_PRE" and lim > 2:
            e("s_waitcnt vmcnt(%d)" % (14 if TW else 12))
            e("s_barrier")
        e("s_add_u32 m0, s42, s41")
        e("s_add_u32 s46, s43, %d" % wstep)
        X(0)
        e("s_add_u32 m0, m0, 2048")
        e("s_add_u32 s48, s48, 1")
        X(1)
        e("s_add_u32 m0, s42, s40")
        e("s_add_u32 s44, s44, %d" % xstep)
        W("s43")
        e("s_add_u32 m0, m0, %d" % wst)
        e("s_add_u32 s43, s43, %d" % (2 * wstep))
        W("s46")
        NSM = OPT.get("ns", 0)
        if NSM and lim == 10:
            for i in range(NSM):
                e("s_buffer_load_dword s96, s[88:91], s59 offset:%d" % (128 * i))
            e("s_add_u32 s59, s59, %d" % (128 * NSM))
        if TW:
            e("buffer_load_dword v20, v19, s[88:91], 0 offen")
            e("v_add_u32 v19, 61440, v19")
        e("s_cmp_eq_u32 s48, 10")
        e("s_cselect_b32 s43, 0, s43")
        e("s_cselect_b32 s44, 0, s44")
        e("s_add_u32 s42, s42, %d" % pair)
        e("s_cmp_eq_u32 s42, %d" % (3 * pair))
        e("s_cselect_b32 s42, 0, s42")
        e("s_add_u32 s45, s45, 1")
        if PB and lim == 2: continue
        if not (PB and lim == 1):
            e("s_cmp_lt_u32 s45, %d" % lim)
            e("s_cbranch_scc1 %s%s" % (tag, lab))
        if not (PA and lab == "_PRE"): e("s_branch %s" % ("P2S" if lim < 10 else "P2L"))


def rot_calc(e, a, b, pf):
    R = OPT.get(pf + "R", OPT.get("R", 4)); mult = OPT.get(pf + "m", 1); base = OPT.get(pf + "b", 0)
    if R == 1:
        e("s_mov_b32 s48, %d" % base); return
    e("s_add_u32 s48, s%d, s%d" % (a, b))
    e("s_mul_i32 s49, s48, %d" % ((1024 + R - 1) // R))
    e("s_lshr_b32 s49, s49, 10")
    e("s_mul_i32 s49, s49, %d" % R)
    e("s_sub_u32 s48, s48, s49")
    if mult != 1: e("s_mul_i32 s48, s48, %d" % mult)
    if base: e("s_add_u32 s48, s48, %d" % base)


def x_lane(e):
    e("v_lshrrev_b32 v2, 3, v%d" % VL)
    e("v_mul_u32_u24 v2, 2560, v2")
    e("v_lshrrev_b32 v3, 4, v%d" % VL)
    e("v_xor_b32 v3, v3, v%d" % VL)
    e("v_and_b32 v3, 7, v3")
    e("v_lshl_add_u32 v2, v3, 4, v2")
    e("v_xor_b32 v3, 64, v2")
    e("v_add_u32 v3, %d, v3" % (8 * 2560 - 1024))


def x_read_addr(e, vd, vl, vg, sbase):
    e("v_bfe_u32 v5, v%d, 1, 3" % vl)
    e("v_xor_b32 v5, v5, v%d" % vg)
    e("v_and_b32 v6, 15, v%d" % vl)
    e("v_lshlrev_b32 v6, 7, v6")
    e("v_lshl_add_u32 v6, v5, 4, v6")
    e("v_add_u32 v%d, %s, v6" % (vd, sbase))
    e("v_xor_b32 v%d, 64, v%d" % (vd + 1, vd))


def mainloop(e, tag, stage, reads, mfmas, nbase, vbase, vcur, extra_upd=None, extra_s=None, vt=253, peel=False):
    e("s_mov_b32 s42, %d" % (2 * (2 * stage + 16384)))
    for i in range(nbase):
        e("v_add_u32 v%d, s42, v%d" % (vcur + i, vbase + i))
    e("s_mov_b32 s45, 0")
    TC = OPT.get("tc", 0)
    if TC:
        srd(e, 88, 14, 0, 1536 * 1280)
        e("s_lshr_b32 s46, s2, 3")
        e("s_lshl_b32 s46, s46, 11")
        e("s_mul_i32 s47, s20, 491520")
        e("s_add_u32 s46, s46, s47")
        e("v_mbcnt_lo_u32_b32 v255, -1, 0")
        e("v_mbcnt_hi_u32_b32 v255, -1, v255")
        e("v_lshlrev_b32 v128, 26, v255")
        e("v_lshl_add_u32 v255, v255, 7, s46")
        e("v_and_b32 v128, 0xc0000000, v128")
        e("v_or_b32 v255, v255, v128")
        e("s_mov_b32 m0, %d" % (WORDS - 512))
    e("s_barrier")
    stamp(e, 1)
    for r in reads(0, 0, 0):
        e(r)
    e.label(tag + "_LOOP")
    e("s_add_u32 s42, s42, %d" % (2 * stage + 16384))
    e("s_cmp_eq_u32 s42, %d" % (3 * (2 * stage + 16384)))
    e("s_cselect_b32 s42, 0, s42")
    e("s_add_u32 s45, s45, 1")
    if TC:
        e("buffer_load_dword v255, s[88:91], 0 offen lds")
        e("v_add_u32 v255, 61440, v255")
    for x in extra_s or []:
        e(x)
    e("s_waitcnt lgkmcnt(0)")
    upd = ["v_add_u32 v%d, s42, v%d" % (vcur + i, vbase + i) for i in range(nbase)] + (extra_upd or [])
    for x in interleave(mfmas(0), reads(1, stage, 1) + upd):
        e(x)
    if peel: e("s_cmp_eq_u32 s45, 10")
    e("s_waitcnt lgkmcnt(0)")
    e("s_barrier")
    if peel: e("s_cbranch_scc1 %s_TAIL" % tag)
    for x in interleave(mfmas(1), reads(0, 0, 0)):
        e(x)
    if peel:
        e("s_branch %s_LOOP" % tag)
        e.label(tag + "_TAIL")
        return
    e("s_cmp_lt_u32 s45, 10")
    e("s_cbranch_scc1 %s_LOOP" % tag)
    e("s_waitcnt lgkmcnt(0)")


def lane_pos0(e, vl, vg, vc, vp):
    e("v_lshrrev_b32 v%d, 4, v%d" % (vg, vl))
    e("v_and_b32 v%d, 3, v%d" % (vc, vl))
    e("v_bfe_u32 v%d, v%d, 2, 3" % (vp, vl))
    e("v_lshrrev_b32 v1, 5, v%d" % vl)
    e("v_lshl_add_u32 v%d, v1, 4, v%d" % (vp, vp))


def kperm(e, vk, vp, t):
    e("v_and_b32 v%d, 0x33, v%d" % (vk, vp))
    e("v_and_b32 v%d, 4, v%d" % (t, vp))
    e("v_lshl_or_b32 v%d, v%d, 1, v%d" % (vk, t, vk))
    e("v_and_b32 v%d, 8, v%d" % (t, vp))
    e("v_lshrrev_b32 v%d, 1, v%d" % (t, t))
    e("v_or_b32 v%d, v%d, v%d" % (vk, t, vk))


def gen_qkv(e):
    if OPT.get("map", 0) == 1:
        e("s_and_b32 s46, s21, 1")
        e("s_and_b32 s21, s21, 6")
        e("s_cmp_ge_u32 s22, 9")
        e("s_addc_u32 s21, s21, 0")
        e("s_cmp_ge_u32 s22, 9")
        e("s_cselect_b32 s47, 9, 0")
        e("s_sub_u32 s22, s22, s47")
        e("s_mul_i32 s46, s46, 9")
        e("s_add_u32 s22, s22, s46")
    e("s_mul_i32 s23, s22, 114")
    e("s_sub_u32 s23, s23, 14")
    e("s_cmp_lt_u32 s20, 4")
    e("s_cbranch_scc1 QKV_C")
    e("s_sub_u32 s20, s20, 4")
    e("s_lshl_b32 s40, s20, 12")
    e("s_add_u32 s41, s40, %d" % (2 * QST))
    rot_calc(e, 21, 22, "q")
    e("s_mul_i32 s46, s21, 160")
    e("s_lshl_b32 s47, s20, 8")
    for i in range(4):
        e("v_add_u32 v2, s47, v%d" % VL)
        if i: e("v_add_u32 v2, %d, v2" % (64 * i))
        e("v_mul_u32_u24 v3, 2185, v2")
        e("v_lshrrev_b32 v3, 16, v3")
        e("v_mul_u32_u24 v4, 30, v3")
        e("v_sub_u32 v4, v2, v4")
        e("v_mul_u32_u24 v5, 205, v4")
        e("v_lshrrev_b32 v5, 11, v5")
        kperm(e, 6, 3, 7)
        e("v_mul_u32_u24 v6, 3840, v6")
        e("v_mul_u32_u24 v5, 1120, v5")
        e("v_lshl_add_u32 v6, v4, 4, v6")
        e("v_add3_u32 v%d, v6, v5, s46" % (10 + i))
        e("s_sub_u32 s46, s46, 1024")
    e("s_cmp_eq_u32 s20, 3")
    e("s_cselect_b32 s47, 0x40000000, 0")
    e("v_or_b32 v13, s47, v13")
    e("s_lshr_b32 s46, s20, 1")
    e("s_add_u32 s46, s46, s23")
    e("s_and_b32 s47, s20, 1")
    e("s_lshl_b32 s47, s47, 6")
    e("s_add_u32 s46, s46, s47")
    e("s_mul_i32 s46, s46, 1280")
    x_lane(e)
    e("v_add_u32 v14, s46, v2")
    e("v_add_u32 v15, s46, v3")
    e("v_add_u32 v16, %d, v14" % (32 * 1280))
    e("v_add_u32 v17, %d, v15" % (32 * 1280))
    e("s_waitcnt lgkmcnt(0)")
    srd(e, SW, 6, 0, 640 * 1920 * 2)
    srd(e, SXS, 4, 0, 2048 * 640 * 2)
    loader(e, "QL", QST, 1024, 32 * 3840)

    e.label("QKV_C")
    VB, VCUR = 224, 228
    CC, CP, CF, MP, MG0, MG1, MV0, MV1, ON0, ON1, OS0, OS1, ONES = 232, 236, 240, 244, 246, 247, 248, 249, 250, 251, 252, 253, 224
    ON4 = 254
    e("s_lshr_b32 s40, s20, 1")
    e("s_and_b32 s41, s20, 1")
    e("v_mov_b32 v9, v%d" % VL)
    lane_pos0(e, 9, 2, 3, 4)
    e("s_mul_i32 s46, s41, 80")
    e("v_mul_u32_u24 v4, 480, v4")
    e("v_add_u32 v4, s46, v4")
    e("v_lshl_add_u32 v%d, v3, 3, v4" % VB)
    e("v_and_b32 v5, 1, v3")
    e("v_mul_u32_u24 v5, 40, v5")
    e("v_lshrrev_b32 v6, 1, v3")
    e("v_mul_u32_u24 v6, 160, v6")
    e("v_add3_u32 v4, v4, v5, v6")
    e("v_add_u32 v%d, 32, v4" % (VB + 1))
    e("s_lshl_b32 s46, s40, 13")
    e("s_add_u32 s46, s46, %d" % (2 * QST))
    x_read_addr(e, VB + 2, 9, 2, "s46")
    e("v_and_b32 v3, 15, v9")
    e("v_lshlrev_b32 v4, 2, v2")
    e("v_sub_u32 v5, v3, v4")
    e("s_cmp_eq_u32 s22, 0")
    e("s_cselect_b32 s46, 7, 0")
    e("v_subrev_u32 v4, s46, v4")
    e("s_mov_b32 s47, 0x%x" % NEG)
    for r in range(4):
        e("v_subrev_u32 v6, %d, v5" % r)
        e("v_ashrrev_i32 v%d, 31, v6" % (10 + r))
        e("v_sub_u32 v7, 7, v6")
        e("v_ashrrev_i32 v7, 31, v7")
        e("v_or_b32 v7, v7, v%d" % (10 + r))
        e("v_and_b32 v%d, s47, v7" % (CC + r))
        e("v_sub_u32 v8, -9, v6")
        e("v_ashrrev_i32 v8, 31, v8")
        e("v_and_b32 v%d, s47, v8" % (CP + r))
        e("v_add_u32 v8, %d, v4" % r)
        e("v_ashrrev_i32 v8, 31, v8")
        e("v_or_b32 v7, v7, v8")
        e("v_and_b32 v%d, s47, v7" % (CF + r))
    e("s_mov_b32 s47, 0xffff")
    e("v_bfi_b32 v%d, s47, v10, v11" % MP)
    e("v_bfi_b32 v%d, s47, v12, v13" % (MP + 1))
    e("v_add_u32 v6, -1, v2")
    e("v_ashrrev_i32 v%d, 31, v6" % MG0)
    e("v_xor_b32 v6, 1, v2")
    e("v_add_u32 v6, -1, v6")
    e("v_ashrrev_i32 v%d, 31, v6" % MG1)
    e("v_add_u32 v6, -4, v3")
    e("v_ashrrev_i32 v%d, 31, v6" % MV0)
    e("v_xor_b32 v6, 4, v3")
    e("v_add_u32 v6, -4, v6")
    e("v_ashrrev_i32 v%d, 31, v6" % MV1)
    e("s_mul_i32 s46, s22, 57")
    e("s_add_u32 s46, s46, 9")
    e("s_and_b32 s47, s46, 15")
    e("v_add_u32 v6, s47, v3")
    e("v_cmp_lt_u32 s[56:57], 15, v6")
    e("v_and_b32 v6, 15, v6")
    e("s_sub_u32 s46, s46, s47")
    e("s_lshl_b32 s49, s22, 5")
    e("s_add_u32 s46, s46, s49")
    e("s_add_u32 s46, s46, 16")
    e("v_add_u32 v7, s46, v6")
    e("v_mul_u32_u24 v8, %d, v2" % CS)
    e("v_lshl_add_u32 v7, v7, 3, v8")
    e("s_lshl_b32 s46, s21, 1")
    e("s_add_u32 s46, s46, s41")
    e("s_mul_i32 s49, s46, %d" % KS)
    e("s_mul_i32 s50, s40, %d" % PS)
    e("s_add_u32 s49, s49, s50")
    e("s_add_u32 s49, s49, %d" % OB1)
    e("v_lshl_add_u32 v%d, v7, 1, s49" % ON1)
    e("s_mul_i32 s49, s46, %d" % (2 * CS))
    e("s_mul_i32 s50, s40, %d" % PS2)
    e("s_add_u32 s49, s49, s50")
    e("s_add_u32 s49, s49, %d" % OB2)
    e("v_lshlrev_b32 v8, 29, v2")
    e("v_and_b32 v8, 0x40000000, v8")
    e("v_add3_u32 v%d, v7, v8, s49" % OS1)
    e("v_and_b32 v6, 8, v6")
    e("v_subrev_u32 v6, s47, v6")
    e("v_and_b32 v6, 0x40000000, v6")
    e("v_add_u32 v7, -256, v%d" % ON1)
    e("v_or_b32 v%d, v6, v7" % ON0)
    e("v_xor_b32 v6, 0x40000000, v6")
    e("v_or_b32 v%d, v6, v%d" % (ON4, ON1))
    e("s_cmp_gt_u32 s47, 8")
    e("s_cselect_b32 s46, 0x40000000, 0")
    e("v_add_u32 v7, -128, v%d" % OS1)
    e("v_or_b32 v%d, s46, v7" % OS0)
    for i in range(64):
        e("v_mov_b64 v[%d:%d], 0" % (2 * i, 2 * i + 1))
    e("s_waitcnt lgkmcnt(0)")
    srd(e, SO, 18, 0, WS_SPAN)
    c = f2u(20 ** -0.5 * 1.4426950408889634)
    e("s_mov_b32 s50, 0x%x" % c)
    e("s_mov_b32 s51, 0x%x" % c)
    e("s_mov_b32 s52, 0x%x" % (c ^ 0x80000000))
    e("s_mov_b64 s[54:55], 0xffff")

    TOFF = [(0, 0), (0, 40), (0, 160), (0, 200), (1, 0), (0, 320), (0, 360), (1, 320)]
    def reads(buf, imm, half):
        b = 128 + 48 * buf
        out = []
        for q in range(4):
            out.append("ds_read_b128 %s, v%d offset:%d" % (vr(b + 32 + 4 * q, 4), VCUR + 2 + half, 2048 * q))
        for t in range(8):
            for h in range(2):
                out.append("ds_read_b64_tr_b16 %s, v%d offset:%d" % (vr(b + 4 * t + 2 * h, 2), VCUR + TOFF[t][0], imm + TOFF[t][1] + 3840 * h))
        return out
    def mfmas(buf):
        b = 128 + 48 * buf
        out = []
        for t in range(8):
            for q in range(4):
                acc = vr((q * 8 + t) * 4, 4); w = vr(b + 4 * t, 4); x = vr(b + 32 + 4 * q, 4)
                out.append("%s %s, %s, %s, %s" % ((MF, acc, w, x, acc) if t < 5 else (MF, acc, x, w, acc)))
        return out
    e("s_lshl_b32 s67, s22, 8")
    e("s_lshl_b32 s46, s21, 4")
    e("s_add_u32 s67, s67, s46")
    e("s_add_u32 s67, s67, 4096")
    announce(e, "QA")
    mainloop(e, "QC", QST, reads, mfmas, 4, VB, VCUR)
    stamp(e, 2)
    e("s_nop 7")
    KB, QB, V0B, V1B, V7A, V7B = 128, 152, 184, 192, 200, 208
    L = ["v_mov_b32 v%d, 0x3f803f80" % (ONES + r) for r in range(4)]
    def cvt(d, s):
        L.append("v_cvt_pk_bf16_f32 v%d, v%d, v%d" % (d, s, s + 1))
        L.append("v_cvt_pk_bf16_f32 v%d, v%d, v%d" % (d + 1, s + 2, s + 3))
    def conv_kq(q):
        a = 32 * q; k = KB + 6 * q; qq = QB + 8 * q
        cvt(qq + 2, a + 16); cvt(k + 2, a + 16)
        cvt(k, a + 8); cvt(k + 4, a + 12); cvt(qq, a); cvt(qq + 6, a + 4)
        for i in range(2):
            L.append("v_permlane32_swap_b32 v%d, v%d" % (qq + 2 + i, k + 2 + i))
        for i in range(2):
            L.append("v_and_b32 v%d, v%d, v%d" % (qq + 4 + i, MG1, qq + 2 + i))
            L.append("v_and_b32 v%d, v%d, v%d" % (qq + 2 + i, MG0, qq + 2 + i))
    def conv_v(q):
        a = 32 * q
        cvt(V0B + 2 * q, a + 20); cvt(V1B + 2 * q, a + 24); cvt(V7A + 2 * q, a + 28)
        for i in range(2):
            L.append("v_and_b32 v%d, v%d, v%d" % (V7B + 2 * q + i, MV1, V7A + 2 * q + i))
            L.append("v_and_b32 v%d, v%d, v%d" % (V7A + 2 * q + i, MV0, V7A + 2 * q + i))
    def SC(q, h): return 32 * q + 12 * h
    def SP(q, h): return 32 * q + 12 * h + 4
    def PP(q, h): return 32 * q + 12 * h + 8
    def MM(q, h): return 32 * q + 28 + 2 * h
    def scores(q, h):
        qq = vr(QB + 8 * q + 4 * h, 4)
        L.append("%s %s, %s, %s, %s" % (MF, vr(SC(q, h), 4), vr(KB + 6 * q + 2 * h, 4), qq, vr(CF if q == 0 else CC, 4)))
        if q:
            L.append("%s %s, %s, %s, %s" % (MF, vr(SP(q, h), 4), vr(KB + 6 * (q - 1) + 2 * h, 4), qq, vr(CP, 4)))
    def lmax(q, h):
        s = SC(q, h)
        if q:
            for r in range(4):
                L.append("v_max_f32 v%d, v%d, v%d" % (s + r, s + r, SP(q, h) + r))
        L.append("v_max3_f32 v%d, v%d, v%d, v%d" % (MM(q, h), s, s + 1, s + 2))
        L.append("v_max_f32 v%d, v%d, v%d" % (MM(q, h), MM(q, h), s + 3))
    def gmax(q0):
        a, b, c_, d = MM(q0, 0), MM(q0, 1), MM(q0 + 1, 0), MM(q0 + 1, 1)
        L.extend(["v_permlane32_swap_b32 v%d, v%d" % (a, b), "v_permlane32_swap_b32 v%d, v%d" % (c_, d),
                  "v_max_f32 v%d, v%d, v%d" % (a, a, b), "v_max_f32 v%d, v%d, v%d" % (c_, c_, d),
                  "v_permlane16_swap_b32 v%d, v%d" % (a, c_), "v_max_f32 v%d, v%d, v%d" % (a, a, c_),
                  "v_mul_f32 v%d, s52, v%d" % (c_, a), "v_mul_f32 v%d, s52, v%d" % (a, a),
                  "v_permlane16_swap_b32 v%d, v%d" % (a, c_),
                  "v_mov_b32 v%d, v%d" % (b, a), "v_mov_b32 v%d, v%d" % (d, c_),
                  "v_permlane32_swap_b32 v%d, v%d" % (a, b), "v_permlane32_swap_b32 v%d, v%d" % (c_, d)])
    def probs(q, h):
        s = SC(q, h); p = PP(q, h); m = vr(MM(q, h), 2)
        sel = "op_sel:[0,0,0] op_sel_hi:[1,1,0]"
        for k in range(2):
            L.append("v_pk_fma_f32 %s, %s, s[50:51], %s %s" % (vr(s + 2 * k, 2), vr(s + 2 * k, 2), m, sel))
        for r in range(4):
            L.append("v_exp_f32 v%d, v%d" % (s + r, s + r))
        if q == 0:
            cvt(p, s)
            L.append("v_mov_b64 %s, 0" % vr(p + 2, 2))
        else:
            cvt(p + 2, s)
            for k in range(2):
                L.append("v_and_b32 v%d, v%d, v%d" % (p + k, MP + k, p + 2 + k))
                L.append("v_xor_b32 v%d, v%d, v%d" % (p + 2 + k, p + k, p + 2 + k))
    def pv(q, h):
        p = vr(PP(q, h), 4); o = 2 * max(q - 1, 0)
        L.append("%s %s, %s, %s, 0" % (MF, vr(SP(q, h), 4), vr(ONES, 4), p))
        L.append("%s %s, %s, %s, 0" % (MF, vr(SC(q, h), 4), vr((V1B if h else V0B) + o, 4), p))
        o7 = vr(32 * q + 24, 4)
        L.append("%s %s, %s, %s, %s" % (MF, o7, vr((V7B if h else V7A) + o, 4), p, o7 if h else "0"))
    def fin(q):
        for h in range(2):
            L.append("v_rcp_f32 v%d, v%d" % (SP(q, h), SP(q, h)))
        for h in range(2):
            s = SC(q, h)
            for k in range(2):
                L.append("v_pk_mul_f32 %s, %s, %s op_sel:[0,0] op_sel_hi:[1,0]" % (vr(s + 2 * k, 2), vr(s + 2 * k, 2), vr(SP(q, h), 2)))
            cvt(PP(q, 0) + 2 * h, s)
        t = 32 * q + 30; o7 = 32 * q + 24
        L.append("v_cndmask_b32 v%d, v%d, v%d, s[54:55]" % (t, SP(q, 1), SP(q, 0)))
        for k in range(2):
            L.append("v_pk_mul_f32 %s, %s, %s op_sel:[0,0] op_sel_hi:[1,0]" % (vr(o7 + 2 * k, 2), vr(o7 + 2 * k, 2), vr(t, 2)))
        cvt(o7, o7)
        def st(dn, ds, on, os_, k):
            L.append("buffer_store_dwordx4 %s, v%d, s[%d:%d], 0 offen offset:%d%s" % (vr(dn, 4), on, SO, SO + 3, 256 * k, SC1))
            L.append("buffer_store_dwordx2 %s, v%d, s[%d:%d], 0 offen offset:%d%s" % (vr(ds, 2), os_, SO, SO + 3, 128 * k, SC1))
        if q == 0:
            st(PP(0, 0), o7, ON0, OS0, 0)
        else:
            for r in range(4):
                L.append("v_cndmask_b32 v%d, v%d, v%d, s[56:57]" % (SC(q, 0) + r, PP(q, 0) + r, PP(q - 1, 0) + r))
            for r in range(2):
                L.append("v_cndmask_b32 v%d, v%d, v%d, s[56:57]" % (o7 + 2 + r, o7 + r, o7 - 32 + r))
            st(SC(q, 0), o7 + 2, ON1, OS1, q - 1)
        if q == 3:
            st(PP(3, 0), o7, ON4, OS1, 3)
    for q in range(4):
        conv_kq(q); conv_v(q)
        if q:
            scores(q - 1, 0); scores(q - 1, 1)
    scores(3, 0); scores(3, 1)
    for q in range(2):
        lmax(q, 0); lmax(q, 1)
    gmax(0)
    for q in range(2, 4):
        lmax(q, 0); lmax(q, 1)
    gmax(2)
    for q in range(4):
        probs(q, 0); probs(q, 1); pv(q, 0); pv(q, 1)
        if q: fin(q - 1)
    fin(3)
    ST = []
    if OPT.get("odef", 0):
        ST = [x for x in L if x.startswith("buffer_store")]
        L = [x for x in L if not x.startswith("buffer_store")]
    for x in schedule(L, window=10000):
        e(x)
    if ST:
        e("v_mov_b32 v225, %d" % WORDS)
        e.label("OD_SPIN")
        e("ds_read_b32 v224, v225 offset:4")
        e("s_waitcnt lgkmcnt(0)")
        e("v_cmp_ne_u32 vcc, 0, v224")
        e("s_cbranch_vccz OD_SPIN")
        for x in ST: e(x)
    if OPT.get("cst", 0): stamp(e, 3)
    e("s_branch P2C")


def gen_ffn(e):
    e("s_mul_i32 s23, s21, 12")
    e("s_add_u32 s23, s23, s22")
    e("s_sub_u32 s23, s23, 18")
    if OPT.get("map", 0) == 1:
        e("s_and_b32 s46, s21, 1")
        e("s_lshr_b32 s21, s21, 1")
        e("s_mul_i32 s23, s21, 12")
        e("s_add_u32 s23, s23, s22")
        e("s_sub_u32 s23, s23, 18")
        e("s_lshr_b32 s21, s23, 3")
        e("s_and_b32 s22, s23, 7")
        e("s_lshl_b32 s46, s46, 3")
        e("s_add_u32 s22, s22, s46")
    else:
        e("s_lshr_b32 s21, s23, 4")
        e("s_and_b32 s22, s23, 15")
    rot_calc(e, 21, 22, "f")
    e("s_cmp_lt_u32 s20, 4")
    e("s_cbranch_scc1 FFN_C")
    e("s_sub_u32 s20, s20, 4")
    e("s_mul_i32 s40, s20, %d" % (4 * 1088))
    e("s_lshl_b32 s41, s20, 12")
    e("s_add_u32 s41, s41, %d" % (2 * FST))
    e("s_lshl_b32 s46, s21, 9")
    e("s_lshl_b32 s47, s20, 3")
    e("v_lshrrev_b32 v2, 5, v%d" % VL)
    e("v_and_b32 v3, 31, v%d" % VL)
    e("v_lshlrev_b32 v4, 1, v2")
    e("v_xor_b32 v3, v3, v4")
    e("v_add_u32 v2, s47, v2")
    for i in range(4):
        kperm(e, 6, 2, 7)
        e("v_mul_u32_u24 v6, 3072, v6")
        e("v_lshl_add_u32 v6, v3, 4, v6")
        e("v_add_u32 v%d, s46, v6" % (10 + i))
        e("s_sub_u32 s46, s46, 1088")
        e("v_add_u32 v2, 2, v2")
    x_lane(e)
    for j in range(2):
        e("s_lshl_b32 s46, s20, 1")
        e("s_add_u32 s46, s46, s21")
        if j: e("s_add_u32 s46, s46, 1")
        e("s_and_b32 s47, s46, 1")
        e("s_and_b32 s46, s46, 2")
        e("s_lshl_b32 s46, s46, 4")
        e("s_add_u32 s46, s46, s47")
        e("s_lshr_b32 s47, s20, 1")
        e("s_lshl_b32 s47, s47, 6")
        e("s_add_u32 s46, s46, s47")
        e("s_lshl_b32 s47, s22, 7")
        e("s_add_u32 s46, s46, s47")
        e("s_mul_i32 s46, s46, 1280")
        e("v_add_u32 v%d, s46, v2" % (14 + 2 * j))
        e("v_add_u32 v%d, s46, v3" % (15 + 2 * j))
    e("s_waitcnt lgkmcnt(0)")
    srd(e, SW, 12, 0, 640 * 1536 * 2)
    srd(e, SXS, 4, 0, 2048 * 640 * 2)
    srd(e, SG, 16, 0, 1280)
    e("v_lshlrev_b32 v18, 4, v%d" % VL)
    def pre():
        e("s_mov_b32 m0, %d" % GT_OFF)
        e("s_nop 0")
        e("buffer_load_dwordx4 v18, s[%d:%d], 0 offen lds" % (SG, SG + 3))
        e("buffer_load_dwordx4 v18, s[%d:%d], 0 offen offset:1024 lds" % (SG, SG + 3))
    loader(e, "FL", FST, 1088, 32 * 3072, pre)

    e.label("FFN_C")
    VB, VCUR, RG, ZA = 236, 240, 246, 232
    e("s_lshr_b32 s40, s20, 1")
    e("s_and_b32 s41, s20, 1")
    e("v_mov_b32 v9, v%d" % VL)
    lane_pos0(e, 9, 2, 3, 4)
    e("v_lshrrev_b32 v5, 1, v4")
    e("v_mul_u32_u24 v5, 1088, v5")
    e("v_and_b32 v4, 1, v4")
    e("v_mul_u32_u24 v6, 544, v4")
    e("v_lshl_add_u32 v5, v3, 3, v5")
    e("s_lshl_b32 s46, s41, 8")
    e("v_add3_u32 v%d, v5, v6, s46" % VB)
    e("v_lshlrev_b32 v4, 6, v4")
    e("v_sub_u32 v%d, v%d, v4" % (VB + 1, VB))
    e("s_lshl_b32 s46, s40, 13")
    e("s_add_u32 s46, s46, %d" % (2 * FST))
    e("v_lshlrev_b32 v244, 4, v9")
    x_read_addr(e, VB + 2, 9, 2, "s46")
    e("v_lshlrev_b32 v5, 4, v2")
    e("v_add_u32 v%d, %d, v5" % (RG + 1, GT_OFF))
    e("s_lshl_b32 s48, s48, 7")
    e("v_add_u32 v%d, s48, v%d" % (RG, RG + 1))
    e("v_and_b32 v245, 31, v9")
    e("s_lshr_b32 s46, s21, 2")
    e("s_or_b32 s46, s46, s41")
    e("s_lshl_b32 s46, s46, 30")
    e("v_lshl_add_u32 v245, v245, 2, s46")
    e("s_mov_b32 s56, 0xffff0000")
    e("s_mov_b32 s57, 0xffff0000")
    for i in range(64):
        e("v_mov_b64 v[%d:%d], 0" % (2 * i, 2 * i + 1))
    e("v_mov_b64 v[%d:%d], 0" % (ZA, ZA + 1))
    e("v_mov_b64 v[%d:%d], 0" % (ZA + 2, ZA + 3))
    e("s_waitcnt lgkmcnt(0)")
    srd(e, SO, 18, ACT_OFF, ACT_BYTES)
    srd(e, SG, 18, G_OFF, G_BYTES)
    for q in range(4):
        e("s_add_u32 s46, s21, %d" % q)
        e("s_and_b32 s46, s46, 3")
        e("s_lshl_b32 s47, s40, 2")
        e("s_add_u32 s46, s46, s47")
        e("s_lshl_b32 s47, s22, 3")
        e("s_add_u32 s46, s46, s47")
        if q == 0: e("s_lshl_b32 s54, s46, 7")
        e("s_mul_i32 s46, s46, 68")
        e("s_lshl_b32 s47, s21, 3")
        e("s_add_u32 s46, s46, s47")
        e("s_lshl_b32 s47, s41, 2")
        e("s_add_u32 s46, s46, s47")
        e("s_add_u32 s46, s46, 20")
        e("s_lshl_b32 s%d, s46, 10" % (50 + q))
    def reads(buf, imm, half):
        b = 128 + 52 * buf
        out = []
        for q in range(4):
            out.append("ds_read_b128 %s, v%d offset:%d" % (vr(b + 32 + 4 * q, 4), VCUR + 2 + half, 2048 * q))
        out.append("ds_read_b128 %s, v%d offset:%d" % (vr(b + 48, 4), RG, 64 * half))
        for t in range(8):
            for h in range(2):
                out.append("ds_read_b64_tr_b16 %s, v%d offset:%d" % (vr(b + 4 * t + 2 * h, 2), VCUR + (t & 1), imm + 32 * t + 4352 * h))
        return out
    def mfmas(buf):
        b = 128 + 52 * buf
        out = ["%s %s, %s, %s, %s" % (MF, vr(ZA, 4), vr(b + 48, 4), vr(b + 32, 4), vr(ZA, 4))]
        for t in range(8):
            for q in range(4):
                acc = vr((q * 8 + t) * 4, 4); w = vr(b + 4 * t, 4); x = vr(b + 32 + 4 * q, 4)
                out.append("%s %s, %s, %s, %s" % (MF, acc, w, x, acc))
        return out
    e("s_lshl_b32 s67, s22, 8")
    e("s_lshl_b32 s46, s21, 4")
    e("s_add_u32 s67, s67, s46")
    announce(e, "FA")
    mainloop(e, "FC", FST, reads, mfmas, 4, VB, VCUR, ["v_add_u32 v%d, s48, v%d" % (RG, RG + 1)],
             ["s_add_u32 s48, s48, 128", "s_cmp_eq_u32 s48, 1280", "s_cselect_b32 s48, 0, s48"], peel=OPT.get("peel", 0))
    stamp(e, 2)
    if not OPT.get("peel", 0): e("s_nop 7")
    L = []
    L.append("v_cvt_pk_bf16_f32 v%d, v%d, v%d" % (ZA, ZA, ZA))
    L.append("v_and_b32 v%d, 0xffff0000, v%d" % (ZA, ZA))
    L.append("v_mul_f32 v%d, 0xbfb8aa3b, v%d" % (ZA, ZA))
    L.append("v_exp_f32 v%d, v%d" % (ZA, ZA))
    L.append("v_add_f32 v%d, 1.0, v%d" % (ZA, ZA))
    L.append("v_rcp_f32 v%d, v%d" % (ZA, ZA))
    L.append("v_cvt_pk_bf16_f32 v%d, v%d, v%d" % (ZA, ZA, ZA))
    L.append("v_and_b32 v%d, 0xffff0000, v%d" % (ZA, ZA))
    L.append("v_sub_f32 v%d, 1.0, v%d" % (ZA + 1, ZA))
    L.append("v_max_f32 v%d, 0x21800000, v%d" % (ZA, ZA))
    L.append("v_cvt_pk_bf16_f32 v%d, v%d, v%d" % (ZA + 1, ZA + 1, ZA + 1))
    L.append("v_rcp_f32 v%d, v%d" % (ZA + 2, ZA))
    L.append("v_and_b32 v%d, 0xffff0000, v%d" % (ZA + 1, ZA + 1))
    L.append("v_mul_f32 v%d, v%d, v%d" % (ZA + 1, ZA + 1, ZA + 2))
    L.append("v_cndmask_b32 v%d, v%d, v%d, s[56:57]" % (ZA, ZA, ZA + 1))
    if not OPT.get("nog", 0): L.append("buffer_store_dword v%d, v245, s[%d:%d], s54 offen%s" % (ZA, SG, SG + 3, SC1))
    GL, L = (L, []) if OPT.get("peel", 0) else ([], L)
    M1 = mfmas(1)
    G = [(q, p) for q in range(4) for p in range(4)]
    def mm(g): return [M1[1 + 4 * (2 * G[g][1] + j) + G[g][0]] for j in range(2)] if g < 16 else []
    if GL: L += mm(0) + mm(1) + [M1[0]]
    for g, (q, p) in enumerate(G):
        a = (q * 8 + 2 * p) * 4
        V = []
        for k in range(4):
            V.append("v_cvt_pk_bf16_f32 v%d, v%d, v%d" % (a + k, a + 2 * k, a + 2 * k + 1))
        for k in range(4):
            V.append("v_pk_max_i16 v%d, v%d, 0" % (a + k, a + k))
        V.append("buffer_store_dwordx4 %s, v244, s[%d:%d], s%d offen offset:%d%s" % (vr(a, 4), SO, SO + 3, 50 + q, 1024 * p, SC1))
        if GL:
            m = mm(g + 2)
            V = m[:1] + V[:4] + m[1:] + V[4:]
        L += V
        if g == 3: L += GL
    for x in schedule(L, window=10000):
        e(x)
    if OPT.get("cst", 0): stamp(e, 3)
    e("s_branch P2C")


def announce(e, tag):
    srd(e, 24, 18, FLAG_OFF, FLAG_BYTES)
    srd(e, 28, 62, 0, 256)
    e("s_cmp_eq_u32 s20, 0")
    e("s_cbranch_scc0 %s_SKIP" % tag)
    e("s_mov_b64 exec, 1")
    e("v_mov_b32 v255, 1")
    e("buffer_store_dword v0, off, s[24:27], s67 sc1")
    e("v_mov_b32 v128, %d" % WORDS)
    e("ds_write_b128 v128, v[0:3]")
    e("s_waitcnt vmcnt(0) lgkmcnt(0)")
    e("buffer_atomic_add v255, off, s[28:31], 0 sc1")
    e("s_mov_b64 exec, -1")
    e.label(tag + "_SKIP")


def tile_params(e):
    if OPT.get("m6", 0):
        sets = {1: [[0, 1, 4, 5, 8, 9, 12, 13, 16, 17], [0, 3, 4, 7, 8, 11, 12, 15, 16, 17],
                    [0, 2, 3, 6, 7, 10, 11, 14, 15, 16], [1, 2, 3, 5, 6, 9, 10, 13, 14, 17]],
                2: [list(range(10))] * 4}[OPT["m6"]]
        M = [sum(1 << y for y in st) for st in sets]
        if OPT.get("x2", 0):
            e("""s_lshr_b32 s46, s2, 3
s_bitcmp1_b32 s2, 0
s_mov_b32 s47, 0x%x
s_cselect_b32 s47, 0x%x, s47
s_mov_b32 s64, 0x%x
s_cselect_b32 s64, 0x%x, s64
s_bitcmp1_b32 s2, 1
s_cselect_b32 s47, s64, s47
s_bfm_b32 s64, s46, 0
s_and_b32 s64, s64, s47
s_bcnt1_i32_b32 s64, s64
s_sub_u32 s65, s46, s64
s_bitcmp1_b32 s47, s46
s_cselect_b32 s64, s64, s65
s_cselect_b32 s66, 6, 5
s_cselect_b32 s47, 0, 12
s_mul_i32 s46, s64, 52
s_lshr_b32 s46, s46, 8
s_mul_i32 s65, s46, 5
s_sub_u32 s64, s64, s65
s_mul_i32 s46, s46, s66
s_add_u32 s47, s47, s46
s_bfe_u32 s65, s2, %s
s_lshl_b32 s65, s65, 5
s_add_u32 s65, s65, s47
s_bitcmp1_b32 s2, %d
s_cselect_b32 s46, 5, 0
s_add_u32 s64, s64, s46""" % (M[0], M[1], M[2], M[3], ["0x20001", "0x20000"][OPT["x2"] - 1], [0, 2][OPT["x2"] - 1]))
            return
        e("""s_lshr_b32 s46, s2, 3
s_and_b32 s65, s2, 7
s_lshl_b32 s65, s65, 4
s_bitcmp1_b32 s2, 0
s_cselect_b32 s47, 0x%x, 0x%x
s_cselect_b32 s64, 0x%x, 0x%x
s_bitcmp1_b32 s2, 1
s_cselect_b32 s47, s64, s47
s_bfm_b32 s64, s46, 0
s_and_b32 s64, s64, s47
s_bcnt1_i32_b32 s64, s64
s_sub_u32 s66, s46, s64
s_bitcmp1_b32 s47, s46
s_cselect_b32 s47, 1, 0
s_lshr_b32 s46, s66, 1
s_and_b32 s66, s66, 1
s_mul_i32 s66, s66, 5
s_add_u32 s66, s66, 6
s_cmp_eq_u32 s47, 1
s_cselect_b32 s64, s64, s46
s_cselect_b32 s47, 0, s66
s_cselect_b32 s66, 6, 5
s_add_u32 s65, s65, s47""".replace("s_cselect_b32 s47, 0x%x, 0x%x", "s_mov_b32 s47, 0x%x\ns_cselect_b32 s47, 0x%x, s47")
     .replace("s_cselect_b32 s64, 0x%x, 0x%x", "s_mov_b32 s64, 0x%x\ns_cselect_b32 s64, 0x%x, s64") % (M[0], M[1], M[2], M[3]))
        return
    e("""s_lshr_b32 s46, s2, 3
s_and_b32 s65, s2, 7
s_lshl_b32 s65, s65, 4
s_sub_u32 s47, s46, 10
s_cmp_ge_u32 s46, 18
s_cselect_b32 s47, s47, s46
s_lshr_b32 s64, s47, 1
s_and_b32 s47, s47, 1
s_mul_i32 s47, s47, 5
s_add_u32 s47, s47, 6
s_sub_u32 s46, s46, 18
s_cmp_lt_u32 s46, 10
s_cselect_b32 s64, s46, s64
s_cselect_b32 s47, 0, s47
s_cselect_b32 s66, 6, 5
s_add_u32 s65, s65, s47""")


class Cnt:
    def __init__(self, e, name, mx, init=()):
        self.e, self.name, self.mx, self.q, self.done = e, name, mx, list(init), 0
    def issue(self, tag, ins):
        self.e(ins); self.q.append(tag)
    def wait(self, tags):
        idx = [i for i, t in enumerate(self.q) if t in tags]
        if not idx or idx[-1] < self.done:
            return
        n = min(len(self.q) - 1 - idx[-1], self.mx)
        self.e("s_waitcnt %s(%d)" % (self.name, n))
        self.done = len(self.q) - n


PU = [7, 8, 0, 1, 2, 3]
UN = lambda s: s % 9


def w_setup(e, VW4, VW20, T0):
    e("s_lshl_b32 s58, s20, 12")
    e("s_lshl_b32 s46, s64, 7")
    e("s_mul_i32 s55, s20, %d" % (12 * 40960))
    e("s_add_u32 s55, s55, s46")
    e("s_mul_i32 s56, s20, %d" % (160 * 1280))
    e("s_add_u32 s56, s56, s46")
    e("v_lshrrev_b32 v%d, 3, v%d" % (T0, VL))
    e("v_and_b32 v%d, 6, v%d" % (T0 + 1, T0))
    e("v_xor_b32 v%d, v%d, v%d" % (T0 + 1, T0 + 1, VL))
    e("v_and_b32 v%d, 7, v%d" % (T0 + 1, T0 + 1))
    e("v_mul_u32_u24 v%d, 1280, v%d" % (VW4, T0))
    e("v_lshl_add_u32 v%d, v%d, 4, v%d" % (VW4, T0 + 1, VW4))
    e("v_lshrrev_b32 v%d, 5, v%d" % (T0, VL))
    e("v_mul_u32_u24 v%d, %d, v%d" % (VW20, 16 * 1280, T0))
    e("v_add_u32 v%d, v%d, v%d" % (VW20, VW20, VW4))


def w_src(s, n, VW4, VW20, S2, SWO):
    if s < 12: base, c0, G, J, vw, sd = "s55", 40960 * s, 4, 16, VW4, S2
    elif s < 16: base, c0, G, J, vw, sd = "s56", 51200 * (s - 12), 4, 20, VW4, SWO
    else: base, c0, G, J, vw, sd = "s56", 16 * 1280, 20, 80, VW20, SWO
    return base, c0 + (2 * G * (n >> 1) + J * (n & 1)) * 1280, vw, sd


def gen_p2l(e):
    NS, NH, AD = 17, 12, 5
    WF, AR = 96, 112
    VA, VW4, VW20, AT, VPH, VPO, VP, VC, PW, T0 = 232, 238, 239, 240, 244, 245, 246, 247, 248, 252
    S2, SWO, SA, SF, SD = 88, 92, 32, 36, 68
    LST = [None, [0, 4, 8, 12], [5, 6, 7, 8], [9, 10, 11, 12], [13, 14, 15, 16], [1, 2, 3, 4]][OPT.get("lst", 0)]
    e.label("P2S")
    tile_params(e)
    srd(e, S2, 14, 0, 1536 * 1280)
    srd(e, SWO, 8, 0, 640 * 1280)
    srd(e, SA, 18, 0, WS_SPAN)
    srd(e, SF, 18, FLAG_OFF, FLAG_BYTES)
    srd(e, SD, 62, 0, 256)
    w_setup(e, VW4, VW20, T0)
    e("s_mul_i32 s50, s20, 12288")
    e("s_add_u32 s50, s50, 20480")
    e("s_add_u32 s51, s50, 4096")
    e("s_add_u32 s52, s50, 8192")
    R2 = OPT.get("rot2", 1)
    if R2:
        e("s_mul_i32 s6, s64, %d" % R2)
        e("s_mul_i32 s7, s6, 171")
        e("s_lshr_b32 s7, s7, 11")
        e("s_mul_i32 s7, s7, 12")
        e("s_sub_u32 s6, s6, s7")
        e("s_mul_i32 s7, s6, 40960")
        e("s_add_u32 s55, s55, s7")
        e("s_sub_u32 s7, s55, %d" % (12 * 40960))
        e("s_lshl_b32 s51, s6, 10")
        e("s_add_u32 s50, s50, s51")
        e("s_sub_u32 s51, s50, 12288")
    e("s_and_b32 s46, s65, 1")
    e("s_mul_i32 s10, s20, %d" % (4 * KS))
    e("s_add_u32 s10, s10, %d" % OB1)
    e("s_add_u32 s11, s10, %d" % PS)
    e("s_mul_i32 s53, s20, %d" % (8 * CS))
    e("s_add_u32 s53, s53, %d" % OB2)
    e("s_add_u32 s57, s53, %d" % PS2)
    e("s_mul_i32 s47, s46, %d" % PS)
    e("s_add_u32 s10, s10, s47")
    e("s_sub_u32 s11, s11, s47")
    e("s_mul_i32 s47, s46, %d" % PS2)
    e("s_add_u32 s53, s53, s47")
    e("s_sub_u32 s57, s57, s47")
    e("s_mul_i32 s46, s65, %d" % RB_STRIDE)
    e("v_lshl_add_u32 v%d, v%d, 4, s46" % (VA, VL))
    for q in range(1, 6):
        e("v_add_u32 v%d, %d, v%d" % (VA + q, RB_STRIDE * q, VA))
    e("s_cmp_eq_u32 s66, 5")
    e("s_cselect_b32 s46, 0x40000000, 0")
    SK5 = OPT.get("sk5", 0)
    if SK5: e("s_cselect_b64 s[4:5], %d, -1" % (SK5 - 1))
    e("v_or_b32 v%d, s46, v%d" % (VA + 5, VA + 5))
    e("v_bfe_u32 v%d, v%d, 2, 3" % (T0 + 1, VL))
    e("v_lshl_add_u32 v%d, v%d, 11, s58" % (AT, T0))
    e("v_lshl_add_u32 v%d, v%d, 7, v%d" % (AT, T0 + 1, AT))
    e("v_lshrrev_b32 v%d, 1, v%d" % (T0 + 1, T0 + 1))
    e("v_lshl_add_u32 v%d, v%d, 5, v%d" % (AT, T0 + 1, AT))
    e("v_and_b32 v%d, 3, v%d" % (T0 + 1, VL))
    e("v_lshl_add_u32 v%d, v%d, 3, v%d" % (AT, T0 + 1, AT))
    for t in range(1, 4):
        e("v_xor_b32 v%d, %d, v%d" % (AT + t, 32 * t, AT))
    e("v_lshl_add_u32 v%d, v%d, 1, v%d" % (T0 + 1, T0, VL))
    e("v_and_b32 v%d, 48, v%d" % (VP, VL))
    e("v_lshl_add_u32 v%d, v%d, 4, s58" % (VP, VP))
    for t in range(4):
        e("v_add_u32 v%d, %d, v%d" % (PW + t, 4 * t, T0 + 1))
        e("v_and_b32 v%d, 15, v%d" % (PW + t, PW + t))
        e("v_lshl_add_u32 v%d, v%d, 4, v%d" % (PW + t, PW + t, VP))
    e("s_add_u32 s47, s65, s66")
    e("s_sub_u32 s47, s47, 1")
    e("s_lshr_b32 s54, s65, 3")
    e("s_lshr_b32 s49, s47, 3")
    e("s_sub_u32 s49, s49, s54")
    e("s_lshl_b32 s54, s54, 8")
    e("s_lshl_b32 s49, s49, 8")
    e("v_and_b32 v%d, 31, v%d" % (T0 + 1, VL))
    e("v_lshlrev_b32 v%d, 2, v%d" % (T0 + 1, T0 + 1))
    e("v_mad_u32_u24 v%d, v%d, s49, v%d" % (VPH, T0, T0 + 1))
    e("v_add_u32 v%d, s54, v%d" % (VPH, VPH))
    e("v_lshrrev_b32 v%d, 4, v%d" % (T0 + 1, VL))
    e("v_mul_u32_u24 v%d, %d, v%d" % (T0 + 1, GS, T0 + 1))
    e("v_add_u32 v%d, 256, v%d" % (T0 + 1, T0 + 1))
    e("v_and_b32 v%d, 15, v%d" % (VL, VL))
    e("v_mov_b32 v%d, %d" % (VPO, WORDS))
    PWV = OPT.get("pw", 0)
    if PWV:
        e("s_mul_i32 s98, s20, 3")
        e("s_lshr_b32 s98, s98, 1")
        e("s_lshl_b32 s98, s98, 2")
        e("s_lshl_b32 s98, 0x11, s98")
        e("s_mov_b32 s99, s98")
    else:
        e("s_mov_b32 s98, 0x111111")
        e("s_mov_b32 s99, 0x111111")
    e("s_movk_i32 s97, 240")
    if OPT.get("ns", 0):
        e("s_lshr_b32 s59, s2, 3")
        e("s_lshl_b32 s59, s59, 2")
        e("s_add_u32 s59, s59, s20")
        e("s_mul_i32 s59, s59, %d" % (8 * 128 * OPT["ns"]))
    e("s_cmp_lt_u32 s2, 144")
    e("s_cbranch_scc1 QL_RET")
    e("s_branch FL_RET")
    e.label("P2L")
    vm = Cnt(e, "vmcnt", 63, ["p8"] * 12 + ["t"] * OPT.get("tw", 0) + ["p9"] * 12 + ["t"] * OPT.get("tw", 0))
    lg = Cnt(e, "lgkmcnt", 15)

    def wdma(s):
        if s >= NS: return
        if s < NH: base, c0, G, J, vw, sd = "s55", 40960 * s, 4, 16, VW4, S2
        elif s < NS - 1: base, c0, G, J, vw, sd = "s56", 51200 * (s - NH), 4, 20, VW4, SWO
        else: base, c0, G, J, vw, sd = "s56", 16 * 1280, 20, 80, VW20, SWO
        if OPT.get("exp", 0) & 16: c0 = 0
        if R2 and s < NH:
            e("s_cmp_ge_u32 s6, %d" % (12 - s))
            e("s_cselect_b32 s47, s7, s55")
            base = "s47"
        e("s_add_u32 m0, s58, %d" % (16384 * UN(s)))
        for n in range(4):
            e("s_add_u32 s46, %s, %d" % (base, c0 + (2 * G * (n >> 1) + J * (n & 1)) * 1280 - 1024 * n))
            vm.issue(("W", s), "buffer_load_dwordx4 v%d, s[%d:%d], s46 offen offset:%d lds" % (vw, sd, sd + 3, 1024 * n))

    EXP = OPT.get("exp", 0)
    WR = OPT.get("wr", 1)
    if WR:
        SLOT = {0: 0, 1: 1, 2: 2}
        ISS = {}
        nxt = 3
        for s in range(NS):
            free = [SLOT[s]] + ([3] if s == 2 else [4] if s == 3 else [])
            ISS[s] = []
            for f in free:
                SLOT[nxt] = f; ISS[s].append(nxt); nxt += 1
    else:
        SLOT = {s: s % AD for s in range(NS + AD)}
        ISS = {s: [s + AD] for s in range(NS)}
    def WREG(s): return AR + 72 + 16 * (s - 1) if WR and 1 <= s <= 3 else WF
    def aload(s, q):
        if s >= NS: return
        if EXP & 1 and s >= AD: return
        r = AR + 24 * SLOT[s] + 4 * q
        if s < NH and R2:
            so, im = "s52", 0
            if q == 0:
                e("s_cmp_ge_u32 s6, %d" % (12 - s))
                e("s_cselect_b32 s52, s51, s50")
                e("s_add_u32 s52, s52, %d" % (1024 * s))
        elif s < NH: so, im = "s%d" % (50 + (s >> 2)), 1024 * (s & 3)
        elif s < NS - 1:
            so, im = "s%d" % (10 + (q & 1)), 0
            if s > NH and q < 2: e("s_add_u32 %s, %s, %d" % (so, so, KS))
        else:
            e("v_lshrrev_b32 v%d, 1, v%d" % (VA + q, VA + q))
            so = "s57" if q & 1 else "s53"
            e("s_add_u32 s46, %s, %d" % (so, 4 * CS))
            if SK5 and q == 5: e("s_mov_b64 exec, s[4:5]")
            for k in range(2):
                vm.issue(("A", s), "buffer_load_dwordx2 %s, v%d, s[%d:%d], %s offen sc1" % (vr(r + 2 * k, 2), VA + q, SA, SA + 3, "s46" if k else so))
            if SK5 and q == 5: e("s_mov_b64 exec, -1")
            return
        if EXP & 32: so, im = "s50", 0
        if SK5 and q == 5: e("s_mov_b64 exec, s[4:5]")
        vm.issue(("A", s), "buffer_load_dwordx4 %s, v%d, s[%d:%d], %s offen offset:%d sc1" % (vr(r, 4), VA + q, SA, SA + 3, so, im))
        if SK5 and q == 5: e("s_mov_b64 exec, -1")

    def oaddr(q):
        v = VA + q
        e("s_add_u32 s46, s65, %d" % q)
        e("s_lshr_b32 s46, s46, 1")
        e("s_lshl_b32 s46, s46, 4")
        e("v_add_u32 v%d, s46, v%d" % (v, VL))
        e("v_mul_u32_u24 v%d, 1150, v%d" % (T0, v))
        e("v_lshrrev_b32 v%d, 16, v%d" % (T0, T0))
        e("v_lshl_add_u32 v%d, v%d, 5, v%d" % (v, T0, v))
        e("v_lshl_add_u32 v%d, v%d, 4, v%d" % (v, v, T0 + 1))
        if q == 5:
            e("s_cmp_eq_u32 s66, 5")
            e("s_cselect_b32 s46, 0x40000000, 0")
            e("v_or_b32 v%d, s46, v%d" % (v, v))

    def lcheck(tag, off, first=True):
        if not first:
            e("v_cmp_ne_u32 vcc, 0, v%d" % VP)
            e("s_cbranch_vccnz %s_OK" % tag)
        e.label(tag + "_SPIN")
        e("ds_read_b32 v%d, v%d offset:%d" % (VP, VPO, off))
        e("s_waitcnt lgkmcnt(0)")
        e("v_cmp_ne_u32 vcc, 0, v%d" % VP)
        e("s_cbranch_vccz %s_SPIN" % tag)
        e.label(tag + "_OK")

    atb = [0] * 4
    def wread(s, t):
        if s >= NS: return
        if EXP & 2 and s >= 1: return
        u = UN(s)
        if atb[t] != u >> 2:
            e("v_add_u32 v%d, 0x%x, v%d" % (AT + t, (65536 * ((u >> 2) - atb[t])) & 0xffffffff, AT + t)); atb[t] = u >> 2
        for h in range(2):
            lg.issue(("R", s, t), "ds_read_b64_tr_b16 %s, v%d offset:%d" % (vr(WREG(s) + 4 * t + 2 * h, 2), AT + t, (u & 3) * 16384 + 1024 * h))

    def check(tag, vres, vaddr, sd, val, mask):
        def cmp():
            e("v_cmp_ne_u32 s[48:49], %s, v%d" % (val, vres))
            e("s_and_b64 s[48:49], s[48:49], %s" % mask)
            e("s_cbranch_scc0 %s_OK" % tag)
        cmp()
        e("s_mov_b32 s59, 0")
        e.label(tag + "_SPIN")
        e("buffer_load_dword v%d, %s, s[%d:%d], 0 %ssc1" % (vres, "v%d" % vaddr if vaddr else "off", sd, sd + 3, "offen " if vaddr else ""))
        e("s_add_u32 s59, s59, 1")
        e("s_waitcnt vmcnt(0)")
        cmp()
        if OPT.get("psleep", 0): e("s_sleep %d" % OPT["psleep"])
        e("s_cmp_lt_u32 s59, %d" % SPIN)
        e("s_cbranch_scc1 %s_SPIN" % tag)
        e.label(tag + "_OK")

    vm.wait(["p8"])
    e("s_barrier")
    WQ = OPT.get("wq", 9)
    for s in range(min(3, WQ)): wdma(s)
    vm.wait(["p9"])
    e("s_barrier")
    vm.issue("C", "buffer_load_dword v%d, off, s[%d:%d], 0 sc1" % (VC, SD, SD + 3))
    GATE = OPT.get("gate", 2)
    G3 = OPT.get("g3", 3)
    if GATE == 3:
        for s in range(3, G3): wdma(s)
        e("s_cmp_lt_u32 s2, 144")
        e("s_cbranch_scc0 G3_F")
        q0 = list(vm.q)
        for s in range(G3, 6): wdma(s)
        vm.q[:] = q0
        e("s_barrier")
        e("s_branch G3_J")
        e.label("G3_F")
        e("s_barrier")
        e.label("GT_SPIN")
        e("ds_read_b32 v%d, v%d" % (VP, VPO))
        e("s_waitcnt lgkmcnt(0)")
        e("v_cmp_ne_u32 vcc, 4, v%d" % VP)
        e("s_cbranch_vccnz GT_SPIN")
        for s in range(G3, 6): wdma(s)
        e.label("G3_J")
        GATE = 0
    else:
        for s in range(3, min(6, WQ)): wdma(s)
        e("s_barrier")
    if not LST: stamp(e, 1)
    if OPT.get("ns", 0): e("s_waitcnt lgkmcnt(0)")
    def gate():
        e("s_cmp_lt_u32 s2, 144")
        e("s_cbranch_scc1 GT_OK")
        e.label("GT_SPIN")
        e("ds_read_b32 v%d, v%d" % (VP, VPO))
        e("s_waitcnt lgkmcnt(0)")
        e("v_cmp_ne_u32 vcc, 4, v%d" % VP)
        e("s_cbranch_vccnz GT_SPIN")
        e.label("GT_OK")
    if GATE < 2:
        for s in range(6, min(9, WQ)): wdma(s)
    if WR:
        for s in range(4):
            vm.wait([("W", s)])
            for t in range(4): wread(s, t)
        lg.wait([("R", 3, 3)])
    if GATE: gate()
    if GATE == 2:
        for s in range(6, min(9, WQ)): wdma(s)
    if WR:
        for s in range(9, 13): wdma(s)
    vm.wait(["C"])
    if not PWV:
        e("s_cmp_eq_u32 s20, 0")
        e("s_cbranch_scc0 LH_SPIN")
    e("v_mov_b32 v%d, 0" % VP)
    check("CK", VC, 0, SD, "s97", "exec")
    check("PH", VP, VPH, SF, "1", "s[98:99]")
    e("v_mov_b32 v%d, 1" % VP)
    if PWV:
        e("s_mov_b64 exec, 1")
        e("ds_add_u32 v%d, v%d offset:4" % (VPO, VP))
        e("s_mov_b64 exec, -1")
    else:
        e("ds_write_b32 v%d, v%d offset:4" % (VPO, VP))
        e("s_branch LH_OK")
        lcheck("LH", 4)
    if not LST: stamp(e, 2)
    lg.q.append("x")
    for s in range(3 if WR else AD):
        for q in range(6): aload(s, q)
    if not WR:
        vm.wait([("W", 0)])
        for t in range(4): wread(0, t)

    pwb = [0] * 4
    CW = OPT.get("cw", 0)
    def pwrite(t, tag):
        for q in (range(6) if pwb[t] else [2, 3, 4, 5, 0, 1]):
            hi = 1 if PU[q] >= 7 else 0
            if pwb[t] != hi:
                e("v_add_u32 v%d, 0x%x, v%d" % (PW + t, (7 * 16384 * (hi - pwb[t])) & 0xffffffff, PW + t)); pwb[t] = hi
            lg.issue(tag, "ds_write_b128 v%d, %s offset:%d" % (PW + t, vr(16 * q + 4 * t, 4), 16384 * (PU[q] - 7 * hi) + 1024 * t))

    RR = [VPH, VPO, VP, VC, T0, 255]
    for s in range(NS):
        vm.wait([("A", s), ("W", s + 1)])
        if LST:
            if s in LST: stamp(e, 1 + LST.index(s))
        else:
            if s == 0: stamp(e, 3)
            if s == NH + 1: stamp(e, 4)
        for t in range(4):
            lg.wait([("R", s, t)])
            if t == 3 and s + AD == NH:
                if CW: e("s_barrier")
                else:
                    lg.wait(["PO"])
                    lcheck("PO", 8, False)
                e("s_lshl_b32 s46, s65, 7")
                e("s_add_u32 s46, s46, %d" % (G_OFF + 64))
                e("v_lshl_add_u32 v%d, v%d, 2, s46" % (T0 + 1, VL))
                e("v_and_b32 v255, 0x40000000, v%d" % (VA + 5))
                e("v_or_b32 v255, v255, v%d" % (T0 + 1))
                for q in range(6):
                    vm.issue("G", "buffer_load_dword v%d, v%d, s[%d:%d], 0 offen offset:%d sc1" % (RR[q], 255 if q == 5 else T0 + 1, SA, SA + 3, 128 * q))
            sc = t + 1 if s == NH and t < 3 else (0 if s == NH - 1 and t == 3 else None)
            if sc == 0: vm.wait(["G"])
            for q in range(6):
                acc = vr(16 * q + 4 * t, 4)
                if not (EXP & 4): e("%s %s, %s, %s, %s" % (MF, acc, vr(WREG(s) + 4 * t, 4), vr(AR + 24 * SLOT[s] + 4 * q, 4), "0" if s == 0 else acc))
                if t == 3: aload(ISS[s][0], q)
                if s + AD == NH and t < 2 and q % 2 == 0: oaddr(3 * t + q // 2)
                if sc is not None:
                    for j in range(4):
                        e("v_mul_f32 v%d, v%d, v%d" % (16 * q + 4 * sc + j, RR[q], 16 * q + 4 * sc + j))
            if CW and t == 0 and s in (OPT.get("x1", 4), NH): e("s_barrier")
            if not (WR and s < 3): wread(s + 1, t)
            if t == 3 and len(ISS[s]) > 1:
                for q in range(6): aload(ISS[s][1], q)
            if s + AD == NH and t == 1 and not CW:
                lg.issue("PO", "ds_read_b32 v%d, v%d offset:8" % (VP, VPO))
            if t == 3 and not (EXP & 8) and not CW and not (WR and s < 4 + OPT.get("wd", 0)): wdma(s + 9 - OPT.get("wd", 0))
            if s == NS - 1 and t: pwrite(t - 1, "PWO")
    e("s_nop 7")
    pwrite(3, "PWO")
    lg.wait(["PWO"])
    e("s_barrier")
    stamp(e, 5, True)
    stamp_flush(e, 4, 0)
    e("s_endpgm")


def gen_p2c(e):
    RA, OA, GA, GV, T0 = 200, 204, 208, 212, 220
    e.label("P2C")
    def publish(n):
        e("v_mov_b32 v255, 1")
        e("v_mov_b32 v%d, %d" % (T0 + 5, WORDS))
        e("s_mov_b64 exec, 1")
        e("s_waitcnt vmcnt(%d)" % n)
        e("ds_add_rtn_u32 v%d, v%d, v255" % (T0 + 4, T0 + 5))
        e("s_waitcnt lgkmcnt(0)")
        e("v_readfirstlane_b32 s59, v%d" % (T0 + 4))
        e("s_cmp_eq_u32 s59, 3")
        e("s_cbranch_scc0 PUB_SKIP")
        e("buffer_store_dword v255, off, s[24:27], s67 sc1")
        e.label("PUB_SKIP")
        e("s_mov_b64 exec, -1")
        stamp(e, 4 if OPT.get("cst", 0) else 3)
    EARLY = OPT.get("early", 0)
    if not EARLY: publish(0)
    tile_params(e)
    srd(e, 28, 60, 0, 2048 * 1280)
    srd(e, 36, 18, G_OFF, G_BYTES)
    e("v_mbcnt_lo_u32_b32 v%d, -1, 0" % VL)
    e("v_mbcnt_hi_u32_b32 v%d, -1, v%d" % (VL, VL))
    CW = OPT.get("cw", 0)
    if CW:
        srd(e, 88, 14, 0, 1536 * 1280)
        srd(e, 92, 8, 0, 640 * 1280)
        w_setup(e, 228, 229, T0)
        for s in range(9, 17):
            for n in range(4):
                base, c0, vw, sd = w_src(s, n, 228, 229, 88, 92)
                e("s_add_u32 s46, %s, %d" % (base, c0))
                e("buffer_load_dwordx4 %s, v%d, s[%d:%d], s46 offen" % (vr(16 * (s - 9) + 4 * n, 4), vw, sd, sd + 3))
        e("v_lshl_add_u32 v230, v%d, 4, s58" % VL)
        e("v_add_u32 v231, 0x10000, v230")
        e("v_add_u32 v232, 0x20000, v230")
        if EARLY: publish(32)
    def wput(s0):
        for s in range(s0, s0 + 4):
            for n in range(4):
                if n == 0 and s0 == 9: e("s_waitcnt vmcnt(%d)" % (4 * (16 - s)))
                u = UN(s)
                e("ds_write_b128 v%d, %s offset:%d" % (230 + (u >> 2), vr(16 * (s - 9) + 4 * n, 4), 16384 * (u & 3) + 1024 * n))
    e("v_lshrrev_b32 v%d, 3, v%d" % (T0, VL))
    e("v_and_b32 v%d, 7, v%d" % (T0 + 1, VL))
    e("v_lshl_add_u32 v%d, v%d, 1, v%d" % (T0 + 2, T0 + 1, T0))
    e("v_mul_u32_u24 v%d, 2560, v%d" % (T0 + 3, T0))
    e("v_lshl_add_u32 v%d, v%d, 4, v%d" % (T0 + 3, T0 + 1, T0 + 3))
    e("s_lshl_b32 s50, s64, 7")
    for k in range(3):
        e("s_mul_i32 s46, s20, 3")
        if k: e("s_add_u32 s46, s46, %d" % k)
        e("s_lshr_b32 s47, s46, 1")
        e("s_and_b32 s46, s46, 1")
        e("s_lshl_b32 s46, s46, 3")
        e("s_add_u32 s48, s47, 7")
        e("s_sub_u32 s49, s47, 2")
        e("s_cmp_lt_u32 s47, 2")
        e("s_cselect_b32 s48, s48, s49")
        e("s_lshl_b32 s48, s48, 14")
        e("v_add_u32 v%d, s46, v%d" % (RA + k, T0 + 2))
        e("v_and_b32 v%d, 15, v%d" % (RA + k, RA + k))
        e("v_lshl_add_u32 v%d, v%d, 4, s48" % (RA + k, RA + k))
        e("v_lshl_add_u32 v%d, v%d, 9, v%d" % (RA + k, T0 + 1, RA + k))
        e("s_cmp_lt_u32 s47, s66")
        e("s_cselect_b32 s51, 0, 0x40000000")
        e("s_add_u32 s47, s47, s65")
        e("s_lshl_b32 s48, s47, 5")
        e("s_add_u32 s48, s48, s46")
        e("s_lshl_b32 s48, s48, 2")
        e("s_or_b32 s48, s48, s51")
        e("v_lshl_add_u32 v%d, v%d, 2, s48" % (GA + k, T0))
        e("s_lshr_b32 s48, s47, 1")
        e("s_lshl_b32 s48, s48, 4")
        e("s_add_u32 s48, s48, s46")
        e("s_lshl_b32 s48, s48, 1")
        e("s_and_b32 s47, s47, 1")
        e("s_add_u32 s48, s48, s47")
        e("s_mul_i32 s48, s48, 1280")
        e("s_add_u32 s48, s48, s50")
        e("s_or_b32 s48, s48, s51")
        e("v_add_u32 v%d, s48, v%d" % (OA + k, T0 + 3))
    def reads(b):
        for k in range(3):
            for w in range(4):
                for h in range(2):
                    e("ds_read_b128 %s, v%d offset:%d" % (vr(b + 32 * k + 8 * w + 4 * h, 4), RA + k, 4096 * w + 256 * h))
    def sums(b, k):
        r = b + 32 * k
        for a, c in ((0, 8), (16, 24), (0, 16)):
            for j in range(0, 8, 2):
                e("v_pk_add_f32 %s, %s, %s" % (vr(r + a + j, 2), vr(r + a + j, 2), vr(r + c + j, 2)))
    if CW:
        e("s_barrier")
        wput(9)
    if not CW:
        e.label("CH_SPIN")
        e("ds_read_b32 v%d, v%d offset:4" % (T0 + 4, T0 + 5))
        e("s_waitcnt lgkmcnt(0)")
        e("v_cmp_eq_u32 vcc, %d, v%d" % (4 if OPT.get("pw", 0) else 1, T0 + 4))
        e("s_cbranch_vccz CH_SPIN")
    for k in range(3):
        e("buffer_load_dword v%d, v%d, s[36:39], 0 offen sc1" % (GV + k, GA + k))
    e("s_cmp_eq_u32 s59, 3")
    e("s_cbranch_scc0 OP_OK")
    e("s_add_u32 s47, s65, s66")
    e("s_sub_u32 s47, s47, 1")
    e("s_lshr_b32 s54, s65, 1")
    e("s_mul_i32 s54, s54, %d" % (16 * 1150))
    e("s_lshr_b32 s54, s54, 16")
    e("s_lshr_b32 s49, s47, 1")
    e("s_mul_i32 s49, s49, %d" % (16 * 1150))
    e("s_add_u32 s49, s49, %d" % (15 * 1150))
    e("s_lshr_b32 s49, s49, 16")
    e("s_sub_u32 s49, s49, s54")
    e("s_lshl_b32 s54, s54, 8")
    e("s_add_u32 s54, s54, 4096")
    e("s_lshl_b32 s49, s49, 8")
    e("v_and_b32 v%d, 1, v%d" % (T0 + 6, T0))
    e("v_mul_u32_u24 v%d, s49, v%d" % (T0 + 6, T0 + 6))
    e("v_lshl_add_u32 v%d, v%d, 4, v%d" % (T0 + 6, T0 + 1, T0 + 6))
    e("s_mov_b64 exec, 0xffff")
    e("s_mov_b32 s59, 0")
    e.label("OP_SPIN")
    e("buffer_load_dword v%d, v%d, s[24:27], s54 offen sc1" % (T0 + 4, T0 + 6))
    e("s_add_u32 s59, s59, 1")
    e("s_waitcnt vmcnt(0)")
    e("v_cmp_ne_u32 vcc, 1, v%d" % (T0 + 4))
    e("s_cbranch_vccz OP_SET")
    e("s_cmp_lt_u32 s59, %d" % SPIN)
    e("s_cbranch_scc1 OP_SPIN")
    e.label("OP_SET")
    if not CW: e("ds_write_b32 v%d, v255 offset:8" % (T0 + 5))
    e("s_mov_b64 exec, -1")
    e.label("OP_OK")
    e("s_waitcnt lgkmcnt(0)")
    if CW:
        e("s_barrier")
        e("s_waitcnt vmcnt(0)")
        wput(13)
        e("s_waitcnt lgkmcnt(0)")
        e("s_barrier")
    if not OPT.get("cst", 0): stamp(e, 4)
    e("s_waitcnt vmcnt(0)")
    e("s_barrier")
    reads(0)
    for k in range(3):
        e("s_waitcnt lgkmcnt(%d)" % min(15, 8 * (2 - k)))
        sums(0, k)
        for j in range(8):
            e("v_mul_f32 v%d, v%d, v%d" % (32 * k + j, GV + k, 32 * k + j))
        for j in range(4):
            e("v_cvt_pk_bf16_f32 v%d, v%d, v%d" % (32 * k + 8 + j, 32 * k + 2 * j, 32 * k + 2 * j + 1))
        e("buffer_store_dwordx4 %s, v%d, s[28:31], 0 offen" % (vr(32 * k + 8, 4), OA + k))
    stamp(e, 5, True)
    stamp_flush(e, 0, 224)
    e("s_endpgm")


def gen_spare(e):
    mode = OPT.get("spare", 2)
    if not mode:
        return
    e("s_sub_u32 s46, s22, 30")
    e("s_lshl_b32 s46, s46, 9")
    e("v_add_u32 v1, s46, v0")
    e("v_lshlrev_b32 v1, 7, v1")
    e("s_waitcnt lgkmcnt(0)")
    srd(e, 24, 14, 0, 1536 * 1280)
    srd(e, 28, 8, 0, 640 * 1280)
    if OPT.get("kp", 1):
        k0 = OPT.get("k0", 5)
        srd(e, 32, 4, 0, 2048 * 1280)
        srd(e, 36, 6, 0, 640 * 3840)
        srd(e, 40, 12, 0, 640 * 3072)
        e("s_sub_u32 s46, s2, 240")
        e("s_lshl_b32 s46, s46, 1")
        e("s_and_b32 s47, s20, 1")
        e("s_add_u32 s46, s46, s47")
        e("s_lshl_b32 s46, s46, 6")
        e("v_add_u32 v4, s46, v%d" % VL)
        e("s_lshr_b32 s47, s20, 1")
        XW = OPT.get("xw", 0)
        if XW:
            e("s_cmp_lt_u32 s20, 4")
            e("s_cbranch_scc1 KPX")
            e("s_sub_u32 s48, s22, 31")
            e("s_lshl_b32 s48, s48, 2")
            e("s_add_u32 s48, s48, s20")
            e("s_lshl_b32 s48, s48, 3")
            e("v_lshrrev_b32 v5, 3, v%d" % VL)
            e("v_add_u32 v5, s48, v5")
            e("v_mul_u32_u24 v5, 3072, v5")
            e("v_and_b32 v6, 7, v%d" % VL)
            e("v_lshl_add_u32 v5, v6, 7, v5")
            e("s_lshr_b32 s48, s21, 1")
            e("s_mul_i32 s48, s48, 3")
            e("s_lshr_b32 s48, s48, 1")
            e("s_lshl_b32 s48, s48, 9")
            e("v_add_u32 v5, s48, v5")
            for k in range(XW - 1, 10):
                e("s_mov_b32 s48, %d" % (64 * 3072 * k))
                e("buffer_load_dword v3, v5, s[40:43], s48 offen")
            e("s_branch KP_END")
            e.label("KPX")
        for i, (sd, mul, n, step) in enumerate(((32, 1280, 2048, 128), (36, 128, 1920, 64 * 3840), (40, 128, 1536, 64 * 3072))):
            e("s_cmp_eq_u32 s47, %d" % i)
            e("s_cbranch_scc0 KP%d" % i)
            e("s_cmp_ge_u32 s46, %d" % n)
            e("s_cbranch_scc1 KP_END")
            e("v_mul_u32_u24 v4, %d, v4" % mul)
            for k in range(k0, 10):
                e("s_mov_b32 s48, %d" % (step * k))
                e("buffer_load_dword v3, v4, s[%d:%d], s48 offen" % (sd, sd + 3))
            e("s_branch KP_END")
            e.label("KP%d" % i)
        e.label("KP_END")
        if OPT.get("kb", 1): e("s_barrier")
    n2, no = {1: (15, 7), 2: (2, 1), 3: (0, 7)}[mode]
    dep = OPT.get("sdep", 1)
    e("s_lshl_b32 s46, s21, 1")
    e("s_mov_b32 s49, s21")
    def touch(sc, lim, sd):
        e("s_cmp_ge_u32 s%d, %d" % (sc, lim))
        e("s_cselect_b32 s%d, 0, s%d" % (sc, sc))
        e("s_lshl_b32 s47, s%d, 17" % sc)
        e("v_add_u32 v2, s47, v1")
        e("buffer_load_dword v3, v2, s[%d:%d], 0 offen" % (sd, sd + 3))
        e("s_add_u32 s%d, s%d, 1" % (sc, sc))
        e("s_waitcnt vmcnt(%d)" % dep)
    c0 = 120 * 8 * OPT.get("ns", 0) // 1024
    for i in range(n2 if not c0 else 2):
        touch(46, 15, 24)
        if i == 1: touch(49, 7, 28)
    if c0:
        e("s_mov_b32 s46, %d" % c0)
        for i in range(c0, 15): touch(46, 15, 24)
    for i in range(no - 1): touch(49, 7, 28)


def main():
    K = NAME + "_kernel"
    e = Asm()
    e.label(K)
    e("s_cmp_ge_u32 s2, 256")
    e("s_cbranch_scc1 K_END")
    if OPT.get("perm", 0):
        e("s_mul_i32 s2, s2, %d" % OPT["perm"])
        e("s_add_u32 s2, s2, 77")
        e("s_and_b32 s2, s2, 255")
    e("s_load_dwordx8 s[4:11], s[0:1], 0")
    e("s_load_dwordx4 s[12:15], s[0:1], 32")
    e("s_load_dwordx2 s[16:17], s[0:1], 48")
    e("s_load_dwordx2 s[18:19], s[0:1], 72")
    e("s_load_dwordx2 s[60:61], s[0:1], 56")
    e("s_load_dwordx2 s[62:63], s[0:1], 64")
    stamp(e, 0)
    e("v_lshrrev_b32 v1, 6, v0")
    e("v_and_b32 v%d, 63, v0" % VL)
    e("v_readfirstlane_b32 s20, v1")
    e("s_and_b32 s21, s2, 7")
    e("s_lshr_b32 s22, s2, 3")
    e("s_cmp_ge_u32 s22, 30")
    e("s_cbranch_scc1 K_SPARE")
    e("s_cmp_ge_u32 s22, 18")
    e("s_cbranch_scc1 K_FFN")
    gen_qkv(e)
    e.label("K_FFN")
    gen_ffn(e)
    gen_p2c(e)
    gen_p2l(e)
    e.label("K_SPARE")
    gen_spare(e)
    e.label("K_END")
    e("s_endpgm")
    out = "; @launch grid=(256,1,1) block=(512,1,1) lds=%d\n" % K1_LDS
    out += '.amdgcn_target "amdgcn-amd-amdhsa--gfx950"\n.text\n'
    out += ".globl %s\n.p2align 8\n.type %s,@function\n" % (K, K) + e.text()
    out += '.section .rodata,"a"\n.p2align 6\n' + kd(K, 256, 256)
    open(sys.argv[1], "w").write(out)


if __name__ == "__main__":
    main()
```

```python
import struct, sys
from gen import Asm, vr, ar, sr, srd, interleave, kd, OPT, NAME, ACT_OFF, RB_STRIDE, ACT_BYTES, G_OFF, G_BYTES, STAMP_OFF
from sched import schedule
FLAG_OFF = 0xC10000
FLAG_BYTES = 16384
SPIN = 20000
G_BYTES = 128 * 128
OB1, OB2, WS_SPAN = 0x1100000, 0x1420000, 0x1500000
GS = 1600 * 16
KS, PS = 4 * GS, 64 * GS
CS = GS // 2
PS2 = 32 * CS
WORDS = 163840 - 16
OPT.setdefault("map", 1)
for _k, _v in dict(sk5=1, m6=1, pb=1, wd=3, peel=1).items(): OPT.setdefault(_k, _v)


def stamp(e, idx, last=False):
    if not OPT["stamp"]:
        return
    e("s_memtime s[%d:%d]" % (72 + 2 * idx, 73 + 2 * idx))
    if idx == 0:
        e("s_memrealtime s[84:85]")
    if last:
        e("s_memrealtime s[86:87]")


def stamp_flush(e, wadd, vt):
    if not OPT["stamp"]:
        return
    e("s_waitcnt lgkmcnt(0)")
    srd(e, 24, 18, STAMP_OFF, 0x40000)
    e("s_lshl_b32 s96, s2, 3")
    e("s_add_u32 s96, s96, s20")
    e("s_add_u32 s96, s96, %d" % wadd)
    e("s_lshl_b32 s96, s96, 6")
    e("s_mov_b64 exec, 1")
    for i in range(8):
        e("v_mov_b32 v%d, s%d" % (vt + i, 72 + 2 * i))
        e("buffer_store_dword v%d, off, s[24:27], s96 offset:%d" % (vt + i, 4 * i))

K1_LDS = 163840
QST = 16384
FST = 17408
GT_OFF = 6 * FST + 3 * 16384
NEG = 0xEF800000
SC1 = [" sc1", "", " sc0 sc1", " sc1 nt"][OPT.get("st", 0)]
MF = "v_mfma_f32_16x16x32_bf16"

def f2u(x):
    return struct.unpack("<I", struct.pack("<f", x))[0]

SWAVE, SX, SY = 20, 21, 22
SW, SXS, SO, SG = 24, 28, 32, 36
VL = 254


def loader(e, tag, wst, wimm, wstep, pre=None):
    pair = 2 * wst + 16384
    xstep = 128
    e("s_mov_b32 s42, %d" % (2 * pair))
    e("s_mul_i32 s43, s48, %d" % (2 * wstep))
    e("s_mul_i32 s44, s48, %d" % xstep)
    e("s_mov_b32 s45, 0")
    TW = OPT.get("tw", 0)
    if TW:
        srd(e, 88, 14, 0, 1536 * 1280)
        e("s_lshr_b32 s46, s2, 3")
        e("s_lshl_b32 s46, s46, 11")
        e("s_mul_i32 s47, s20, 491520")
        e("s_add_u32 s46, s46, s47")
        e("v_lshl_add_u32 v19, v%d, 7, s46" % VL)
        e("v_lshlrev_b32 v20, 26, v%d" % VL)
        e("v_and_b32 v20, 0xc0000000, v20")
        e("v_or_b32 v19, v19, v20")
    if pre: pre()
    def W(so):
        for i in range(4):
            e("buffer_load_dwordx4 v%d, s[%d:%d], %s offen offset:%d lds" % (10 + i, SW, SW + 3, so, wimm * i))
    def X(j):
        for i in range(2):
            e("buffer_load_dwordx4 v%d, s[%d:%d], s44 offen offset:%d lds" % (14 + 2 * j + i, SXS, SXS + 3, 1024 * i))
    P3 = OPT.get("pre3", 0)
    PA = OPT.get("pa", 0)
    PB = OPT.get("pb", 0)
    for lab, lim in ([("_PRE", 1), ("_RET", 2), ("_RL", 10)] if PB else [("_PRE", 2 + P3)] + ([("_MID", PA)] if PA else []) + [("_RET", 10)]):
        e.label(tag + lab)
        if lim == 10 and P3:
            e("s_waitcnt vmcnt(24)")
            e("s_barrier")
            lab = "_RL"
            e.label(tag + lab)
        if lab != "_PRE" and lim > 2:
            e("s_waitcnt vmcnt(%d)" % (14 if TW else 12))
            e("s_barrier")
        e("s_add_u32 m0, s42, s41")
        e("s_add_u32 s46, s43, %d" % wstep)
        X(0)
        e("s_add_u32 m0, m0, 2048")
        e("s_add_u32 s48, s48, 1")
        X(1)
        e("s_add_u32 m0, s42, s40")
        e("s_add_u32 s44, s44, %d" % xstep)
        W("s43")
        e("s_add_u32 m0, m0, %d" % wst)
        e("s_add_u32 s43, s43, %d" % (2 * wstep))
        W("s46")
        NSM = OPT.get("ns", 0)
        if NSM and lim == 10:
            for i in range(NSM):
                e("s_buffer_load_dword s96, s[88:91], s59 offset:%d" % (128 * i))
            e("s_add_u32 s59, s59, %d" % (128 * NSM))
        if TW:
            e("buffer_load_dword v20, v19, s[88:91], 0 offen")
            e("v_add_u32 v19, 61440, v19")
        e("s_cmp_eq_u32 s48, 10")
        e("s_cselect_b32 s43, 0, s43")
        e("s_cselect_b32 s44, 0, s44")
        e("s_add_u32 s42, s42, %d" % pair)
        e("s_cmp_eq_u32 s42, %d" % (3 * pair))
        e("s_cselect_b32 s42, 0, s42")
        e("s_add_u32 s45, s45, 1")
        if PB and lim == 2: continue
        if not (PB and lim == 1):
            e("s_cmp_lt_u32 s45, %d" % lim)
            e("s_cbranch_scc1 %s%s" % (tag, lab))
        if not (PA and lab == "_PRE"): e("s_branch %s" % ("P2S" if lim < 10 else "P2L"))


def rot_calc(e, a, b, pf):
    R = OPT.get(pf + "R", OPT.get("R", 4)); mult = OPT.get(pf + "m", 1); base = OPT.get(pf + "b", 0)
    if R == 1:
        e("s_mov_b32 s48, %d" % base); return
    e("s_add_u32 s48, s%d, s%d" % (a, b))
    e("s_mul_i32 s49, s48, %d" % ((1024 + R - 1) // R))
    e("s_lshr_b32 s49, s49, 10")
    e("s_mul_i32 s49, s49, %d" % R)
    e("s_sub_u32 s48, s48, s49")
    if mult != 1: e("s_mul_i32 s48, s48, %d" % mult)
    if base: e("s_add_u32 s48, s48, %d" % base)


def x_lane(e):
    e("v_lshrrev_b32 v2, 3, v%d" % VL)
    e("v_mul_u32_u24 v2, 2560, v2")
    e("v_lshrrev_b32 v3, 4, v%d" % VL)
    e("v_xor_b32 v3, v3, v%d" % VL)
    e("v_and_b32 v3, 7, v3")
    e("v_lshl_add_u32 v2, v3, 4, v2")
    e("v_xor_b32 v3, 64, v2")
    e("v_add_u32 v3, %d, v3" % (8 * 2560 - 1024))


def x_read_addr(e, vd, vl, vg, sbase):
    e("v_bfe_u32 v5, v%d, 1, 3" % vl)
    e("v_xor_b32 v5, v5, v%d" % vg)
    e("v_and_b32 v6, 15, v%d" % vl)
    e("v_lshlrev_b32 v6, 7, v6")
    e("v_lshl_add_u32 v6, v5, 4, v6")
    e("v_add_u32 v%d, %s, v6" % (vd, sbase))
    e("v_xor_b32 v%d, 64, v%d" % (vd + 1, vd))


def mainloop(e, tag, stage, reads, mfmas, nbase, vbase, vcur, extra_upd=None, extra_s=None, vt=253, peel=False):
    e("s_mov_b32 s42, %d" % (2 * (2 * stage + 16384)))
    for i in range(nbase):
        e("v_add_u32 v%d, s42, v%d" % (vcur + i, vbase + i))
    e("s_mov_b32 s45, 0")
    TC = OPT.get("tc", 0)
    if TC:
        srd(e, 88, 14, 0, 1536 * 1280)
        e("s_lshr_b32 s46, s2, 3")
        e("s_lshl_b32 s46, s46, 11")
        e("s_mul_i32 s47, s20, 491520")
        e("s_add_u32 s46, s46, s47")
        e("v_mbcnt_lo_u32_b32 v255, -1, 0")
        e("v_mbcnt_hi_u32_b32 v255, -1, v255")
        e("v_lshlrev_b32 v128, 26, v255")
        e("v_lshl_add_u32 v255, v255, 7, s46")
        e("v_and_b32 v128, 0xc0000000, v128")
        e("v_or_b32 v255, v255, v128")
        e("s_mov_b32 m0, %d" % (WORDS - 512))
    e("s_barrier")
    stamp(e, 1)
    for r in reads(0, 0, 0):
        e(r)
    e.label(tag + "_LOOP")
    e("s_add_u32 s42, s42, %d" % (2 * stage + 16384))
    e("s_cmp_eq_u32 s42, %d" % (3 * (2 * stage + 16384)))
    e("s_cselect_b32 s42, 0, s42")
    e("s_add_u32 s45, s45, 1")
    if TC:
        e("buffer_load_dword v255, s[88:91], 0 offen lds")
        e("v_add_u32 v255, 61440, v255")
    for x in extra_s or []:
        e(x)
    e("s_waitcnt lgkmcnt(0)")
    upd = ["v_add_u32 v%d, s42, v%d" % (vcur + i, vbase + i) for i in range(nbase)] + (extra_upd or [])
    for x in interleave(mfmas(0), reads(1, stage, 1) + upd):
        e(x)
    if peel: e("s_cmp_eq_u32 s45, 10")
    e("s_waitcnt lgkmcnt(0)")
    e("s_barrier")
    if peel: e("s_cbranch_scc1 %s_TAIL" % tag)
    for x in interleave(mfmas(1), reads(0, 0, 0)):
        e(x)
    if peel:
        e("s_branch %s_LOOP" % tag)
        e.label(tag + "_TAIL")
        return
    e("s_cmp_lt_u32 s45, 10")
    e("s_cbranch_scc1 %s_LOOP" % tag)
    e("s_waitcnt lgkmcnt(0)")


def lane_pos0(e, vl, vg, vc, vp):
    e("v_lshrrev_b32 v%d, 4, v%d" % (vg, vl))
    e("v_and_b32 v%d, 3, v%d" % (vc, vl))
    e("v_bfe_u32 v%d, v%d, 2, 3" % (vp, vl))
    e("v_lshrrev_b32 v1, 5, v%d" % vl)
    e("v_lshl_add_u32 v%d, v1, 4, v%d" % (vp, vp))


def kperm(e, vk, vp, t):
    e("v_and_b32 v%d, 0x33, v%d" % (vk, vp))
    e("v_and_b32 v%d, 4, v%d" % (t, vp))
    e("v_lshl_or_b32 v%d, v%d, 1, v%d" % (vk, t, vk))
    e("v_and_b32 v%d, 8, v%d" % (t, vp))
    e("v_lshrrev_b32 v%d, 1, v%d" % (t, t))
    e("v_or_b32 v%d, v%d, v%d" % (vk, t, vk))


def gen_qkv(e):
    if OPT.get("map", 0) == 1:
        e("s_and_b32 s46, s21, 1")
        e("s_and_b32 s21, s21, 6")
        e("s_cmp_ge_u32 s22, 9")
        e("s_addc_u32 s21, s21, 0")
        e("s_cmp_ge_u32 s22, 9")
        e("s_cselect_b32 s47, 9, 0")
        e("s_sub_u32 s22, s22, s47")
        e("s_mul_i32 s46, s46, 9")
        e("s_add_u32 s22, s22, s46")
    e("s_mul_i32 s23, s22, 114")
    e("s_sub_u32 s23, s23, 14")
    e("s_cmp_lt_u32 s20, 4")
    e("s_cbranch_scc1 QKV_C")
    e("s_sub_u32 s20, s20, 4")
    e("s_lshl_b32 s40, s20, 12")
    e("s_add_u32 s41, s40, %d" % (2 * QST))
    rot_calc(e, 21, 22, "q")
    e("s_mul_i32 s46, s21, 160")
    e("s_lshl_b32 s47, s20, 8")
    for i in range(4):
        e("v_add_u32 v2, s47, v%d" % VL)
        if i: e("v_add_u32 v2, %d, v2" % (64 * i))
        e("v_mul_u32_u24 v3, 2185, v2")
        e("v_lshrrev_b32 v3, 16, v3")
        e("v_mul_u32_u24 v4, 30, v3")
        e("v_sub_u32 v4, v2, v4")
        e("v_mul_u32_u24 v5, 205, v4")
        e("v_lshrrev_b32 v5, 11, v5")
        kperm(e, 6, 3, 7)
        e("v_mul_u32_u24 v6, 3840, v6")
        e("v_mul_u32_u24 v5, 1120, v5")
        e("v_lshl_add_u32 v6, v4, 4, v6")
        e("v_add3_u32 v%d, v6, v5, s46" % (10 + i))
        e("s_sub_u32 s46, s46, 1024")
    e("s_cmp_eq_u32 s20, 3")
    e("s_cselect_b32 s47, 0x40000000, 0")
    e("v_or_b32 v13, s47, v13")
    e("s_lshr_b32 s46, s20, 1")
    e("s_add_u32 s46, s46, s23")
    e("s_and_b32 s47, s20, 1")
    e("s_lshl_b32 s47, s47, 6")
    e("s_add_u32 s46, s46, s47")
    e("s_mul_i32 s46, s46, 1280")
    x_lane(e)
    e("v_add_u32 v14, s46, v2")
    e("v_add_u32 v15, s46, v3")
    e("v_add_u32 v16, %d, v14" % (32 * 1280))
    e("v_add_u32 v17, %d, v15" % (32 * 1280))
    e("s_waitcnt lgkmcnt(0)")
    srd(e, SW, 6, 0, 640 * 1920 * 2)
    srd(e, SXS, 4, 0, 2048 * 640 * 2)
    loader(e, "QL", QST, 1024, 32 * 3840)

    e.label("QKV_C")
    VB, VCUR = 224, 228
    CC, CP, CF, MP, MG0, MG1, MV0, MV1, ON0, ON1, OS0, OS1, ONES = 232, 236, 240, 244, 246, 247, 248, 249, 250, 251, 252, 253, 224
    ON4 = 254
    e("s_lshr_b32 s40, s20, 1")
    e("s_and_b32 s41, s20, 1")
    e("v_mov_b32 v9, v%d" % VL)
    lane_pos0(e, 9, 2, 3, 4)
    e("s_mul_i32 s46, s41, 80")
    e("v_mul_u32_u24 v4, 480, v4")
    e("v_add_u32 v4, s46, v4")
    e("v_lshl_add_u32 v%d, v3, 3, v4" % VB)
    e("v_and_b32 v5, 1, v3")
    e("v_mul_u32_u24 v5, 40, v5")
    e("v_lshrrev_b32 v6, 1, v3")
    e("v_mul_u32_u24 v6, 160, v6")
    e("v_add3_u32 v4, v4, v5, v6")
    e("v_add_u32 v%d, 32, v4" % (VB + 1))
    e("s_lshl_b32 s46, s40, 13")
    e("s_add_u32 s46, s46, %d" % (2 * QST))
    x_read_addr(e, VB + 2, 9, 2, "s46")
    e("v_and_b32 v3, 15, v9")
    e("v_lshlrev_b32 v4, 2, v2")
    e("v_sub_u32 v5, v3, v4")
    e("s_cmp_eq_u32 s22, 0")
    e("s_cselect_b32 s46, 7, 0")
    e("v_subrev_u32 v4, s46, v4")
    e("s_mov_b32 s47, 0x%x" % NEG)
    for r in range(4):
        e("v_subrev_u32 v6, %d, v5" % r)
        e("v_ashrrev_i32 v%d, 31, v6" % (10 + r))
        e("v_sub_u32 v7, 7, v6")
        e("v_ashrrev_i32 v7, 31, v7")
        e("v_or_b32 v7, v7, v%d" % (10 + r))
        e("v_and_b32 v%d, s47, v7" % (CC + r))
        e("v_sub_u32 v8, -9, v6")
        e("v_ashrrev_i32 v8, 31, v8")
        e("v_and_b32 v%d, s47, v8" % (CP + r))
        e("v_add_u32 v8, %d, v4" % r)
        e("v_ashrrev_i32 v8, 31, v8")
        e("v_or_b32 v7, v7, v8")
        e("v_and_b32 v%d, s47, v7" % (CF + r))
    e("s_mov_b32 s47, 0xffff")
    e("v_bfi_b32 v%d, s47, v10, v11" % MP)
    e("v_bfi_b32 v%d, s47, v12, v13" % (MP + 1))
    e("v_add_u32 v6, -1, v2")
    e("v_ashrrev_i32 v%d, 31, v6" % MG0)
    e("v_xor_b32 v6, 1, v2")
    e("v_add_u32 v6, -1, v6")
    e("v_ashrrev_i32 v%d, 31, v6" % MG1)
    e("v_add_u32 v6, -4, v3")
    e("v_ashrrev_i32 v%d, 31, v6" % MV0)
    e("v_xor_b32 v6, 4, v3")
    e("v_add_u32 v6, -4, v6")
    e("v_ashrrev_i32 v%d, 31, v6" % MV1)
    e("s_mul_i32 s46, s22, 57")
    e("s_add_u32 s46, s46, 9")
    e("s_and_b32 s47, s46, 15")
    e("v_add_u32 v6, s47, v3")
    e("v_cmp_lt_u32 s[56:57], 15, v6")
    e("v_and_b32 v6, 15, v6")
    e("s_sub_u32 s46, s46, s47")
    e("s_lshl_b32 s49, s22, 5")
    e("s_add_u32 s46, s46, s49")
    e("s_add_u32 s46, s46, 16")
    e("v_add_u32 v7, s46, v6")
    e("v_mul_u32_u24 v8, %d, v2" % CS)
    e("v_lshl_add_u32 v7, v7, 3, v8")
    e("s_lshl_b32 s46, s21, 1")
    e("s_add_u32 s46, s46, s41")
    e("s_mul_i32 s49, s46, %d" % KS)
    e("s_mul_i32 s50, s40, %d" % PS)
    e("s_add_u32 s49, s49, s50")
    e("s_add_u32 s49, s49, %d" % OB1)
    e("v_lshl_add_u32 v%d, v7, 1, s49" % ON1)
    e("s_mul_i32 s49, s46, %d" % (2 * CS))
    e("s_mul_i32 s50, s40, %d" % PS2)
    e("s_add_u32 s49, s49, s50")
    e("s_add_u32 s49, s49, %d" % OB2)
    e("v_lshlrev_b32 v8, 29, v2")
    e("v_and_b32 v8, 0x40000000, v8")
    e("v_add3_u32 v%d, v7, v8, s49" % OS1)
    e("v_and_b32 v6, 8, v6")
    e("v_subrev_u32 v6, s47, v6")
    e("v_and_b32 v6, 0x40000000, v6")
    e("v_add_u32 v7, -256, v%d" % ON1)
    e("v_or_b32 v%d, v6, v7" % ON0)
    e("v_xor_b32 v6, 0x40000000, v6")
    e("v_or_b32 v%d, v6, v%d" % (ON4, ON1))
    e("s_cmp_gt_u32 s47, 8")
    e("s_cselect_b32 s46, 0x40000000, 0")
    e("v_add_u32 v7, -128, v%d" % OS1)
    e("v_or_b32 v%d, s46, v7" % OS0)
    for i in range(64):
        e("v_mov_b64 v[%d:%d], 0" % (2 * i, 2 * i + 1))
    e("s_waitcnt lgkmcnt(0)")
    srd(e, SO, 18, 0, WS_SPAN)
    c = f2u(20 ** -0.5 * 1.4426950408889634)
    e("s_mov_b32 s50, 0x%x" % c)
    e("s_mov_b32 s51, 0x%x" % c)
    e("s_mov_b32 s52, 0x%x" % (c ^ 0x80000000))
    e("s_mov_b64 s[54:55], 0xffff")

    TOFF = [(0, 0), (0, 40), (0, 160), (0, 200), (1, 0), (0, 320), (0, 360), (1, 320)]
    def reads(buf, imm, half):
        b = 128 + 48 * buf
        out = []
        for q in range(4):
            out.append("ds_read_b128 %s, v%d offset:%d" % (vr(b + 32 + 4 * q, 4), VCUR + 2 + half, 2048 * q))
        for t in range(8):
            for h in range(2):
                out.append("ds_read_b64_tr_b16 %s, v%d offset:%d" % (vr(b + 4 * t + 2 * h, 2), VCUR + TOFF[t][0], imm + TOFF[t][1] + 3840 * h))
        return out
    def mfmas(buf):
        b = 128 + 48 * buf
        out = []
        for t in range(8):
            for q in range(4):
                acc = vr((q * 8 + t) * 4, 4); w = vr(b + 4 * t, 4); x = vr(b + 32 + 4 * q, 4)
                out.append("%s %s, %s, %s, %s" % ((MF, acc, w, x, acc) if t < 5 else (MF, acc, x, w, acc)))
        return out
    e("s_lshl_b32 s67, s22, 8")
    e("s_lshl_b32 s46, s21, 4")
    e("s_add_u32 s67, s67, s46")
    e("s_add_u32 s67, s67, 4096")
    announce(e, "QA")
    mainloop(e, "QC", QST, reads, mfmas, 4, VB, VCUR)
    stamp(e, 2)
    e("s_nop 7")
    KB, QB, V0B, V1B, V7A, V7B = 128, 152, 184, 192, 200, 208
    L = ["v_mov_b32 v%d, 0x3f803f80" % (ONES + r) for r in range(4)]
    def cvt(d, s):
        L.append("v_cvt_pk_bf16_f32 v%d, v%d, v%d" % (d, s, s + 1))
        L.append("v_cvt_pk_bf16_f32 v%d, v%d, v%d" % (d + 1, s + 2, s + 3))
    def conv_kq(q):
        a = 32 * q; k = KB + 6 * q; qq = QB + 8 * q
        cvt(qq + 2, a + 16); cvt(k + 2, a + 16)
        cvt(k, a + 8); cvt(k + 4, a + 12); cvt(qq, a); cvt(qq + 6, a + 4)
        for i in range(2):
            L.append("v_permlane32_swap_b32 v%d, v%d" % (qq + 2 + i, k + 2 + i))
        for i in range(2):
            L.append("v_and_b32 v%d, v%d, v%d" % (qq + 4 + i, MG1, qq + 2 + i))
            L.append("v_and_b32 v%d, v%d, v%d" % (qq + 2 + i, MG0, qq + 2 + i))
    def conv_v(q):
        a = 32 * q
        cvt(V0B + 2 * q, a + 20); cvt(V1B + 2 * q, a + 24); cvt(V7A + 2 * q, a + 28)
        for i in range(2):
            L.append("v_and_b32 v%d, v%d, v%d" % (V7B + 2 * q + i, MV1, V7A + 2 * q + i))
            L.append("v_and_b32 v%d, v%d, v%d" % (V7A + 2 * q + i, MV0, V7A + 2 * q + i))
    def SC(q, h): return 32 * q + 12 * h
    def SP(q, h): return 32 * q + 12 * h + 4
    def PP(q, h): return 32 * q + 12 * h + 8
    def MM(q, h): return 32 * q + 28 + 2 * h
    def scores(q, h):
        qq = vr(QB + 8 * q + 4 * h, 4)
        L.append("%s %s, %s, %s, %s" % (MF, vr(SC(q, h), 4), vr(KB + 6 * q + 2 * h, 4), qq, vr(CF if q == 0 else CC, 4)))
        if q:
            L.append("%s %s, %s, %s, %s" % (MF, vr(SP(q, h), 4), vr(KB + 6 * (q - 1) + 2 * h, 4), qq, vr(CP, 4)))
    def lmax(q, h):
        s = SC(q, h)
        if q:
            for r in range(4):
                L.append("v_max_f32 v%d, v%d, v%d" % (s + r, s + r, SP(q, h) + r))
        L.append("v_max3_f32 v%d, v%d, v%d, v%d" % (MM(q, h), s, s + 1, s + 2))
        L.append("v_max_f32 v%d, v%d, v%d" % (MM(q, h), MM(q, h), s + 3))
    def gmax(q0):
        a, b, c_, d = MM(q0, 0), MM(q0, 1), MM(q0 + 1, 0), MM(q0 + 1, 1)
        L.extend(["v_permlane32_swap_b32 v%d, v%d" % (a, b), "v_permlane32_swap_b32 v%d, v%d" % (c_, d),
                  "v_max_f32 v%d, v%d, v%d" % (a, a, b), "v_max_f32 v%d, v%d, v%d" % (c_, c_, d),
                  "v_permlane16_swap_b32 v%d, v%d" % (a, c_), "v_max_f32 v%d, v%d, v%d" % (a, a, c_),
                  "v_mul_f32 v%d, s52, v%d" % (c_, a), "v_mul_f32 v%d, s52, v%d" % (a, a),
                  "v_permlane16_swap_b32 v%d, v%d" % (a, c_),
                  "v_mov_b32 v%d, v%d" % (b, a), "v_mov_b32 v%d, v%d" % (d, c_),
                  "v_permlane32_swap_b32 v%d, v%d" % (a, b), "v_permlane32_swap_b32 v%d, v%d" % (c_, d)])
    def probs(q, h):
        s = SC(q, h); p = PP(q, h); m = vr(MM(q, h), 2)
        sel = "op_sel:[0,0,0] op_sel_hi:[1,1,0]"
        for k in range(2):
            L.append("v_pk_fma_f32 %s, %s, s[50:51], %s %s" % (vr(s + 2 * k, 2), vr(s + 2 * k, 2), m, sel))
        for r in range(4):
            L.append("v_exp_f32 v%d, v%d" % (s + r, s + r))
        if q == 0:
            cvt(p, s)
            L.append("v_mov_b64 %s, 0" % vr(p + 2, 2))
        else:
            cvt(p + 2, s)
            for k in range(2):
                L.append("v_and_b32 v%d, v%d, v%d" % (p + k, MP + k, p + 2 + k))
                L.append("v_xor_b32 v%d, v%d, v%d" % (p + 2 + k, p + k, p + 2 + k))
    def pv(q, h):
        p = vr(PP(q, h), 4); o = 2 * max(q - 1, 0)
        L.append("%s %s, %s, %s, 0" % (MF, vr(SP(q, h), 4), vr(ONES, 4), p))
        L.append("%s %s, %s, %s, 0" % (MF, vr(SC(q, h), 4), vr((V1B if h else V0B) + o, 4), p))
        o7 = vr(32 * q + 24, 4)
        L.append("%s %s, %s, %s, %s" % (MF, o7, vr((V7B if h else V7A) + o, 4), p, o7 if h else "0"))
    def fin(q):
        for h in range(2):
            L.append("v_rcp_f32 v%d, v%d" % (SP(q, h), SP(q, h)))
        for h in range(2):
            s = SC(q, h)
            for k in range(2):
                L.append("v_pk_mul_f32 %s, %s, %s op_sel:[0,0] op_sel_hi:[1,0]" % (vr(s + 2 * k, 2), vr(s + 2 * k, 2), vr(SP(q, h), 2)))
            cvt(PP(q, 0) + 2 * h, s)
        t = 32 * q + 30; o7 = 32 * q + 24
        L.append("v_cndmask_b32 v%d, v%d, v%d, s[54:55]" % (t, SP(q, 1), SP(q, 0)))
        for k in range(2):
            L.append("v_pk_mul_f32 %s, %s, %s op_sel:[0,0] op_sel_hi:[1,0]" % (vr(o7 + 2 * k, 2), vr(o7 + 2 * k, 2), vr(t, 2)))
        cvt(o7, o7)
        def st(dn, ds, on, os_, k):
            L.append("buffer_store_dwordx4 %s, v%d, s[%d:%d], 0 offen offset:%d%s" % (vr(dn, 4), on, SO, SO + 3, 256 * k, SC1))
            L.append("buffer_store_dwordx2 %s, v%d, s[%d:%d], 0 offen offset:%d%s" % (vr(ds, 2), os_, SO, SO + 3, 128 * k, SC1))
        if q == 0:
            st(PP(0, 0), o7, ON0, OS0, 0)
        else:
            for r in range(4):
                L.append("v_cndmask_b32 v%d, v%d, v%d, s[56:57]" % (SC(q, 0) + r, PP(q, 0) + r, PP(q - 1, 0) + r))
            for r in range(2):
                L.append("v_cndmask_b32 v%d, v%d, v%d, s[56:57]" % (o7 + 2 + r, o7 + r, o7 - 32 + r))
            st(SC(q, 0), o7 + 2, ON1, OS1, q - 1)
        if q == 3:
            st(PP(3, 0), o7, ON4, OS1, 3)
    for q in range(4):
        conv_kq(q); conv_v(q)
        if q:
            scores(q - 1, 0); scores(q - 1, 1)
    scores(3, 0); scores(3, 1)
    for q in range(2):
        lmax(q, 0); lmax(q, 1)
    gmax(0)
    for q in range(2, 4):
        lmax(q, 0); lmax(q, 1)
    gmax(2)
    for q in range(4):
        probs(q, 0); probs(q, 1); pv(q, 0); pv(q, 1)
        if q: fin(q - 1)
    fin(3)
    ST = []
    if OPT.get("odef", 0):
        ST = [x for x in L if x.startswith("buffer_store")]
        L = [x for x in L if not x.startswith("buffer_store")]
    for x in schedule(L, window=10000):
        e(x)
    if ST:
        e("v_mov_b32 v225, %d" % WORDS)
        e.label("OD_SPIN")
        e("ds_read_b32 v224, v225 offset:4")
        e("s_waitcnt lgkmcnt(0)")
        e("v_cmp_ne_u32 vcc, 0, v224")
        e("s_cbranch_vccz OD_SPIN")
        for x in ST: e(x)
    if OPT.get("cst", 0): stamp(e, 3)
    e("s_branch P2C")


def gen_ffn(e):
    e("s_mul_i32 s23, s21, 12")
    e("s_add_u32 s23, s23, s22")
    e("s_sub_u32 s23, s23, 18")
    if OPT.get("map", 0) == 1:
        e("s_and_b32 s46, s21, 1")
        e("s_lshr_b32 s21, s21, 1")
        e("s_mul_i32 s23, s21, 12")
        e("s_add_u32 s23, s23, s22")
        e("s_sub_u32 s23, s23, 18")
        e("s_lshr_b32 s21, s23, 3")
        e("s_and_b32 s22, s23, 7")
        e("s_lshl_b32 s46, s46, 3")
        e("s_add_u32 s22, s22, s46")
    else:
        e("s_lshr_b32 s21, s23, 4")
        e("s_and_b32 s22, s23, 15")
    rot_calc(e, 21, 22, "f")
    e("s_cmp_lt_u32 s20, 4")
    e("s_cbranch_scc1 FFN_C")
    e("s_sub_u32 s20, s20, 4")
    e("s_mul_i32 s40, s20, %d" % (4 * 1088))
    e("s_lshl_b32 s41, s20, 12")
    e("s_add_u32 s41, s41, %d" % (2 * FST))
    e("s_lshl_b32 s46, s21, 9")
    e("s_lshl_b32 s47, s20, 3")
    e("v_lshrrev_b32 v2, 5, v%d" % VL)
    e("v_and_b32 v3, 31, v%d" % VL)
    e("v_lshlrev_b32 v4, 1, v2")
    e("v_xor_b32 v3, v3, v4")
    e("v_add_u32 v2, s47, v2")
    for i in range(4):
        kperm(e, 6, 2, 7)
        e("v_mul_u32_u24 v6, 3072, v6")
        e("v_lshl_add_u32 v6, v3, 4, v6")
        e("v_add_u32 v%d, s46, v6" % (10 + i))
        e("s_sub_u32 s46, s46, 1088")
        e("v_add_u32 v2, 2, v2")
    x_lane(e)
    for j in range(2):
        e("s_lshl_b32 s46, s20, 1")
        e("s_add_u32 s46, s46, s21")
        if j: e("s_add_u32 s46, s46, 1")
        e("s_and_b32 s47, s46, 1")
        e("s_and_b32 s46, s46, 2")
        e("s_lshl_b32 s46, s46, 4")
        e("s_add_u32 s46, s46, s47")
        e("s_lshr_b32 s47, s20, 1")
        e("s_lshl_b32 s47, s47, 6")
        e("s_add_u32 s46, s46, s47")
        e("s_lshl_b32 s47, s22, 7")
        e("s_add_u32 s46, s46, s47")
        e("s_mul_i32 s46, s46, 1280")
        e("v_add_u32 v%d, s46, v2" % (14 + 2 * j))
        e("v_add_u32 v%d, s46, v3" % (15 + 2 * j))
    e("s_waitcnt lgkmcnt(0)")
    srd(e, SW, 12, 0, 640 * 1536 * 2)
    srd(e, SXS, 4, 0, 2048 * 640 * 2)
    srd(e, SG, 16, 0, 1280)
    e("v_lshlrev_b32 v18, 4, v%d" % VL)
    def pre():
        e("s_mov_b32 m0, %d" % GT_OFF)
        e("s_nop 0")
        e("buffer_load_dwordx4 v18, s[%d:%d], 0 offen lds" % (SG, SG + 3))
        e("buffer_load_dwordx4 v18, s[%d:%d], 0 offen offset:1024 lds" % (SG, SG + 3))
    loader(e, "FL", FST, 1088, 32 * 3072, pre)

    e.label("FFN_C")
    VB, VCUR, RG, ZA = 236, 240, 246, 232
    e("s_lshr_b32 s40, s20, 1")
    e("s_and_b32 s41, s20, 1")
    e("v_mov_b32 v9, v%d" % VL)
    lane_pos0(e, 9, 2, 3, 4)
    e("v_lshrrev_b32 v5, 1, v4")
    e("v_mul_u32_u24 v5, 1088, v5")
    e("v_and_b32 v4, 1, v4")
    e("v_mul_u32_u24 v6, 544, v4")
    e("v_lshl_add_u32 v5, v3, 3, v5")
    e("s_lshl_b32 s46, s41, 8")
    e("v_add3_u32 v%d, v5, v6, s46" % VB)
    e("v_lshlrev_b32 v4, 6, v4")
    e("v_sub_u32 v%d, v%d, v4" % (VB + 1, VB))
    e("s_lshl_b32 s46, s40, 13")
    e("s_add_u32 s46, s46, %d" % (2 * FST))
    e("v_lshlrev_b32 v244, 4, v9")
    x_read_addr(e, VB + 2, 9, 2, "s46")
    e("v_lshlrev_b32 v5, 4, v2")
    e("v_add_u32 v%d, %d, v5" % (RG + 1, GT_OFF))
    e("s_lshl_b32 s48, s48, 7")
    e("v_add_u32 v%d, s48, v%d" % (RG, RG + 1))
    e("v_and_b32 v245, 31, v9")
    e("s_lshr_b32 s46, s21, 2")
    e("s_or_b32 s46, s46, s41")
    e("s_lshl_b32 s46, s46, 30")
    e("v_lshl_add_u32 v245, v245, 2, s46")
    e("s_mov_b32 s56, 0xffff0000")
    e("s_mov_b32 s57, 0xffff0000")
    for i in range(64):
        e("v_mov_b64 v[%d:%d], 0" % (2 * i, 2 * i + 1))
    e("v_mov_b64 v[%d:%d], 0" % (ZA, ZA + 1))
    e("v_mov_b64 v[%d:%d], 0" % (ZA + 2, ZA + 3))
    e("s_waitcnt lgkmcnt(0)")
    srd(e, SO, 18, ACT_OFF, ACT_BYTES)
    srd(e, SG, 18, G_OFF, G_BYTES)
    for q in range(4):
        e("s_add_u32 s46, s21, %d" % q)
        e("s_and_b32 s46, s46, 3")
        e("s_lshl_b32 s47, s40, 2")
        e("s_add_u32 s46, s46, s47")
        e("s_lshl_b32 s47, s22, 3")
        e("s_add_u32 s46, s46, s47")
        if q == 0: e("s_lshl_b32 s54, s46, 7")
        e("s_mul_i32 s46, s46, 68")
        e("s_lshl_b32 s47, s21, 3")
        e("s_add_u32 s46, s46, s47")
        e("s_lshl_b32 s47, s41, 2")
        e("s_add_u32 s46, s46, s47")
        e("s_add_u32 s46, s46, 20")
        e("s_lshl_b32 s%d, s46, 10" % (50 + q))
    def reads(buf, imm, half):
        b = 128 + 52 * buf
        out = []
        for q in range(4):
            out.append("ds_read_b128 %s, v%d offset:%d" % (vr(b + 32 + 4 * q, 4), VCUR + 2 + half, 2048 * q))
        out.append("ds_read_b128 %s, v%d offset:%d" % (vr(b + 48, 4), RG, 64 * half))
        for t in range(8):
            for h in range(2):
                out.append("ds_read_b64_tr_b16 %s, v%d offset:%d" % (vr(b + 4 * t + 2 * h, 2), VCUR + (t & 1), imm + 32 * t + 4352 * h))
        return out
    def mfmas(buf):
        b = 128 + 52 * buf
        out = ["%s %s, %s, %s, %s" % (MF, vr(ZA, 4), vr(b + 48, 4), vr(b + 32, 4), vr(ZA, 4))]
        for t in range(8):
            for q in range(4):
                acc = vr((q * 8 + t) * 4, 4); w = vr(b + 4 * t, 4); x = vr(b + 32 + 4 * q, 4)
                out.append("%s %s, %s, %s, %s" % (MF, acc, w, x, acc))
        return out
    e("s_lshl_b32 s67, s22, 8")
    e("s_lshl_b32 s46, s21, 4")
    e("s_add_u32 s67, s67, s46")
    announce(e, "FA")
    mainloop(e, "FC", FST, reads, mfmas, 4, VB, VCUR, ["v_add_u32 v%d, s48, v%d" % (RG, RG + 1)],
             ["s_add_u32 s48, s48, 128", "s_cmp_eq_u32 s48, 1280", "s_cselect_b32 s48, 0, s48"], peel=OPT.get("peel", 0))
    stamp(e, 2)
    if not OPT.get("peel", 0): e("s_nop 7")
    L = []
    L.append("v_cvt_pk_bf16_f32 v%d, v%d, v%d" % (ZA, ZA, ZA))
    L.append("v_and_b32 v%d, 0xffff0000, v%d" % (ZA, ZA))
    L.append("v_mul_f32 v%d, 0xbfb8aa3b, v%d" % (ZA, ZA))
    L.append("v_exp_f32 v%d, v%d" % (ZA, ZA))
    L.append("v_add_f32 v%d, 1.0, v%d" % (ZA, ZA))
    L.append("v_rcp_f32 v%d, v%d" % (ZA, ZA))
    L.append("v_cvt_pk_bf16_f32 v%d, v%d, v%d" % (ZA, ZA, ZA))
    L.append("v_and_b32 v%d, 0xffff0000, v%d" % (ZA, ZA))
    L.append("v_sub_f32 v%d, 1.0, v%d" % (ZA + 1, ZA))
    L.append("v_max_f32 v%d, 0x21800000, v%d" % (ZA, ZA))
    L.append("v_cvt_pk_bf16_f32 v%d, v%d, v%d" % (ZA + 1, ZA + 1, ZA + 1))
    L.append("v_rcp_f32 v%d, v%d" % (ZA + 2, ZA))
    L.append("v_and_b32 v%d, 0xffff0000, v%d" % (ZA + 1, ZA + 1))
    L.append("v_mul_f32 v%d, v%d, v%d" % (ZA + 1, ZA + 1, ZA + 2))
    L.append("v_cndmask_b32 v%d, v%d, v%d, s[56:57]" % (ZA, ZA, ZA + 1))
    if not OPT.get("nog", 0): L.append("buffer_store_dword v%d, v245, s[%d:%d], s54 offen%s" % (ZA, SG, SG + 3, SC1))
    GL, L = (L, []) if OPT.get("peel", 0) else ([], L)
    M1 = mfmas(1)
    G = [(q, p) for q in range(4) for p in range(4)]
    def mm(g): return [M1[1 + 4 * (2 * G[g][1] + j) + G[g][0]] for j in range(2)] if g < 16 else []
    if GL: L += mm(0) + mm(1) + [M1[0]]
    for g, (q, p) in enumerate(G):
        a = (q * 8 + 2 * p) * 4
        V = []
        for k in range(4):
            V.append("v_cvt_pk_bf16_f32 v%d, v%d, v%d" % (a + k, a + 2 * k, a + 2 * k + 1))
        for k in range(4):
            V.append("v_pk_max_i16 v%d, v%d, 0" % (a + k, a + k))
        V.append("buffer_store_dwordx4 %s, v244, s[%d:%d], s%d offen offset:%d%s" % (vr(a, 4), SO, SO + 3, 50 + q, 1024 * p, SC1))
        if GL:
            m = mm(g + 2)
            V = m[:1] + V[:4] + m[1:] + V[4:]
        L += V
        if g == 3: L += GL
    for x in schedule(L, window=10000):
        e(x)
    if OPT.get("cst", 0): stamp(e, 3)
    e("s_branch P2C")


def announce(e, tag):
    srd(e, 24, 18, FLAG_OFF, FLAG_BYTES)
    srd(e, 28, 62, 0, 256)
    e("s_cmp_eq_u32 s20, 0")
    e("s_cbranch_scc0 %s_SKIP" % tag)
    e("s_mov_b64 exec, 1")
    e("v_mov_b32 v255, 1")
    e("buffer_store_dword v0, off, s[24:27], s67 sc1")
    e("v_mov_b32 v128, %d" % WORDS)
    e("ds_write_b128 v128, v[0:3]")
    e("s_waitcnt vmcnt(0) lgkmcnt(0)")
    e("buffer_atomic_add v255, off, s[28:31], 0 sc1")
    e("s_mov_b64 exec, -1")
    e.label(tag + "_SKIP")


def tile_params(e):
    if OPT.get("m6", 0):
        sets = {1: [[0, 1, 4, 5, 8, 9, 12, 13, 16, 17], [0, 3, 4, 7, 8, 11, 12, 15, 16, 17],
                    [0, 2, 3, 6, 7, 10, 11, 14, 15, 16], [1, 2, 3, 5, 6, 9, 10, 13, 14, 17]],
                2: [list(range(10))] * 4}[OPT["m6"]]
        M = [sum(1 << y for y in st) for st in sets]
        if OPT.get("x2", 0):
            e("""s_lshr_b32 s46, s2, 3
s_bitcmp1_b32 s2, 0
s_mov_b32 s47, 0x%x
s_cselect_b32 s47, 0x%x, s47
s_mov_b32 s64, 0x%x
s_cselect_b32 s64, 0x%x, s64
s_bitcmp1_b32 s2, 1
s_cselect_b32 s47, s64, s47
s_bfm_b32 s64, s46, 0
s_and_b32 s64, s64, s47
s_bcnt1_i32_b32 s64, s64
s_sub_u32 s65, s46, s64
s_bitcmp1_b32 s47, s46
s_cselect_b32 s64, s64, s65
s_cselect_b32 s66, 6, 5
s_cselect_b32 s47, 0, 12
s_mul_i32 s46, s64, 52
s_lshr_b32 s46, s46, 8
s_mul_i32 s65, s46, 5
s_sub_u32 s64, s64, s65
s_mul_i32 s46, s46, s66
s_add_u32 s47, s47, s46
s_bfe_u32 s65, s2, %s
s_lshl_b32 s65, s65, 5
s_add_u32 s65, s65, s47
s_bitcmp1_b32 s2, %d
s_cselect_b32 s46, 5, 0
s_add_u32 s64, s64, s46""" % (M[0], M[1], M[2], M[3], ["0x20001", "0x20000"][OPT["x2"] - 1], [0, 2][OPT["x2"] - 1]))
            return
        e("""s_lshr_b32 s46, s2, 3
s_and_b32 s65, s2, 7
s_lshl_b32 s65, s65, 4
s_bitcmp1_b32 s2, 0
s_cselect_b32 s47, 0x%x, 0x%x
s_cselect_b32 s64, 0x%x, 0x%x
s_bitcmp1_b32 s2, 1
s_cselect_b32 s47, s64, s47
s_bfm_b32 s64, s46, 0
s_and_b32 s64, s64, s47
s_bcnt1_i32_b32 s64, s64
s_sub_u32 s66, s46, s64
s_bitcmp1_b32 s47, s46
s_cselect_b32 s47, 1, 0
s_lshr_b32 s46, s66, 1
s_and_b32 s66, s66, 1
s_mul_i32 s66, s66, 5
s_add_u32 s66, s66, 6
s_cmp_eq_u32 s47, 1
s_cselect_b32 s64, s64, s46
s_cselect_b32 s47, 0, s66
s_cselect_b32 s66, 6, 5
s_add_u32 s65, s65, s47""".replace("s_cselect_b32 s47, 0x%x, 0x%x", "s_mov_b32 s47, 0x%x\ns_cselect_b32 s47, 0x%x, s47")
     .replace("s_cselect_b32 s64, 0x%x, 0x%x", "s_mov_b32 s64, 0x%x\ns_cselect_b32 s64, 0x%x, s64") % (M[0], M[1], M[2], M[3]))
        return
    e("""s_lshr_b32 s46, s2, 3
s_and_b32 s65, s2, 7
s_lshl_b32 s65, s65, 4
s_sub_u32 s47, s46, 10
s_cmp_ge_u32 s46, 18
s_cselect_b32 s47, s47, s46
s_lshr_b32 s64, s47, 1
s_and_b32 s47, s47, 1
s_mul_i32 s47, s47, 5
s_add_u32 s47, s47, 6
s_sub_u32 s46, s46, 18
s_cmp_lt_u32 s46, 10
s_cselect_b32 s64, s46, s64
s_cselect_b32 s47, 0, s47
s_cselect_b32 s66, 6, 5
s_add_u32 s65, s65, s47""")


class Cnt:
    def __init__(self, e, name, mx, init=()):
        self.e, self.name, self.mx, self.q, self.done = e, name, mx, list(init), 0
    def issue(self, tag, ins):
        self.e(ins); self.q.append(tag)
    def wait(self, tags):
        idx = [i for i, t in enumerate(self.q) if t in tags]
        if not idx or idx[-1] < self.done:
            return
        n = min(len(self.q) - 1 - idx[-1], self.mx)
        self.e("s_waitcnt %s(%d)" % (self.name, n))
        self.done = len(self.q) - n


PU = [7, 8, 0, 1, 2, 3]
UN = lambda s: s % 9


def w_setup(e, VW4, VW20, T0):
    e("s_lshl_b32 s58, s20, 12")
    e("s_lshl_b32 s46, s64, 7")
    e("s_mul_i32 s55, s20, %d" % (12 * 40960))
    e("s_add_u32 s55, s55, s46")
    e("s_mul_i32 s56, s20, %d" % (160 * 1280))
    e("s_add_u32 s56, s56, s46")
    e("v_lshrrev_b32 v%d, 3, v%d" % (T0, VL))
    e("v_and_b32 v%d, 6, v%d" % (T0 + 1, T0))
    e("v_xor_b32 v%d, v%d, v%d" % (T0 + 1, T0 + 1, VL))
    e("v_and_b32 v%d, 7, v%d" % (T0 + 1, T0 + 1))
    e("v_mul_u32_u24 v%d, 1280, v%d" % (VW4, T0))
    e("v_lshl_add_u32 v%d, v%d, 4, v%d" % (VW4, T0 + 1, VW4))
    e("v_lshrrev_b32 v%d, 5, v%d" % (T0, VL))
    e("v_mul_u32_u24 v%d, %d, v%d" % (VW20, 16 * 1280, T0))
    e("v_add_u32 v%d, v%d, v%d" % (VW20, VW20, VW4))


def w_src(s, n, VW4, VW20, S2, SWO):
    if s < 12: base, c0, G, J, vw, sd = "s55", 40960 * s, 4, 16, VW4, S2
    elif s < 16: base, c0, G, J, vw, sd = "s56", 51200 * (s - 12), 4, 20, VW4, SWO
    else: base, c0, G, J, vw, sd = "s56", 16 * 1280, 20, 80, VW20, SWO
    return base, c0 + (2 * G * (n >> 1) + J * (n & 1)) * 1280, vw, sd


def gen_p2l(e):
    NS, NH, AD = 17, 12, 5
    WF, AR = 96, 112
    VA, VW4, VW20, AT, VPH, VPO, VP, VC, PW, T0 = 232, 238, 239, 240, 244, 245, 246, 247, 248, 252
    S2, SWO, SA, SF, SD = 88, 92, 32, 36, 68
    LST = [None, [0, 4, 8, 12], [5, 6, 7, 8], [9, 10, 11, 12], [13, 14, 15, 16], [1, 2, 3, 4]][OPT.get("lst", 0)]
    e.label("P2S")
    tile_params(e)
    srd(e, S2, 14, 0, 1536 * 1280)
    srd(e, SWO, 8, 0, 640 * 1280)
    srd(e, SA, 18, 0, WS_SPAN)
    srd(e, SF, 18, FLAG_OFF, FLAG_BYTES)
    srd(e, SD, 62, 0, 256)
    w_setup(e, VW4, VW20, T0)
    e("s_mul_i32 s50, s20, 12288")
    e("s_add_u32 s50, s50, 20480")
    e("s_add_u32 s51, s50, 4096")
    e("s_add_u32 s52, s50, 8192")
    R2 = OPT.get("rot2", 1)
    if R2:
        e("s_mul_i32 s6, s64, %d" % R2)
        e("s_mul_i32 s7, s6, 171")
        e("s_lshr_b32 s7, s7, 11")
        e("s_mul_i32 s7, s7, 12")
        e("s_sub_u32 s6, s6, s7")
        e("s_mul_i32 s7, s6, 40960")
        e("s_add_u32 s55, s55, s7")
        e("s_sub_u32 s7, s55, %d" % (12 * 40960))
        e("s_lshl_b32 s51, s6, 10")
        e("s_add_u32 s50, s50, s51")
        e("s_sub_u32 s51, s50, 12288")
    e("s_and_b32 s46, s65, 1")
    e("s_mul_i32 s10, s20, %d" % (4 * KS))
    e("s_add_u32 s10, s10, %d" % OB1)
    e("s_add_u32 s11, s10, %d" % PS)
    e("s_mul_i32 s53, s20, %d" % (8 * CS))
    e("s_add_u32 s53, s53, %d" % OB2)
    e("s_add_u32 s57, s53, %d" % PS2)
    e("s_mul_i32 s47, s46, %d" % PS)
    e("s_add_u32 s10, s10, s47")
    e("s_sub_u32 s11, s11, s47")
    e("s_mul_i32 s47, s46, %d" % PS2)
    e("s_add_u32 s53, s53, s47")
    e("s_sub_u32 s57, s57, s47")
    e("s_mul_i32 s46, s65, %d" % RB_STRIDE)
    e("v_lshl_add_u32 v%d, v%d, 4, s46" % (VA, VL))
    for q in range(1, 6):
        e("v_add_u32 v%d, %d, v%d" % (VA + q, RB_STRIDE * q, VA))
    e("s_cmp_eq_u32 s66, 5")
    e("s_cselect_b32 s46, 0x40000000, 0")
    SK5 = OPT.get("sk5", 0)
    if SK5: e("s_cselect_b64 s[4:5], %d, -1" % (SK5 - 1))
    e("v_or_b32 v%d, s46, v%d" % (VA + 5, VA + 5))
    e("v_bfe_u32 v%d, v%d, 2, 3" % (T0 + 1, VL))
    e("v_lshl_add_u32 v%d, v%d, 11, s58" % (AT, T0))
    e("v_lshl_add_u32 v%d, v%d, 7, v%d" % (AT, T0 + 1, AT))
    e("v_lshrrev_b32 v%d, 1, v%d" % (T0 + 1, T0 + 1))
    e("v_lshl_add_u32 v%d, v%d, 5, v%d" % (AT, T0 + 1, AT))
    e("v_and_b32 v%d, 3, v%d" % (T0 + 1, VL))
    e("v_lshl_add_u32 v%d, v%d, 3, v%d" % (AT, T0 + 1, AT))
    for t in range(1, 4):
        e("v_xor_b32 v%d, %d, v%d" % (AT + t, 32 * t, AT))
    e("v_lshl_add_u32 v%d, v%d, 1, v%d" % (T0 + 1, T0, VL))
    e("v_and_b32 v%d, 48, v%d" % (VP, VL))
    e("v_lshl_add_u32 v%d, v%d, 4, s58" % (VP, VP))
    for t in range(4):
        e("v_add_u32 v%d, %d, v%d" % (PW + t, 4 * t, T0 + 1))
        e("v_and_b32 v%d, 15, v%d" % (PW + t, PW + t))
        e("v_lshl_add_u32 v%d, v%d, 4, v%d" % (PW + t, PW + t, VP))
    e("s_add_u32 s47, s65, s66")
    e("s_sub_u32 s47, s47, 1")
    e("s_lshr_b32 s54, s65, 3")
    e("s_lshr_b32 s49, s47, 3")
    e("s_sub_u32 s49, s49, s54")
    e("s_lshl_b32 s54, s54, 8")
    e("s_lshl_b32 s49, s49, 8")
    e("v_and_b32 v%d, 31, v%d" % (T0 + 1, VL))
    e("v_lshlrev_b32 v%d, 2, v%d" % (T0 + 1, T0 + 1))
    e("v_mad_u32_u24 v%d, v%d, s49, v%d" % (VPH, T0, T0 + 1))
    e("v_add_u32 v%d, s54, v%d" % (VPH, VPH))
    e("v_lshrrev_b32 v%d, 4, v%d" % (T0 + 1, VL))
    e("v_mul_u32_u24 v%d, %d, v%d" % (T0 + 1, GS, T0 + 1))
    e("v_add_u32 v%d, 256, v%d" % (T0 + 1, T0 + 1))
    e("v_and_b32 v%d, 15, v%d" % (VL, VL))
    e("v_mov_b32 v%d, %d" % (VPO, WORDS))
    PWV = OPT.get("pw", 0)
    if PWV:
        e("s_mul_i32 s98, s20, 3")
        e("s_lshr_b32 s98, s98, 1")
        e("s_lshl_b32 s98, s98, 2")
        e("s_lshl_b32 s98, 0x11, s98")
        e("s_mov_b32 s99, s98")
    else:
        e("s_mov_b32 s98, 0x111111")
        e("s_mov_b32 s99, 0x111111")
    e("s_movk_i32 s97, 240")
    if OPT.get("ns", 0):
        e("s_lshr_b32 s59, s2, 3")
        e("s_lshl_b32 s59, s59, 2")
        e("s_add_u32 s59, s59, s20")
        e("s_mul_i32 s59, s59, %d" % (8 * 128 * OPT["ns"]))
    e("s_cmp_lt_u32 s2, 144")
    e("s_cbranch_scc1 QL_RET")
    e("s_branch FL_RET")
    e.label("P2L")
    vm = Cnt(e, "vmcnt", 63, ["p8"] * 12 + ["t"] * OPT.get("tw", 0) + ["p9"] * 12 + ["t"] * OPT.get("tw", 0))
    lg = Cnt(e, "lgkmcnt", 15)

    def wdma(s):
        if s >= NS: return
        if s < NH: base, c0, G, J, vw, sd = "s55", 40960 * s, 4, 16, VW4, S2
        elif s < NS - 1: base, c0, G, J, vw, sd = "s56", 51200 * (s - NH), 4, 20, VW4, SWO
        else: base, c0, G, J, vw, sd = "s56", 16 * 1280, 20, 80, VW20, SWO
        if OPT.get("exp", 0) & 16: c0 = 0
        if R2 and s < NH:
            e("s_cmp_ge_u32 s6, %d" % (12 - s))
            e("s_cselect_b32 s47, s7, s55")
            base = "s47"
        e("s_add_u32 m0, s58, %d" % (16384 * UN(s)))
        for n in range(4):
            e("s_add_u32 s46, %s, %d" % (base, c0 + (2 * G * (n >> 1) + J * (n & 1)) * 1280 - 1024 * n))
            vm.issue(("W", s), "buffer_load_dwordx4 v%d, s[%d:%d], s46 offen offset:%d lds" % (vw, sd, sd + 3, 1024 * n))

    EXP = OPT.get("exp", 0)
    WR = OPT.get("wr", 1)
    if WR:
        SLOT = {0: 0, 1: 1, 2: 2}
        ISS = {}
        nxt = 3
        for s in range(NS):
            free = [SLOT[s]] + ([3] if s == 2 else [4] if s == 3 else [])
            ISS[s] = []
            for f in free:
                SLOT[nxt] = f; ISS[s].append(nxt); nxt += 1
    else:
        SLOT = {s: s % AD for s in range(NS + AD)}
        ISS = {s: [s + AD] for s in range(NS)}
    def WREG(s): return AR + 72 + 16 * (s - 1) if WR and 1 <= s <= 3 else WF
    def aload(s, q):
        if s >= NS: return
        if EXP & 1 and s >= AD: return
        r = AR + 24 * SLOT[s] + 4 * q
        if s < NH and R2:
            so, im = "s52", 0
            if q == 0:
                e("s_cmp_ge_u32 s6, %d" % (12 - s))
                e("s_cselect_b32 s52, s51, s50")
                e("s_add_u32 s52, s52, %d" % (1024 * s))
        elif s < NH: so, im = "s%d" % (50 + (s >> 2)), 1024 * (s & 3)
        elif s < NS - 1:
            so, im = "s%d" % (10 + (q & 1)), 0
            if s > NH and q < 2: e("s_add_u32 %s, %s, %d" % (so, so, KS))
        else:
            e("v_lshrrev_b32 v%d, 1, v%d" % (VA + q, VA + q))
            so = "s57" if q & 1 else "s53"
            e("s_add_u32 s46, %s, %d" % (so, 4 * CS))
            if SK5 and q == 5: e("s_mov_b64 exec, s[4:5]")
            for k in range(2):
                vm.issue(("A", s), "buffer_load_dwordx2 %s, v%d, s[%d:%d], %s offen sc1" % (vr(r + 2 * k, 2), VA + q, SA, SA + 3, "s46" if k else so))
            if SK5 and q == 5: e("s_mov_b64 exec, -1")
            return
        if EXP & 32: so, im = "s50", 0
        if SK5 and q == 5: e("s_mov_b64 exec, s[4:5]")
        vm.issue(("A", s), "buffer_load_dwordx4 %s, v%d, s[%d:%d], %s offen offset:%d sc1" % (vr(r, 4), VA + q, SA, SA + 3, so, im))
        if SK5 and q == 5: e("s_mov_b64 exec, -1")

    def oaddr(q):
        v = VA + q
        e("s_add_u32 s46, s65, %d" % q)
        e("s_lshr_b32 s46, s46, 1")
        e("s_lshl_b32 s46, s46, 4")
        e("v_add_u32 v%d, s46, v%d" % (v, VL))
        e("v_mul_u32_u24 v%d, 1150, v%d" % (T0, v))
        e("v_lshrrev_b32 v%d, 16, v%d" % (T0, T0))
        e("v_lshl_add_u32 v%d, v%d, 5, v%d" % (v, T0, v))
        e("v_lshl_add_u32 v%d, v%d, 4, v%d" % (v, v, T0 + 1))
        if q == 5:
            e("s_cmp_eq_u32 s66, 5")
            e("s_cselect_b32 s46, 0x40000000, 0")
            e("v_or_b32 v%d, s46, v%d" % (v, v))

    def lcheck(tag, off, first=True):
        if not first:
            e("v_cmp_ne_u32 vcc, 0, v%d" % VP)
            e("s_cbranch_vccnz %s_OK" % tag)
        e.label(tag + "_SPIN")
        e("ds_read_b32 v%d, v%d offset:%d" % (VP, VPO, off))
        e("s_waitcnt lgkmcnt(0)")
        e("v_cmp_ne_u32 vcc, 0, v%d" % VP)
        e("s_cbranch_vccz %s_SPIN" % tag)
        e.label(tag + "_OK")

    atb = [0] * 4
    def wread(s, t):
        if s >= NS: return
        if EXP & 2 and s >= 1: return
        u = UN(s)
        if atb[t] != u >> 2:
            e("v_add_u32 v%d, 0x%x, v%d" % (AT + t, (65536 * ((u >> 2) - atb[t])) & 0xffffffff, AT + t)); atb[t] = u >> 2
        for h in range(2):
            lg.issue(("R", s, t), "ds_read_b64_tr_b16 %s, v%d offset:%d" % (vr(WREG(s) + 4 * t + 2 * h, 2), AT + t, (u & 3) * 16384 + 1024 * h))

    def check(tag, vres, vaddr, sd, val, mask):
        def cmp():
            e("v_cmp_ne_u32 s[48:49], %s, v%d" % (val, vres))
            e("s_and_b64 s[48:49], s[48:49], %s" % mask)
            e("s_cbranch_scc0 %s_OK" % tag)
        cmp()
        e("s_mov_b32 s59, 0")
        e.label(tag + "_SPIN")
        e("buffer_load_dword v%d, %s, s[%d:%d], 0 %ssc1" % (vres, "v%d" % vaddr if vaddr else "off", sd, sd + 3, "offen " if vaddr else ""))
        e("s_add_u32 s59, s59, 1")
        e("s_waitcnt vmcnt(0)")
        cmp()
        if OPT.get("psleep", 0): e("s_sleep %d" % OPT["psleep"])
        e("s_cmp_lt_u32 s59, %d" % SPIN)
        e("s_cbranch_scc1 %s_SPIN" % tag)
        e.label(tag + "_OK")

    vm.wait(["p8"])
    e("s_barrier")
    WQ = OPT.get("wq", 9)
    for s in range(min(3, WQ)): wdma(s)
    vm.wait(["p9"])
    e("s_barrier")
    vm.issue("C", "buffer_load_dword v%d, off, s[%d:%d], 0 sc1" % (VC, SD, SD + 3))
    GATE = OPT.get("gate", 2)
    G3 = OPT.get("g3", 3)
    if GATE == 3:
        for s in range(3, G3): wdma(s)
        e("s_cmp_lt_u32 s2, 144")
        e("s_cbranch_scc0 G3_F")
        q0 = list(vm.q)
        for s in range(G3, 6): wdma(s)
        vm.q[:] = q0
        e("s_barrier")
        e("s_branch G3_J")
        e.label("G3_F")
        e("s_barrier")
        e.label("GT_SPIN")
        e("ds_read_b32 v%d, v%d" % (VP, VPO))
        e("s_waitcnt lgkmcnt(0)")
        e("v_cmp_ne_u32 vcc, 4, v%d" % VP)
        e("s_cbranch_vccnz GT_SPIN")
        for s in range(G3, 6): wdma(s)
        e.label("G3_J")
        GATE = 0
    else:
        for s in range(3, min(6, WQ)): wdma(s)
        e("s_barrier")
    if not LST: stamp(e, 1)
    if OPT.get("ns", 0): e("s_waitcnt lgkmcnt(0)")
    def gate():
        e("s_cmp_lt_u32 s2, 144")
        e("s_cbranch_scc1 GT_OK")
        e.label("GT_SPIN")
        e("ds_read_b32 v%d, v%d" % (VP, VPO))
        e("s_waitcnt lgkmcnt(0)")
        e("v_cmp_ne_u32 vcc, 4, v%d" % VP)
        e("s_cbranch_vccnz GT_SPIN")
        e.label("GT_OK")
    if GATE < 2:
        for s in range(6, min(9, WQ)): wdma(s)
    if WR:
        for s in range(4):
            vm.wait([("W", s)])
            for t in range(4): wread(s, t)
        lg.wait([("R", 3, 3)])
    if GATE: gate()
    WSL = OPT.get("wsl", 0)
    def wdma2(s):
        if WSL: vm.wait([("W", s - WSL)])
        wdma(s)
    if GATE == 2:
        for s in range(6, min(9, WQ)): wdma2(s)
    if WR:
        for s in range(9, 13): wdma2(s)
    vm.wait(["C"])
    if not PWV:
        e("s_cmp_eq_u32 s20, 0")
        e("s_cbranch_scc0 LH_SPIN")
    e("v_mov_b32 v%d, 0" % VP)
    check("CK", VC, 0, SD, "s97", "exec")
    check("PH", VP, VPH, SF, "1", "s[98:99]")
    e("v_mov_b32 v%d, 1" % VP)
    if PWV:
        e("s_mov_b64 exec, 1")
        e("ds_add_u32 v%d, v%d offset:4" % (VPO, VP))
        e("s_mov_b64 exec, -1")
    else:
        e("ds_write_b32 v%d, v%d offset:4" % (VPO, VP))
        e("s_branch LH_OK")
        lcheck("LH", 4)
    if not LST: stamp(e, 2)
    lg.q.append("x")
    for s in range(3 if WR else AD):
        for q in range(6): aload(s, q)
    if not WR:
        vm.wait([("W", 0)])
        for t in range(4): wread(0, t)

    pwb = [0] * 4
    CW = OPT.get("cw", 0)
    def pwrite(t, tag):
        for q in (range(6) if pwb[t] else [2, 3, 4, 5, 0, 1]):
            hi = 1 if PU[q] >= 7 else 0
            if pwb[t] != hi:
                e("v_add_u32 v%d, 0x%x, v%d" % (PW + t, (7 * 16384 * (hi - pwb[t])) & 0xffffffff, PW + t)); pwb[t] = hi
            lg.issue(tag, "ds_write_b128 v%d, %s offset:%d" % (PW + t, vr(16 * q + 4 * t, 4), 16384 * (PU[q] - 7 * hi) + 1024 * t))

    RR = [VPH, VPO, VP, VC, T0, 255]
    for s in range(NS):
        vm.wait([("A", s), ("W", s + 1)])
        if LST:
            if s in LST: stamp(e, 1 + LST.index(s))
        else:
            if s == 0: stamp(e, 3)
            if s == NH + 1: stamp(e, 4)
        for t in range(4):
            lg.wait([("R", s, t)])
            if t == 3 and s + AD == NH:
                if CW: e("s_barrier")
                else:
                    lg.wait(["PO"])
                    lcheck("PO", 8, False)
                e("s_lshl_b32 s46, s65, 7")
                e("s_add_u32 s46, s46, %d" % (G_OFF + 64))
                e("v_lshl_add_u32 v%d, v%d, 2, s46" % (T0 + 1, VL))
                e("v_and_b32 v255, 0x40000000, v%d" % (VA + 5))
                e("v_or_b32 v255, v255, v%d" % (T0 + 1))
                for q in range(6):
                    vm.issue("G", "buffer_load_dword v%d, v%d, s[%d:%d], 0 offen offset:%d sc1" % (RR[q], 255 if q == 5 else T0 + 1, SA, SA + 3, 128 * q))
            sc = t + 1 if s == NH and t < 3 else (0 if s == NH - 1 and t == 3 else None)
            if sc == 0: vm.wait(["G"])
            for q in range(6):
                acc = vr(16 * q + 4 * t, 4)
                if not (EXP & 4): e("%s %s, %s, %s, %s" % (MF, acc, vr(WREG(s) + 4 * t, 4), vr(AR + 24 * SLOT[s] + 4 * q, 4), "0" if s == 0 else acc))
                if t == 3: aload(ISS[s][0], q)
                if s + AD == NH and t < 2 and q % 2 == 0: oaddr(3 * t + q // 2)
                if sc is not None:
                    for j in range(4):
                        e("v_mul_f32 v%d, v%d, v%d" % (16 * q + 4 * sc + j, RR[q], 16 * q + 4 * sc + j))
            if CW and t == 0 and s in (OPT.get("x1", 4), NH): e("s_barrier")
            if not (WR and s < 3): wread(s + 1, t)
            if t == 3 and len(ISS[s]) > 1:
                for q in range(6): aload(ISS[s][1], q)
            if s + AD == NH and t == 1 and not CW:
                lg.issue("PO", "ds_read_b32 v%d, v%d offset:8" % (VP, VPO))
            if t == 3 and not (EXP & 8) and not CW and not (WR and s < 4 + OPT.get("wd", 0)): wdma(s + 9 - OPT.get("wd", 0))
            if s == NS - 1 and t: pwrite(t - 1, "PWO")
    e("s_nop 7")
    pwrite(3, "PWO")
    lg.wait(["PWO"])
    e("s_barrier")
    stamp(e, 5, True)
    stamp_flush(e, 4, 0)
    e("s_endpgm")


def gen_p2c(e):
    RA, OA, GA, GV, T0 = 200, 204, 208, 212, 220
    e.label("P2C")
    def publish(n):
        e("v_mov_b32 v255, 1")
        e("v_mov_b32 v%d, %d" % (T0 + 5, WORDS))
        e("s_mov_b64 exec, 1")
        e("s_waitcnt vmcnt(%d)" % n)
        e("ds_add_rtn_u32 v%d, v%d, v255" % (T0 + 4, T0 + 5))
        e("s_waitcnt lgkmcnt(0)")
        e("v_readfirstlane_b32 s59, v%d" % (T0 + 4))
        e("s_cmp_eq_u32 s59, 3")
        e("s_cbranch_scc0 PUB_SKIP")
        e("buffer_store_dword v255, off, s[24:27], s67 sc1")
        e.label("PUB_SKIP")
        e("s_mov_b64 exec, -1")
        stamp(e, 4 if OPT.get("cst", 0) else 3)
    EARLY = OPT.get("early", 0)
    if not EARLY: publish(0)
    tile_params(e)
    srd(e, 28, 60, 0, 2048 * 1280)
    srd(e, 36, 18, G_OFF, G_BYTES)
    e("v_mbcnt_lo_u32_b32 v%d, -1, 0" % VL)
    e("v_mbcnt_hi_u32_b32 v%d, -1, v%d" % (VL, VL))
    CW = OPT.get("cw", 0)
    if CW:
        srd(e, 88, 14, 0, 1536 * 1280)
        srd(e, 92, 8, 0, 640 * 1280)
        w_setup(e, 228, 229, T0)
        for s in range(9, 17):
            for n in range(4):
                base, c0, vw, sd = w_src(s, n, 228, 229, 88, 92)
                e("s_add_u32 s46, %s, %d" % (base, c0))
                e("buffer_load_dwordx4 %s, v%d, s[%d:%d], s46 offen" % (vr(16 * (s - 9) + 4 * n, 4), vw, sd, sd + 3))
        e("v_lshl_add_u32 v230, v%d, 4, s58" % VL)
        e("v_add_u32 v231, 0x10000, v230")
        e("v_add_u32 v232, 0x20000, v230")
        if EARLY: publish(32)
    def wput(s0):
        for s in range(s0, s0 + 4):
            for n in range(4):
                if n == 0 and s0 == 9: e("s_waitcnt vmcnt(%d)" % (4 * (16 - s)))
                u = UN(s)
                e("ds_write_b128 v%d, %s offset:%d" % (230 + (u >> 2), vr(16 * (s - 9) + 4 * n, 4), 16384 * (u & 3) + 1024 * n))
    e("v_lshrrev_b32 v%d, 3, v%d" % (T0, VL))
    e("v_and_b32 v%d, 7, v%d" % (T0 + 1, VL))
    e("v_lshl_add_u32 v%d, v%d, 1, v%d" % (T0 + 2, T0 + 1, T0))
    e("v_mul_u32_u24 v%d, 2560, v%d" % (T0 + 3, T0))
    e("v_lshl_add_u32 v%d, v%d, 4, v%d" % (T0 + 3, T0 + 1, T0 + 3))
    e("s_lshl_b32 s50, s64, 7")
    for k in range(3):
        e("s_mul_i32 s46, s20, 3")
        if k: e("s_add_u32 s46, s46, %d" % k)
        e("s_lshr_b32 s47, s46, 1")
        e("s_and_b32 s46, s46, 1")
        e("s_lshl_b32 s46, s46, 3")
        e("s_add_u32 s48, s47, 7")
        e("s_sub_u32 s49, s47, 2")
        e("s_cmp_lt_u32 s47, 2")
        e("s_cselect_b32 s48, s48, s49")
        e("s_lshl_b32 s48, s48, 14")
        e("v_add_u32 v%d, s46, v%d" % (RA + k, T0 + 2))
        e("v_and_b32 v%d, 15, v%d" % (RA + k, RA + k))
        e("v_lshl_add_u32 v%d, v%d, 4, s48" % (RA + k, RA + k))
        e("v_lshl_add_u32 v%d, v%d, 9, v%d" % (RA + k, T0 + 1, RA + k))
        e("s_cmp_lt_u32 s47, s66")
        e("s_cselect_b32 s51, 0, 0x40000000")
        e("s_add_u32 s47, s47, s65")
        e("s_lshl_b32 s48, s47, 5")
        e("s_add_u32 s48, s48, s46")
        e("s_lshl_b32 s48, s48, 2")
        e("s_or_b32 s48, s48, s51")
        e("v_lshl_add_u32 v%d, v%d, 2, s48" % (GA + k, T0))
        e("s_lshr_b32 s48, s47, 1")
        e("s_lshl_b32 s48, s48, 4")
        e("s_add_u32 s48, s48, s46")
        e("s_lshl_b32 s48, s48, 1")
        e("s_and_b32 s47, s47, 1")
        e("s_add_u32 s48, s48, s47")
        e("s_mul_i32 s48, s48, 1280")
        e("s_add_u32 s48, s48, s50")
        e("s_or_b32 s48, s48, s51")
        e("v_add_u32 v%d, s48, v%d" % (OA + k, T0 + 3))
    def reads(b):
        for k in range(3):
            for w in range(4):
                for h in range(2):
                    e("ds_read_b128 %s, v%d offset:%d" % (vr(b + 32 * k + 8 * w + 4 * h, 4), RA + k, 4096 * w + 256 * h))
    def sums(b, k):
        r = b + 32 * k
        for a, c in ((0, 8), (16, 24), (0, 16)):
            for j in range(0, 8, 2):
                e("v_pk_add_f32 %s, %s, %s" % (vr(r + a + j, 2), vr(r + a + j, 2), vr(r + c + j, 2)))
    if CW:
        e("s_barrier")
        wput(9)
    if not CW:
        e.label("CH_SPIN")
        e("ds_read_b32 v%d, v%d offset:4" % (T0 + 4, T0 + 5))
        e("s_waitcnt lgkmcnt(0)")
        e("v_cmp_eq_u32 vcc, %d, v%d" % (4 if OPT.get("pw", 0) else 1, T0 + 4))
        e("s_cbranch_vccz CH_SPIN")
    for k in range(3):
        e("buffer_load_dword v%d, v%d, s[36:39], 0 offen sc1" % (GV + k, GA + k))
    e("s_cmp_eq_u32 s59, 3")
    e("s_cbranch_scc0 OP_OK")
    e("s_add_u32 s47, s65, s66")
    e("s_sub_u32 s47, s47, 1")
    e("s_lshr_b32 s54, s65, 1")
    e("s_mul_i32 s54, s54, %d" % (16 * 1150))
    e("s_lshr_b32 s54, s54, 16")
    e("s_lshr_b32 s49, s47, 1")
    e("s_mul_i32 s49, s49, %d" % (16 * 1150))
    e("s_add_u32 s49, s49, %d" % (15 * 1150))
    e("s_lshr_b32 s49, s49, 16")
    e("s_sub_u32 s49, s49, s54")
    e("s_lshl_b32 s54, s54, 8")
    e("s_add_u32 s54, s54, 4096")
    e("s_lshl_b32 s49, s49, 8")
    e("v_and_b32 v%d, 1, v%d" % (T0 + 6, T0))
    e("v_mul_u32_u24 v%d, s49, v%d" % (T0 + 6, T0 + 6))
    e("v_lshl_add_u32 v%d, v%d, 4, v%d" % (T0 + 6, T0 + 1, T0 + 6))
    e("s_mov_b64 exec, 0xffff")
    e("s_mov_b32 s59, 0")
    e.label("OP_SPIN")
    e("buffer_load_dword v%d, v%d, s[24:27], s54 offen sc1" % (T0 + 4, T0 + 6))
    e("s_add_u32 s59, s59, 1")
    e("s_waitcnt vmcnt(0)")
    e("v_cmp_ne_u32 vcc, 1, v%d" % (T0 + 4))
    e("s_cbranch_vccz OP_SET")
    e("s_cmp_lt_u32 s59, %d" % SPIN)
    e("s_cbranch_scc1 OP_SPIN")
    e.label("OP_SET")
    if not CW: e("ds_write_b32 v%d, v255 offset:8" % (T0 + 5))
    e("s_mov_b64 exec, -1")
    e.label("OP_OK")
    e("s_waitcnt lgkmcnt(0)")
    if CW:
        e("s_barrier")
        e("s_waitcnt vmcnt(0)")
        wput(13)
        e("s_waitcnt lgkmcnt(0)")
        e("s_barrier")
    if not OPT.get("cst", 0): stamp(e, 4)
    e("s_waitcnt vmcnt(0)")
    e("s_barrier")
    reads(0)
    for k in range(3):
        e("s_waitcnt lgkmcnt(%d)" % min(15, 8 * (2 - k)))
        sums(0, k)
        for j in range(8):
            e("v_mul_f32 v%d, v%d, v%d" % (32 * k + j, GV + k, 32 * k + j))
        for j in range(4):
            e("v_cvt_pk_bf16_f32 v%d, v%d, v%d" % (32 * k + 8 + j, 32 * k + 2 * j, 32 * k + 2 * j + 1))
        e("buffer_store_dwordx4 %s, v%d, s[28:31], 0 offen%s" % (vr(32 * k + 8, 4), OA + k, ["", " sc1", " nt", " sc0 sc1"][OPT.get("ost", 0)]))
    stamp(e, 5, True)
    stamp_flush(e, 0, 224)
    e("s_endpgm")


def gen_spare(e):
    mode = OPT.get("spare", 2)
    if not mode:
        return
    e("s_sub_u32 s46, s22, 30")
    e("s_lshl_b32 s46, s46, 9")
    e("v_add_u32 v1, s46, v0")
    e("v_lshlrev_b32 v1, 7, v1")
    e("s_waitcnt lgkmcnt(0)")
    srd(e, 24, 14, 0, 1536 * 1280)
    srd(e, 28, 8, 0, 640 * 1280)
    if OPT.get("kp", 1):
        k0 = OPT.get("k0", 5)
        srd(e, 32, 4, 0, 2048 * 1280)
        srd(e, 36, 6, 0, 640 * 3840)
        srd(e, 40, 12, 0, 640 * 3072)
        e("s_sub_u32 s46, s2, 240")
        e("s_lshl_b32 s46, s46, 1")
        e("s_and_b32 s47, s20, 1")
        e("s_add_u32 s46, s46, s47")
        e("s_lshl_b32 s46, s46, 6")
        e("v_add_u32 v4, s46, v%d" % VL)
        e("s_lshr_b32 s47, s20, 1")
        XW = OPT.get("xw", 0)
        if XW:
            e("s_cmp_lt_u32 s20, 4")
            e("s_cbranch_scc1 KPX")
            e("s_sub_u32 s48, s22, 31")
            e("s_lshl_b32 s48, s48, 2")
            e("s_add_u32 s48, s48, s20")
            e("s_lshl_b32 s48, s48, 3")
            e("v_lshrrev_b32 v5, 3, v%d" % VL)
            e("v_add_u32 v5, s48, v5")
            e("v_mul_u32_u24 v5, 3072, v5")
            e("v_and_b32 v6, 7, v%d" % VL)
            e("v_lshl_add_u32 v5, v6, 7, v5")
            e("s_lshr_b32 s48, s21, 1")
            e("s_mul_i32 s48, s48, 3")
            e("s_lshr_b32 s48, s48, 1")
            e("s_lshl_b32 s48, s48, 9")
            e("v_add_u32 v5, s48, v5")
            for k in range(XW - 1, 10):
                e("s_mov_b32 s48, %d" % (64 * 3072 * k))
                e("buffer_load_dword v3, v5, s[40:43], s48 offen")
            e("s_branch KP_END")
            e.label("KPX")
        for i, (sd, mul, n, step) in enumerate(((32, 1280, 2048, 128), (36, 128, 1920, 64 * 3840), (40, 128, 1536, 64 * 3072))):
            e("s_cmp_eq_u32 s47, %d" % i)
            e("s_cbranch_scc0 KP%d" % i)
            e("s_cmp_ge_u32 s46, %d" % n)
            e("s_cbranch_scc1 KP_END")
            e("v_mul_u32_u24 v4, %d, v4" % mul)
            for k in range(k0, 10):
                e("s_mov_b32 s48, %d" % (step * k))
                e("buffer_load_dword v3, v4, s[%d:%d], s48 offen" % (sd, sd + 3))
            e("s_branch KP_END")
            e.label("KP%d" % i)
        e.label("KP_END")
        if OPT.get("kb", 1): e("s_barrier")
    n2, no = {1: (15, 7), 2: (2, 1), 3: (0, 7)}[mode]
    dep = OPT.get("sdep", 1)
    e("s_lshl_b32 s46, s21, 1")
    e("s_mov_b32 s49, s21")
    def touch(sc, lim, sd):
        e("s_cmp_ge_u32 s%d, %d" % (sc, lim))
        e("s_cselect_b32 s%d, 0, s%d" % (sc, sc))
        e("s_lshl_b32 s47, s%d, 17" % sc)
        e("v_add_u32 v2, s47, v1")
        e("buffer_load_dword v3, v2, s[%d:%d], 0 offen" % (sd, sd + 3))
        e("s_add_u32 s%d, s%d, 1" % (sc, sc))
        e("s_waitcnt vmcnt(%d)" % dep)
    c0 = 120 * 8 * OPT.get("ns", 0) // 1024
    for i in range(n2 if not c0 else 2):
        touch(46, 15, 24)
        if i == 1: touch(49, 7, 28)
    if c0:
        e("s_mov_b32 s46, %d" % c0)
        for i in range(c0, 15): touch(46, 15, 24)
    for i in range(no - 1): touch(49, 7, 28)


def main():
    K = NAME + "_kernel"
    e = Asm()
    e.label(K)
    e("s_cmp_ge_u32 s2, 256")
    e("s_cbranch_scc1 K_END")
    if OPT.get("perm", 0):
        e("s_mul_i32 s2, s2, %d" % OPT["perm"])
        e("s_add_u32 s2, s2, 77")
        e("s_and_b32 s2, s2, 255")
    e("s_load_dwordx8 s[4:11], s[0:1], 0")
    e("s_load_dwordx4 s[12:15], s[0:1], 32")
    e("s_load_dwordx2 s[16:17], s[0:1], 48")
    e("s_load_dwordx2 s[18:19], s[0:1], 72")
    e("s_load_dwordx2 s[60:61], s[0:1], 56")
    e("s_load_dwordx2 s[62:63], s[0:1], 64")
    stamp(e, 0)
    e("v_lshrrev_b32 v1, 6, v0")
    e("v_and_b32 v%d, 63, v0" % VL)
    e("v_readfirstlane_b32 s20, v1")
    e("s_and_b32 s21, s2, 7")
    e("s_lshr_b32 s22, s2, 3")
    e("s_cmp_ge_u32 s22, 30")
    e("s_cbranch_scc1 K_SPARE")
    e("s_cmp_ge_u32 s22, 18")
    e("s_cbranch_scc1 K_FFN")
    gen_qkv(e)
    e.label("K_FFN")
    gen_ffn(e)
    gen_p2c(e)
    gen_p2l(e)
    e.label("K_SPARE")
    gen_spare(e)
    e.label("K_END")
    e("s_endpgm")
    out = "; @launch grid=(256,1,1) block=(512,1,1) lds=%d\n" % K1_LDS
    out += '.amdgcn_target "amdgcn-amd-amdhsa--gfx950"\n.text\n'
    out += ".globl %s\n.p2align 8\n.type %s,@function\n" % (K, K) + e.text()
    out += '.section .rodata,"a"\n.p2align 6\n' + kd(K, 256, 256)
    open(sys.argv[1], "w").write(out)


if __name__ == "__main__":
    main()
```
